```python
import torch

def _softmax(x, axis=-1):
    return torch.softmax(x, dim=axis)
def _gelu(x):
    return torch.nn.functional.gelu(x, approximate="tanh")
def _silu(x):
    return torch.nn.functional.silu(x)
def _sigmoid(x):
    return torch.sigmoid(x)
def _layernorm(x, axis=-1, eps=1e-5):
    m = x.mean(dim=axis, keepdim=True)
    v = x.var(dim=axis, keepdim=True, unbiased=False)
    return (x - m) / torch.sqrt(v + eps)
def _scatter_add(tgt, idx, src, axis=0):
    return tgt.clone().index_add_(axis, idx, src)
def _segment_sum(src, seg, n):
    out = torch.zeros((n,) + src.shape[1:], dtype=src.dtype)
    return out.index_add_(0, seg, src)
def _pad(x, pw):
    flat = tuple(v for pair in reversed(pw) for v in pair)
    return torch.nn.functional.pad(x, flat)

kernel_name = 'recurrent_scan__sliding_block_cached__glu_gated_reglu__decode'

def setup_inputs():

    _w = (lambda a: (lambda t: t.to(torch.bfloat16) if t.is_floating_point() else t)(torch.as_tensor(a)))
    def _A_setup():
        B, Sq, D = 4, 1, 448
        Hq, Hkv, Sk, Dh = 16, 8, 8192, 256
        assert Hq % Hkv == 0, (Hq, Hkv)
        return {
            "x": _w((lambda *s: torch.randn(*s, dtype=torch.bfloat16) * 0.05)(B, Sq, D)),
            "k_cache": _w((lambda *s: torch.randn(*s, dtype=torch.bfloat16) * 3.2)(B, Hkv, Sk, Dh)),
            "v_cache": _w((lambda *s: torch.randn(*s, dtype=torch.bfloat16) * 3.2)(B, Hkv, Sk, Dh)),
            "wq": _w((lambda *s: torch.randn(*s, dtype=torch.bfloat16) * 3.2)(D, Hq * Dh) * (D ** -0.5)),
            "wo": _w((lambda *s: torch.randn(*s, dtype=torch.bfloat16) * 3.2)(Hq * Dh, D) * ((Hq * Dh) ** -0.5)),
        }
    _A_in = _A_setup()

    def _B_setup():
        B, S, D, F = 4, 1, 448, 1792
        return {
            "x": _w((lambda *s: torch.randn(*s, dtype=torch.bfloat16) * 0.05)(B, S, D)),
            "W_gate": _w((lambda *s: torch.randn(*s, dtype=torch.bfloat16) * 0.4)(D, F) * (2.0 / D) ** 0.5),
            "W_up": _w((lambda *s: torch.randn(*s, dtype=torch.bfloat16) * 0.4)(D, F) * (2.0 / D) ** 0.5),
            "W_down": _w((lambda *s: torch.randn(*s, dtype=torch.bfloat16) * 0.4)(F, D) * (1.0 / F) ** 0.5),
        }
    _B_in = _B_setup()

    return {
        "A_x": _A_in["x"],
        "A_k_cache": _A_in["k_cache"],
        "A_v_cache": _A_in["v_cache"],
        "A_wq": _A_in["wq"],
        "A_wo": _A_in["wo"],
        "B_x": _B_in["x"],
        "B_W_gate": _B_in["W_gate"],
        "B_W_up": _B_in["W_up"],
        "B_W_down": _B_in["W_down"],
    }

def reference(A_x, A_k_cache, A_v_cache, A_wq, A_wo, B_x, B_W_gate, B_W_up, B_W_down):
    def _A_ref(x, k_cache, v_cache, wq, wo):
        B, Sq, D = x.shape
        Hq, Dh = 16, 256
        Hkv, Sk = k_cache.shape[1], k_cache.shape[2]
        W = min(4096, max(256, Sk // 4))
        rep = Hq // Hkv
        q = (lambda x, *d: x.permute(*d))((x @ wq).reshape(B, Sq, Hq, Dh), 0, 2, 1, 3)
        k = (lambda x, n, axis: torch.repeat_interleave(x, n, dim=axis))(k_cache[:, :, Sk - W:, :], rep, axis=1)
        v = (lambda x, n, axis: torch.repeat_interleave(x, n, dim=axis))(v_cache[:, :, Sk - W:, :], rep, axis=1)
        scores = torch.einsum("bhqd,bhkd->bhqk", q, k) * (Dh ** -0.5)
        p = _softmax(scores, axis=-1)
        o = torch.einsum("bhqk,bhkd->bhqd", p, v)
        return (lambda x, *d: x.permute(*d))(o, 0, 2, 1, 3).reshape(B, Sq, Hq * Dh) @ wo

    def _B_ref(x, W_gate, W_up, W_down):
        gate = torch.einsum("bsd,df->bsf", x, W_gate)
        up = torch.einsum("bsd,df->bsf", x, W_up)
        gate = gate * (lambda x, dt: x.to(dt))(gate > 0, gate.dtype)
        h = gate * up
        return torch.einsum("bsf,fd->bsd", h, W_down)

    x = A_x
    xn = _layernorm(x, axis=-1)
    s = _A_ref(xn, A_k_cache, A_v_cache, A_wq, A_wo)
    g = _silu(_B_ref(xn, B_W_gate, B_W_up, B_W_down))
    return x + s * g
```

```python
class Asm:
    def __init__(self):
        self.lines = []
    def __call__(self, s=""):
        for l in s.split("\n"):
            self.lines.append(l)
    def label(self, n):
        self.lines.append(f"{n}:")
    def text(self):
        return "\n".join(self.lines) + "\n"

def kernel_header(name):
    return f""".text
.globl {name}
.p2align 8
.type {name},@function
{name}:
"""

def kernel_desc(name, vgpr, sgpr, accum=None, ngy=False):
    if accum is None:
        accum = (vgpr + 3) // 4 * 4
    s = f""".section .rodata,"a"
.p2align 6
.amdhsa_kernel {name}
  .amdhsa_next_free_vgpr {vgpr}
  .amdhsa_next_free_sgpr {sgpr}
  .amdhsa_accum_offset {accum}
  .amdhsa_group_segment_fixed_size 0
  .amdhsa_kernarg_size 96
  .amdhsa_user_sgpr_count 2
  .amdhsa_user_sgpr_kernarg_segment_ptr 1
  .amdhsa_system_sgpr_workgroup_id_x 1
.end_amdhsa_kernel
"""
    return s
```

```python
import sys, struct
sys.path.insert(0, "gen")
from asmlib import Asm

NAME = "recurrent_scan__sliding_block_cached__glu_gated_reglu__decode_kernel"

LB = 131072
F_KLAND, F_QRDY, F_MAX, F_PSUM, F_OW, F_XN, F_T1LAND, F_ERDY = 0, 4, 8, 12, 16, 20, 24, 28
L_E = 32
F_T1DONE, F_S1, F_KHALF, F_PUB = 40, 44, 48, 52
L_SMMAX = 64
L_SMSUM = 96
L_Q = 256
L_P = 1280
L_H = 3328
L_OD = 3840
L_XN = 4864
L_OW = 12032
L_S1 = 20224
LDS_TOTAL = LB + L_S1 + 8192
W_EPOCH = 0
W_F1 = 0x1000
W_F2 = 0x9000
W_P1 = 0x20000
W_P2 = 0xA0000
W_P3 = 0x110000
W_P4 = 0x260000
W_STAMP = 0x380000
W_DUMP = 0x3A0000
WS_SIZE = 0x440000
REC = 640

LOG2E = 1.4426950408889634
CEXP = 0.0625 * LOG2E
def fbits(x): return "0x%08x" % struct.unpack("<I", struct.pack("<f", x))[0]
OOB = "0x7ffffff0"

class Gen:
    def __init__(self, thr=5, stamps=False, dump=False, timeout=1 << 16, prefetch=True, exp=(), woflags=" nt", khalf=20):
        self.a = Asm()
        self.thr = thr; self.stamps = stamps; self.dump = dump; self.timeout = timeout
        self.prefetch = prefetch; self.exp = set(exp); self.woflags = woflags; self.khalf = khalf
        self.uid = 0
        self.osleep = 8 if 'osleep' in self.exp else 0
    def L(self, base):
        self.uid += 1
        return f"L_{base}_{self.uid}"
    def __call__(self, s): self.a(s)
    def stamp(self, i):
        if self.stamps: self(f"    s_memrealtime s[{70+2*i}:{71+2*i}]")
    def stamp_dump(self):
        if not self.stamps: return
        self(f"""    s_waitcnt lgkmcnt(0) vmcnt(0)
    s_lshl_b32 s52, s2, 3
    s_add_u32 s52, s52, s3
    s_lshl_b32 s52, s52, 6
    s_add_u32 s52, s52, {W_STAMP}
    s_mov_b64 exec, 1
    v_mov_b32 v2, s52""")
        for q in range(4):
            regs = [70 + 2*(4*q + r) if 4*q + r < 14 else 70 for r in range(4)]
            self(f"    v_mov_b32 v4, s{regs[0]}\n    v_mov_b32 v5, s{regs[1]}\n    v_mov_b32 v6, s{regs[2]}\n    v_mov_b32 v7, s{regs[3]}")
            self(f"    buffer_store_dwordx4 v[4:7], v2, s[36:39], 0 offen offset:{16*q}\n    s_nop 1")
    def signal(self, flag):
        self(f"""    s_mov_b64 exec, 1
    ds_add_u32 v12, v14 offset:{flag}
    s_mov_b64 exec, -1""")
    def wait_flag(self, flag, target, code, sleep=1):
        l = self.L("wf"); d = self.L("wfd")
        sl = f"    s_sleep {sleep}\n" if sleep else ""
        self(f"""    s_mov_b32 s59, 0
{l}:
    ds_read_b32 v13, v12 offset:{flag}
    s_waitcnt lgkmcnt(0)
    v_readfirstlane_b32 s58, v13
    s_cmp_ge_u32 s58, {target}
    s_cbranch_scc1 {d}
{sl}    s_add_u32 s59, s59, 1
    s_cmp_lt_u32 s59, {self.timeout}
    s_cbranch_scc1 {l}
    s_mov_b32 s57, {code}
    s_branch L_abort
{d}:""")
    def masks(self):
        self("""    v_and_b32 v2, 1, v1
    v_lshlrev_b32 v2, 4, v2
    v_mov_b32 v3, 0xffff
    v_lshlrev_b32 v2, v2, v3
    v_bfe_u32 v3, v1, 1, 2            ; (l>>1)&3
    v_cmp_eq_u32 vcc, 0, v3
    v_cmp_eq_u32 s[64:65], 1, v3
    v_cmp_eq_u32 s[66:67], 2, v3
    v_cmp_eq_u32 s[68:69], 3, v3
    s_nop 1
    v_cndmask_b32 v8, 0, v2, vcc
    v_cndmask_b32 v9, 0, v2, s[64:65]
    v_cndmask_b32 v10, 0, v2, s[66:67]
    v_cndmask_b32 v11, 0, v2, s[68:69]""")
    def sel(self, A, P):
        for r in range(4): self(f"    v_and_b32 v{A+r}, v{P}, v{8+r}")
    def mfma(self, D, A, B, C=None):
        c = f"v[{D}:{D+3}]" if C is None else C
        self(f"    v_mfma_f32_16x16x32_bf16 v[{D}:{D+3}], v[{A}:{A+3}], v[{B}:{B+3}], {c}")
    def selgemv(self, nq, Preg, Breg, accs, waits=None, A0=32, A1=36):
        seq = [(q, pr) for q in range(nq) for pr in range(len(accs))]
        Ab = [A0, A1]; first = set()
        self.sel(Ab[0], Preg(seq[0][1], seq[0][0]))
        for n, (q, pr) in enumerate(seq):
            if n + 1 < len(seq):
                q2, pr2 = seq[n+1]
                self.sel(Ab[(n+1) & 1], Preg(pr2, q2))
            else:
                self("    s_nop 1")
            if pr == 0 and waits is not None:
                w = waits(q)
                if w: self("    " + w)
            C = None
            if pr not in first:
                first.add(pr); C = "0"
            self.mfma(accs[pr], Ab[n & 1], Breg(q), C)
    def reduce64(self, op, regs, tmps):
        n = len(regs)
        pad = "    s_nop 1" if n == 1 else ("    s_nop 0" if n == 2 else None)
        for s in (8, 4, 2, 1):
            if pad: self(pad)
            for v in regs:
                self(f"    v_{op}_dpp v{v}, v{v}, v{v} row_ror:{s} row_mask:0xf bank_mask:0xf")
        self.xrows(op, regs, tmps)
    def xrows(self, op, regs, tmps, which=("16", "32")):
        for perm in which:
            for v, t in zip(regs, tmps): self(f"    v_mov_b32 v{t}, v{v}")
            self("    s_nop 1")
            for v, t in zip(regs, tmps): self(f"    v_permlane{perm}_swap_b32 v{v}, v{t}")
            self("    s_nop 1")
            for v, t in zip(regs, tmps): self(f"    v_{op} v{v}, v{v}, v{t}")
    def get_epoch(self):
        self.wait_flag(F_ERDY, 1, 20)
        self(f"""    ds_read_b64 v[2:3], v12 offset:{L_E}
    s_waitcnt lgkmcnt(0)
    v_readfirstlane_b32 s60, v2
    v_readfirstlane_b32 s61, v3""")
    def poll_begin(self, name):
        l = self.L(name)
        self(f"    s_mov_b32 s59, 0\n{l}:")
        return l
    def poll_end(self, l, code, sleep=2):
        d = self.L("pd")
        sl = f"    s_sleep {sleep}\n" if sleep else ""
        self(f"""    s_cbranch_vccz {d}
{sl}    s_add_u32 s59, s59, 1
    s_cmp_lt_u32 s59, {self.timeout}
    s_cbranch_scc1 {l}
    s_mov_b32 s57, {code}
    s_branch L_abort
{d}:""")
    def tagcheck(self, pairs):
        self(f"    v_cmp_ne_u64 vcc, s[60:61], v[{pairs[0]}:{pairs[0]+1}]")
        for p in pairs[1:]:
            self(f"    v_cmp_ne_u64 s[56:57], s[60:61], v[{p}:{p+1}]\n    s_or_b64 vcc, vcc, s[56:57]")

    def build(self):
        a = self
        hdr = open("recurrent_scan__sliding_block_cached__glu_gated_reglu__decode.s.ref").read().split("\n")
        for l in hdr:
            if l.startswith("; Override") or l.startswith("; grid=") or l.startswith("; @launch"): continue
            if l.startswith(";"): a(l)
            else: break
        a(f"; @launch grid=(256,1,1) block=(512,1,1) lds={LDS_TOTAL}")
        a('.amdgcn_target "amdgcn-amd-amdhsa--gfx950"')
        a(f".text\n.globl {NAME}\n.p2align 8\n.type {NAME},@function\n{NAME}:")
        a(f"""    s_cmp_ge_u32 s2, 256
    s_cbranch_scc1 L_end
    s_load_dwordx16 s[4:19], s[0:1], 0
    s_load_dwordx8 s[20:27], s[0:1], 64""")
        if self.prefetch:
            a(f"""    s_getpc_b64 s[52:53]
L_pc:
    s_lshr_b32 s54, s2, 3
    s_and_b32 s54, s54, 3
    s_lshl_b32 s54, s54, 12
    v_lshlrev_b32 v2, 3, v0
    v_add_u32 v2, s54, v2
    global_load_dwordx2 v[236:237], v2, s[52:53]""")
        a.stamp(0)
        a(f"""    v_and_b32 v1, 63, v0
    v_lshrrev_b32 v2, 6, v0
    v_lshlrev_b32 v3, 2, v1
    v_readfirstlane_b32 s3, v2
    v_mov_b32 v12, {LB}
    v_add_u32 v3, v12, v3
    v_mov_b32 v4, 0
    ds_write_b32 v3, v4
    v_mov_b32 v14, 1
    s_and_b32 s28, s2, 7              ; kvh
    s_lshr_b32 s29, s2, 3             ; r
    s_and_b32 s30, s29, 7             ; c
    s_lshr_b32 s31, s29, 3            ; b
    s_lshl_b32 s32, s31, 3
    s_add_u32 s32, s32, s28           ; grp
    s_cmp_lt_u32 s2, 128
    s_mov_b32 s62, 3584
    s_cselect_b32 s62, 8192, s62
    s_cselect_b32 s53, 0, 128
    s_cmp_lt_u32 s2, 184
    s_cselect_b32 s53, s53, 184
    s_sub_u32 s53, s2, s53            ; u
    s_and_b32 s63, s53, 3             ; rb
    s_lshr_b32 s33, s53, 2            ; colblk
    s_waitcnt lgkmcnt(0)
    s_mov_b32 s36, s26
    s_mov_b32 s37, s27
    s_mov_b32 s38, {WS_SIZE}
    s_mov_b32 s39, 0x20000
    s_barrier
    s_cmp_lt_u32 s3, 4
    s_cbranch_scc1 L_cw""")
        self.loader()
        a("L_cw:")
        if "nocomp" in self.exp: a("    s_endpgm")
        self.stage1()
        self.w1()
        self.w2()
        self.scores()
        self.tail_compute()
        a("L_abort:")
        a(f"""    s_mov_b32 s40, s24
    s_mov_b32 s41, s25
    s_mov_b32 s42, 256
    s_mov_b32 s43, 0x20000
    s_mov_b64 exec, 1
    v_mov_b32 v2, s57
    v_mov_b32 v3, s2
    v_mov_b32 v4, 0
    buffer_store_dwordx2 v[2:3], v4, s[40:43], 0 offen
L_end:
    s_endpgm
L_codeend:
    .fill (16896 - (L_codeend - {NAME}))/4, 4, 0xbf810000
.section .rodata,"a"
.p2align 6
.amdhsa_kernel {NAME}
  .amdhsa_next_free_vgpr 240
  .amdhsa_next_free_sgpr 100
  .amdhsa_accum_offset 240
  .amdhsa_group_segment_fixed_size 0
  .amdhsa_kernarg_size 96
  .amdhsa_user_sgpr_count 2
  .amdhsa_user_sgpr_kernarg_segment_ptr 1
  .amdhsa_system_sgpr_workgroup_id_x 1
.end_amdhsa_kernel""")
        return self.a.text().replace("@NOPUB@", "0" if "nopub" in self.exp else "240")

    def loader(self):
        a = self; THR = self.thr
        a(f"""    s_setprio 3
    s_sub_u32 s35, s3, 4              ; w
    s_cmp_lt_u32 s2, 128
    s_cselect_b32 s40, s10, s16
    s_cselect_b32 s41, s11, s17
    s_mov_b32 s42, 1605632
    s_cselect_b32 s42, 3670016, s42
    s_cmp_lt_u32 s2, 184
    s_cselect_b32 s40, s40, s18
    s_cselect_b32 s41, s41, s19
    s_mov_b32 s43, 0x20000
    v_lshrrev_b32 v2, 4, v1           ; g
    v_and_b32 v3, 15, v1              ; j
    v_mul_lo_u32 v5, v2, s62
    v_lshl_add_u32 v5, v3, 4, v5
    s_mul_i32 s56, s63, 112
    s_lshl_b32 s52, s35, 2
    s_add_u32 s56, s56, s52
    s_mul_i32 s56, s56, s62
    s_lshl_b32 s52, s33, 8
    s_add_u32 s56, s56, s52
    s_cmp_ge_u32 s2, 240
    s_cselect_b32 s56, {OOB}, s56
    s_cselect_b32 s57, 0, s62
    s_lshl_b32 s57, s57, 4
    s_lshl_b32 s34, s29, 12           ; rotK
    s_lshl_b32 s52, s35, 10
    s_add_u32 s34, s34, s52           ; kpos0
    s_add_u32 s52, s34, {25*4096}""")
        for i in range(7):
            a(f"""    s_and_b32 s52, s52, 0x1ffff
    s_mov_b32 m0, s52
    s_add_u32 s52, s52, 4096
    buffer_load_dwordx4 v5, s[40:43], s56 offen nt lds
    s_add_u32 s56, s56, s57""")
        a(f"""    s_mov_b32 s44, s20
    s_mov_b32 s45, s21
    s_mov_b32 s46, 1605632
    s_mov_b32 s47, 0x20000
    v_mul_u32_u24 v6, 896, v2
    v_lshl_add_u32 v6, v3, 4, v6
    s_and_b32 s53, s2, 3              ; nb
    s_cmp_eq_u32 s53, 3
    s_cselect_b32 s54, 8, 16
    v_cmp_le_u32 vcc, s54, v3
    v_mov_b32 v7, {OOB}
    s_lshr_b32 s52, s2, 2             ; fb32
    s_mul_i32 s55, s52, 28672
    v_cndmask_b32 v6, v6, v7, vcc
    s_lshl_b32 s56, s53, 8
    s_add_u32 s55, s55, s56
    s_mul_i32 s56, s35, 3584
    s_add_u32 s55, s55, s56
    s_cmp_ge_u32 s2, 224
    s_cselect_b32 s55, {OOB}, s55
    s_lshl_b32 s56, s35, 10
    s_add_u32 s56, s56, {LB + L_OW}
    s_mov_b32 m0, s56
    s_add_u32 s56, s56, 4096
    buffer_load_dwordx4 v6, s[44:47], s55 offen nt lds
    s_mov_b32 m0, s56
    s_add_u32 s55, s55, 14336
    buffer_load_dwordx4 v6, s[44:47], s55 offen nt lds""")
        a(f"""    s_mov_b32 s40, s6
    s_mov_b32 s41, s7
    s_mov_b32 s42, 0x8000000
    s_mov_b32 s43, 0x20000
    s_lshl_b32 s33, s32, 22
    s_lshl_b32 s52, s30, 17
    s_add_u32 s33, s33, s52
    s_add_u32 s33, s33, 3145728
    v_lshrrev_b32 v3, 5, v1
    s_and_b32 s52, s35, 1
    s_lshl_b32 s52, s52, 1
    v_add_u32 v4, s52, v3
    v_and_b32 v5, 31, v1
    v_xor_b32 v5, v5, v4
    v_lshlrev_b32 v5, 4, v5
    v_lshl_add_u32 v2, v3, 9, v5
    s_mov_b32 s52, s34""")
        a.stamp(7)
        def kloop(n):
            if n <= 0: return
            l = a.L("k")
            a(f"""    s_mov_b32 s54, {n}
{l}:
    s_and_b32 s52, s52, 0x1ffff
    s_lshr_b32 s55, s52, 7
    s_and_b32 s55, s55, 0xc0
    v_xor_b32 v3, s55, v2
    s_mov_b32 m0, s52
    s_add_u32 s56, s52, s33
    s_waitcnt vmcnt({THR})
    buffer_load_dwordx4 v3, s[40:43], s56 offen nt lds
    s_add_u32 s52, s52, 4096
    s_sub_u32 s54, s54, 1
    s_cmp_lg_u32 s54, 0
    s_cbranch_scc1 {l}""")
        n0 = max(THR - 2, 1)
        kloop(n0)
        a(f"    s_waitcnt vmcnt({n0 + 2})")
        a.signal(F_T1LAND)
        kloop(self.khalf - n0)
        a.signal(F_KHALF)
        kloop(25 - self.khalf)
        if "nocomp" not in self.exp: a.wait_flag(F_T1DONE, 4, 30)
        kloop(7)
        a.stamp(1)
        a(f"""    s_mov_b32 s44, s8
    s_mov_b32 s45, s9
    s_mov_b32 s46, 0x8000000
    s_mov_b32 s47, 0x20000
    v_lshrrev_b32 v3, 4, v1
    v_and_b32 v4, 15, v1
    v_lshlrev_b32 v4, 4, v4
    v_lshl_add_u32 v6, v3, 9, v4      ; V voffset
    s_and_b32 s52, s29, 15
    s_lshl_b32 s52, s52, 13
    s_lshl_b32 s53, s35, 11
    s_add_u32 s52, s52, s53""")
        VB = 64; m = 0
        for n in range(16):
            a("    s_and_b32 s52, s52, 0x1ffff\n    s_add_u32 s56, s52, s33")
            for hf in range(2):
                a(f"    s_waitcnt vmcnt({THR})")
                if m == THR:
                    a.signal(F_KLAND); a.stamp(2)
                r = VB + 8*n + 4*hf
                a(f"    buffer_load_dwordx4 v[{r}:{r+3}], v6, s[44:47], s56 offen offset:{256*hf} nt")
                m += 1
            if n < 15: a("    s_add_u32 s52, s52, 8192")
        a.stamp(3)
        if "nocomp" in self.exp or "vonly" in self.exp:
            a("    s_waitcnt vmcnt(0)"); a.stamp(4); a.stamp_dump(); a("    s_endpgm")
        a.masks()
        a(f"""    v_bfe_u32 v2, v1, 3, 1
    v_lshlrev_b32 v2, 8, v2
    v_lshrrev_b32 v3, 4, v1
    v_lshl_add_u32 v2, v3, 6, v2
    s_lshl_b32 s52, s35, 9
    s_add_u32 s52, s52, {LB + L_P}
    v_add_u32 v2, s52, v2             ; P address
    v_lshlrev_b32 v48, 4, v1
    s_lshl_b32 s52, s35, 11
    s_add_u32 s52, s52, {LB + L_OW}
    v_add_u32 v49, s52, v48
    v_add_u32 v48, {LB + L_OW}, v48
    v_bfe_u32 v5, v1, 2, 2
    v_mul_u32_u24 v5, {8*REC}, v5
    v_lshrrev_b32 v6, 5, v1
    v_lshl_add_u32 v5, v6, 8, v5
    v_and_b32 v6, 3, v1
    v_lshl_add_u32 v5, v6, 6, v5
    v_bfe_u32 v6, v1, 4, 1
    v_lshl_add_u32 v51, v6, 5, v5
    s_mul_i32 s44, s32, {64*REC}
    s_mul_i32 s45, s30, {REC}
    s_add_u32 s44, s44, s45
    s_add_u32 s44, s44, {W_P3}
    s_add_u32 s45, s44, {32*REC}
    s_barrier                         ; B1""")
        a.stamp(4)
        for i in range(4):
            a(f"    ds_read_b128 v[{16+4*i}:{19+4*i}], v2 offset:{16*i}")
        a(f"    ds_read_b64 v[4:5], v12 offset:{L_E}")
        a("    s_waitcnt lgkmcnt(0)")
        for q in range(4):
            a(f"    v_mov_b32 v{198+4*q}, v4\n    v_mov_b32 v{199+4*q}, v5")
        a("    v_readfirstlane_b32 s60, v4\n    v_readfirstlane_b32 s61, v5")
        Ab = [32, 36]
        a.sel(Ab[0], 16)
        for n in range(16):
            if n < 15: a.sel(Ab[(n+1) & 1], 16 + n + 1)
            a(f"    s_waitcnt vmcnt({30 - 2*n})")
            c = "0" if n == 0 else None
            a.mfma(40, Ab[n & 1], VB + 8*n, c)
            a.mfma(44, Ab[n & 1], VB + 8*n + 4, c)
        a.stamp(5)
        a(f"""    s_nop 7
    ds_write_b128 v49, v[40:43]
    ds_write_b128 v49, v[44:47] offset:1024
    s_waitcnt lgkmcnt(0)
    s_mov_b64 exec, 1
    ds_add_rtn_u32 v13, v12, v14 offset:{F_OW}
    s_mov_b64 exec, -1
    s_waitcnt lgkmcnt(0)
    v_readfirstlane_b32 s58, v13
    s_cmp_eq_u32 s58, 3
    s_cbranch_scc0 L_vfin""")
        for w in range(4):
            for hf in range(2):
                r = 64 + 8*w + 4*hf
                a(f"    ds_read_b128 v[{r}:{r+3}], v48 offset:{2048*w + 1024*hf}")
        a("    s_waitcnt lgkmcnt(0)")
        for i in range(8):
            a(f"    v_add_f32 v{64+i}, v{64+i}, v{72+i}\n    v_add_f32 v{80+i}, v{80+i}, v{88+i}")
        for i in range(8):
            dst = 196 + 4*(i >> 1) + (i & 1)
            a(f"    v_add_f32 v{dst}, v{64+i}, v{80+i}")
        a(f"""    buffer_store_dwordx4 v[196:199], v51, s[36:39], s44 offen sc1
    buffer_store_dwordx4 v[200:203], v51, s[36:39], s44 offen offset:16 sc1
    buffer_store_dwordx4 v[204:207], v51, s[36:39], s45 offen sc1
    buffer_store_dwordx4 v[208:211], v51, s[36:39], s45 offen offset:16 sc1""")
        a.signal(F_PUB)
        a.stamp(6)
        a("L_vfin:")
        if "nofin" in self.exp: a("    s_branch L_vend")
        a(f"""    s_cmp_eq_u32 s3, 7
    s_cbranch_scc0 L_vend
    s_cmp_ge_u32 s2, 112
    s_cbranch_scc1 L_vend
    s_mul_i32 s62, s2, 2341
    s_lshr_b32 s62, s62, 16           ; b_f
    s_mul_i32 s63, s62, 28
    s_sub_u32 s63, s2, s63            ; nbk
    s_lshr_b32 s52, s63, 3
    s_lshl_b32 s52, s52, 7
    s_add_u32 s52, s52, {W_F2}
    v_lshlrev_b32 v4, 9, v1           ; k*4*128
    s_mul_i32 s53, s62, 448
    s_lshl_b32 s54, s63, 4
    s_add_u32 s53, s53, s54           ; b_f*448 + 16nbk
    s_mov_b32 s40, s4
    s_mov_b32 s41, s5
    s_mov_b32 s42, 3584
    s_mov_b32 s43, 0x20000
    s_lshl_b32 s48, s53, 1
    v_and_b32 v3, 7, v1
    v_lshlrev_b32 v2, 2, v3
    buffer_load_dword v30, v2, s[40:43], s48 offen      ; x: 2 bf16
    v_lshrrev_b32 v5, 3, v1
    v_mul_u32_u24 v6, 7168, v5
    v_lshl_add_u32 v6, v3, 3, v6      ; P2 voffset
    v_mul_u32_u24 v7, 3584, v5
    v_lshl_add_u32 v7, v3, 4, v7      ; P4 voffset
    s_mov_b32 exec_hi, 0x00ffffff""")
        l = a.poll_begin("pf")
        a(f"""    buffer_load_dwordx2 v[2:3], v4, s[36:39], s52 offen sc1
    s_waitcnt vmcnt(0)
    v_cmp_ne_u64 vcc, s[60:61], v[2:3]""")
        a.poll_end(l, 8, sleep=2)
        a(f"""    s_mov_b32 exec_hi, -1
    s_lshl_b32 s53, s53, 2
    s_add_u32 s53, s53, {W_P2}""")
        for k in range(7):
            a(f"    buffer_load_dwordx2 v[{16+2*k}:{17+2*k}], v6, s[36:39], s53 offen sc1")
            if k < 6: a(f"    s_add_u32 s53, s53, {8*7168}")
        a(f"""    s_mul_i32 s52, s62, {64*3584}
    s_lshl_b32 s53, s63, 7
    s_add_u32 s52, s52, s53
    s_add_u32 s52, s52, {W_P4}
    s_mov_b32 s40, s22
    s_mov_b32 s41, s23
    s_waitcnt vmcnt(0)
    v_add_f32 v16, v16, v18
    v_add_f32 v17, v17, v19
    v_add_f32 v20, v20, v22
    v_add_f32 v21, v21, v23
    v_add_f32 v24, v24, v26
    v_add_f32 v25, v25, v27
    v_add_f32 v16, v16, v20
    v_add_f32 v17, v17, v21
    v_add_f32 v24, v24, v28
    v_add_f32 v25, v25, v29
    v_add_f32 v16, v16, v24
    v_add_f32 v17, v17, v25""")
        self.red8(16, 17, 18, 19)
        a(f"""    v_cvt_pk_bf16_f32 v20, v16, v17
    v_lshlrev_b32 v16, 16, v20
    v_and_b32 v17, 0xffff0000, v20
    v_mul_f32 v20, {fbits(-LOG2E)}, v16
    v_mul_f32 v21, {fbits(-LOG2E)}, v17
    v_exp_f32 v20, v20
    v_exp_f32 v21, v21
    s_nop 0
    v_add_f32 v20, 1.0, v20
    v_add_f32 v21, 1.0, v21
    v_rcp_f32 v20, v20
    v_rcp_f32 v21, v21
    s_nop 0
    v_mul_f32 v16, v16, v20
    v_mul_f32 v17, v17, v21
    v_cvt_pk_bf16_f32 v20, v16, v17
    v_lshlrev_b32 v32, 16, v20
    v_and_b32 v33, 0xffff0000, v20      ; g
    v_lshlrev_b32 v34, 16, v30
    v_and_b32 v35, 0xffff0000, v30      ; x""")
        a.stamp(8)
        l = a.poll_begin("pz")
        a("    s_mov_b32 s53, s52")
        for k in range(8):
            a(f"    buffer_load_dwordx4 v[{64+4*k}:{67+4*k}], v7, s[36:39], s53 offen sc1")
            if k < 7: a(f"    s_add_u32 s53, s53, {8*3584}")
        a("    s_waitcnt vmcnt(0)")
        a.tagcheck([66 + 4*k for k in range(8)])
        a.poll_end(l, 13, sleep=0)
        a.stamp(9)
        for k in range(0, 8, 2):
            a(f"    v_add_f32 v{64+4*k}, v{64+4*k}, v{68+4*k}\n    v_add_f32 v{65+4*k}, v{65+4*k}, v{69+4*k}")
        a("""    v_add_f32 v64, v64, v72
    v_add_f32 v65, v65, v73
    v_add_f32 v80, v80, v88
    v_add_f32 v81, v81, v89
    v_add_f32 v16, v64, v80
    v_add_f32 v17, v65, v81""")
        self.red8(16, 17, 18, 19)
        a(f"""    v_cvt_pk_bf16_f32 v20, v16, v17
    v_lshlrev_b32 v16, 16, v20
    v_and_b32 v17, 0xffff0000, v20
    v_mul_f32 v16, v16, v32
    v_mul_f32 v17, v17, v33
    v_cvt_pk_bf16_f32 v20, v16, v17
    v_lshlrev_b32 v16, 16, v20
    v_and_b32 v17, 0xffff0000, v20
    v_add_f32 v16, v16, v34
    v_add_f32 v17, v17, v35
    v_cvt_pk_bf16_f32 v20, v16, v17
    v_lshlrev_b32 v2, 2, v1
    s_mov_b64 exec, 0xff
    buffer_store_dword v20, v2, s[40:43], s48 offen
    s_cmp_eq_u32 s2, 111
    s_cbranch_scc0 L_vend
    s_mov_b64 exec, 1
    v_mov_b32 v2, s60
    v_mov_b32 v3, s61
    v_mov_b32 v4, 0
    buffer_store_dwordx2 v[2:3], v4, s[36:39], 0 offen sc1""")
        a("L_vend:\n    s_mov_b64 exec, -1")
        a.stamp(10)
        a.stamp_dump()
        a("    s_endpgm")

    def stage1(self):
        a = self
        a(f"""    s_mov_b32 s40, s4
    s_mov_b32 s41, s5
    s_mov_b32 s42, 3584
    s_mov_b32 s43, 0x20000
    v_lshlrev_b32 v4, 4, v1
    s_mul_i32 s52, s3, 896
    v_add_u32 v4, s52, v4
    v_mov_b32 v5, {OOB}
    v_cmp_le_u32 vcc, 56, v1
    s_cmp_eq_u32 s3, 0
    s_cbranch_scc0 L_noep
    s_load_dwordx2 s[60:61], s[26:27], {W_EPOCH}
L_noep:
    v_cndmask_b32 v4, v4, v5, vcc
    buffer_load_dwordx4 v[16:19], v4, s[40:43], 0 offen""")
        a.masks()
        a(f"""    s_mul_i32 s52, s3, 1792
    s_add_u32 s52, s52, {LB + L_XN}
    v_lshlrev_b32 v6, 3, v1
    v_add_u32 v6, s52, v6
    v_bfe_u32 v2, v1, 3, 1
    v_lshlrev_b32 v2, 2, v2
    v_lshrrev_b32 v3, 4, v1
    v_add_u32 v2, v2, v3
    v_mul_u32_u24 v2, 448, v2
    s_mul_i32 s52, s63, 112
    s_lshl_b32 s53, s3, 2
    s_add_u32 s52, s52, s53
    s_add_u32 s52, s52, {LB + L_XN}
    v_add_u32 v7, s52, v2
    s_cmp_eq_u32 s3, 0
    s_cbranch_scc0 L_noep2
    s_waitcnt lgkmcnt(0)
    s_add_u32 s60, s60, 1
    s_addc_u32 s61, s61, 0
    v_mov_b32 v2, s60
    v_mov_b32 v3, s61
    ds_write_b64 v12, v[2:3] offset:{L_E}
    s_waitcnt lgkmcnt(0)""")
        a.signal(F_ERDY)
        a("L_noep2:")
        a(f"""    s_lshl_b32 s52, s29, 12
    s_lshl_b32 s53, s3, 10
    s_add_u32 s52, s52, s53
    s_add_u32 s52, s52, {25*4096}
    v_lshlrev_b32 v2, 4, v1""")
        for i in range(7):
            a(f"    s_and_b32 s52, s52, 0x1ffff\n    v_add_u32 v{96+i}, s52, v2\n    s_add_u32 s52, s52, 4096")
        a(f"""    s_lshl_b32 s52, s3, 11
    s_add_u32 s52, s52, {LB + L_S1}
    v_add_u32 v103, s52, v2""")
        a("    s_waitcnt vmcnt(0)")
        a.stamp(1)
        for d in range(4):
            a(f"    v_lshlrev_b32 v{20+2*d}, 16, v{16+d}\n    v_and_b32 v{21+2*d}, 0xffff0000, v{16+d}")
        a("""    v_add_f32 v2, v20, v21
    v_add_f32 v3, v22, v23
    v_add_f32 v4, v24, v25
    v_add_f32 v5, v26, v27
    v_add_f32 v2, v2, v3
    v_add_f32 v4, v4, v5
    v_add_f32 v2, v2, v4""")
        a.reduce64("add_f32", [2], [3])
        a(f"""    v_mul_f32 v2, {fbits(1.0/448)}, v2      ; mean (f32)
    v_mov_b32 v4, 0
    v_mov_b32 v5, 0
    s_mov_b32 exec_hi, 0x00ffffff""")
        for i in range(8):
            a(f"    v_sub_f32 v{28+i}, v{20+i}, v2")
        for i in range(0, 8, 2):
            a(f"    v_fmac_f32 v4, v{28+i}, v{28+i}\n    v_fmac_f32 v5, v{29+i}, v{29+i}")
        a("    s_mov_b32 exec_hi, -1\n    v_add_f32 v4, v4, v5")
        a.reduce64("add_f32", [4], [3])
        a(f"""    v_mul_f32 v4, {fbits(1.0/448)}, v4      ; var
    v_cvt_pk_bf16_f32 v3, v2, v4
    v_lshlrev_b32 v2, 16, v3          ; m_bf
    v_and_b32 v4, 0xffff0000, v3      ; v_bf
    v_add_f32 v4, {fbits(1e-5)}, v4
    v_cvt_pk_bf16_f32 v4, v4, v4
    v_and_b32 v4, 0xffff0000, v4
    v_sqrt_f32 v4, v4""")
        for i in range(8):
            a(f"    v_sub_f32 v{20+i}, v{20+i}, v2")
        a(f"""    v_cvt_pk_bf16_f32 v4, v4, v4
    v_and_b32 v4, 0xffff0000, v4      ; s
    v_rcp_f32 v5, v4""")
        for d in range(4):
            a(f"    v_cvt_pk_bf16_f32 v{16+d}, v{20+2*d}, v{21+2*d}")
        for d in range(4):
            a(f"    v_lshlrev_b32 v{20+2*d}, 16, v{16+d}\n    v_and_b32 v{21+2*d}, 0xffff0000, v{16+d}")
        for i in range(8): a(f"    v_mul_f32 v{28+i}, v{20+i}, v5")
        for i in range(8): a(f"    v_fma_f32 v{20+i}, -v{28+i}, v4, v{20+i}")
        for i in range(8): a(f"    v_fmac_f32 v{28+i}, v{20+i}, v5")
        for g in range(4):
            a(f"    v_cvt_pk_bf16_f32 v{40+2*g}, v{28+g}, v{28+g}\n    v_cvt_pk_bf16_f32 v{41+2*g}, v{32+g}, v{32+g}")
        a("    s_mov_b32 exec_hi, 0x00ffffff")
        for g in range(4):
            a(f"    ds_write_b64 v6, v[{40+2*g}:{41+2*g}] offset:{448*g}")
        a("    s_mov_b32 exec_hi, -1\n    s_waitcnt lgkmcnt(0)")
        a.signal(F_XN)
        a.stamp(2)
        a.wait_flag(F_XN, 4, 21, sleep=0)
        for pr in range(2):
            for i in range(7):
                a(f"    ds_read_b32 v{48+7*pr+i}, v7 offset:{pr*3584 + 16*i}")
        a.wait_flag(F_T1LAND, 4, 22, sleep=0)
        a.stamp(3)
        for i in range(7):
            a(f"    ds_read_b128 v[{64+4*i}:{67+4*i}], v{96+i}")
        a("    s_waitcnt lgkmcnt(0)")
        a.signal(F_T1DONE)
        a.selgemv(7, lambda pr, q: 48 + 7*pr + q, lambda q: 64 + 4*q, [40, 44])
        a(f"""    s_nop 7
    ds_write_b128 v103, v[40:43]
    ds_write_b128 v103, v[44:47] offset:1024
    s_waitcnt lgkmcnt(0)""")
        a.signal(F_S1)
        a.stamp(4)
        a(f"""    s_cmp_eq_u32 s3, 1
    s_cbranch_scc1 L_w1
    s_cmp_eq_u32 s3, 2
    s_cbranch_scc1 L_w2
    s_cmp_eq_u32 s3, 3
    s_cbranch_scc1 L_scores
    s_cmp_ge_u32 s2, @NOPUB@
    s_cbranch_scc1 L_scores
    v_lshlrev_b32 v2, 4, v1
    v_add_u32 v2, {LB + L_S1}, v2
    v_lshrrev_b32 v4, 5, v1
    v_lshlrev_b32 v4, 9, v4
    v_and_b32 v3, 15, v1
    v_lshl_add_u32 v4, v3, 5, v4
    v_bfe_u32 v3, v1, 4, 1
    v_lshl_add_u32 v4, v3, 4, v4
    s_lshl_b32 s54, s2, 11
    s_add_u32 s54, s54, {W_P1}""")
        a.wait_flag(F_S1, 4, 23, sleep=0)
        for w in range(4):
            for pr in range(2):
                r = 64 + 8*w + 4*pr
                a(f"    ds_read_b128 v[{r}:{r+3}], v2 offset:{2048*w + 1024*pr}")
        a("    s_waitcnt lgkmcnt(0)")
        for i in range(8):
            a(f"    v_add_f32 v{64+i}, v{64+i}, v{72+i}\n    v_add_f32 v{80+i}, v{80+i}, v{88+i}")
        for i in range(8):
            a(f"    v_add_f32 v{64+i}, v{64+i}, v{80+i}")
        a(f"""    buffer_store_dwordx4 v[64:67], v4, s[36:39], s54 offen sc1
    buffer_store_dwordx4 v[68:71], v4, s[36:39], s54 offen offset:1024 sc1
    s_lshl_b32 s54, s2, 7
    s_add_u32 s54, s54, {W_F1}
    v_mov_b32 v2, s60
    v_mov_b32 v3, s61
    v_mov_b32 v4, 0
    s_waitcnt vmcnt(0)
    s_mov_b64 exec, 1
    buffer_store_dwordx2 v[2:3], v4, s[36:39], s54 offen sc1
    s_mov_b64 exec, -1""")
        a.stamp(5)
        a("    s_branch L_scores")

    def w1(self):
        a = self
        a("; ---------------- W1\nL_w1:")
        if "now1" in self.exp: a("    s_branch L_scores")
        a.get_epoch()
        a(f"""    v_lshlrev_b32 v4, 7, v1
    s_lshl_b32 s54, s28, 11
    s_add_u32 s54, s54, {W_F1}
    v_lshrrev_b32 v5, 4, v1
    v_lshlrev_b32 v5, 13, v5
    v_and_b32 v3, 15, v1
    v_lshl_add_u32 v5, v3, 5, v5
    s_lshl_b32 s52, s28, 15
    s_lshl_b32 s53, s31, 9
    s_add_u32 s52, s52, s53
    s_add_u32 s52, s52, {W_P1}
    s_add_u32 s53, s52, 4096
    v_lshlrev_b32 v6, 4, v1
    v_add_u32 v6, {LB + L_Q}, v6""")
        a.wait_flag(F_KHALF, 4, 40, sleep=4)
        a("    s_mov_b64 exec, 0xffff")
        l = a.poll_begin("pq")
        a(f"""    buffer_load_dwordx2 v[2:3], v4, s[36:39], s54 offen sc1
    s_waitcnt vmcnt(0)
    v_cmp_ne_u64 vcc, s[60:61], v[2:3]""")
        a.poll_end(l, 2, sleep=8)
        a("    s_mov_b64 exec, -1")
        a.stamp(5)
        for rb in range(4):
            so = "s52" if rb < 2 else "s53"
            for hf in range(2):
                r = 16 + 8*rb + 4*hf
                a(f"    buffer_load_dwordx4 v[{r}:{r+3}], v5, s[36:39], {so} offen offset:{(rb&1)*2048 + hf*16} sc1")
        a("    s_waitcnt vmcnt(0)")
        for i in range(8): a(f"    v_add_f32 v{16+i}, v{16+i}, v{24+i}\n    v_add_f32 v{32+i}, v{32+i}, v{40+i}")
        for i in range(8): a(f"    v_add_f32 v{16+i}, v{16+i}, v{32+i}")
        for i in range(4): a(f"    v_cvt_pk_bf16_f32 v{24+i}, v{16+2*i}, v{17+2*i}")
        a(f"""    ds_write_b128 v6, v[24:27]
    s_waitcnt lgkmcnt(0)""")
        a.signal(F_QRDY)
        a("    s_branch L_scores")

    def w2(self):
        a = self
        a("; ---------------- W2\nL_w2:")
        if "now2" in self.exp: a("    s_branch L_scores")
        a(f"""    s_cmp_ge_u32 s2, 224
    s_cbranch_scc1 L_scores""")
        a.get_epoch()
        a(f"""    s_lshr_b32 s52, s2, 2             ; fb32
    s_and_b32 s53, s2, 3              ; nb
    v_lshrrev_b32 v2, 2, v1
    v_mul_u32_u24 v2, 56, v2
    v_and_b32 v3, 3, v1
    v_add_u32 v2, v2, v3
    v_lshlrev_b32 v4, 7, v2
    s_lshr_b32 s54, s52, 2            ; cbk
    s_lshl_b32 s55, s54, 2
    s_add_u32 s55, s55, 128
    s_lshl_b32 s48, s55, 7
    s_add_u32 s48, s48, {W_F1}
    v_lshrrev_b32 v5, 4, v1
    v_lshlrev_b32 v5, 9, v5
    v_and_b32 v3, 15, v1
    v_lshl_add_u32 v5, v3, 3, v5
    s_lshl_b32 s55, s55, 11
    s_and_b32 s56, s52, 3
    s_lshl_b32 s56, s56, 7
    s_add_u32 s55, s55, s56
    s_add_u32 s44, s55, {W_P1}
    s_add_u32 s45, s44, 4096
    s_add_u32 s46, s44, {56*2048}
    s_add_u32 s47, s46, 4096
    v_lshrrev_b32 v6, 4, v1
    v_lshlrev_b32 v6, 7, v6
    v_and_b32 v3, 1, v1
    v_lshl_add_u32 v6, v3, 6, v6
    v_bfe_u32 v3, v1, 1, 3
    v_lshl_add_u32 v6, v3, 2, v6
    v_add_u32 v6, {LB + L_H}, v6
    v_bfe_u32 v7, v1, 3, 1
    v_lshlrev_b32 v7, 7, v7
    v_lshrrev_b32 v3, 4, v1
    v_lshl_add_u32 v7, v3, 5, v7
    v_add_u32 v7, {LB + L_H}, v7
    v_lshlrev_b32 v15, 4, v1
    v_add_u32 v15, {LB + L_OW}, v15
    ; P2 address
    v_lshrrev_b32 v48, 5, v1
    v_mul_u32_u24 v48, 1792, v48
    v_and_b32 v3, 15, v1
    v_lshl_add_u32 v48, v3, 5, v48
    v_bfe_u32 v49, v1, 4, 1
    v_lshl_add_u32 v48, v49, 4, v48
    s_cmp_eq_u32 s53, 3
    s_cselect_b32 s54, 8, 16
    v_cmp_le_u32 vcc, s54, v3
    v_mov_b32 v49, {OOB}
    s_mul_i32 s49, s52, 7168
    s_lshl_b32 s55, s53, 9
    s_add_u32 s49, s49, s55
    s_add_u32 s49, s49, {W_P2}
    s_add_u32 s50, s49, 3584
    v_cndmask_b32 v48, v48, v49, vcc""")
        a.wait_flag(F_KHALF, 4, 41, sleep=4)
        for q in range(8):
            a(f"    ds_read_b128 v[{64+4*q}:{67+4*q}], v15 offset:{1024*q}")
        a("    s_mov_b64 exec, 0xff")
        l = a.poll_begin("pm")
        a(f"""    buffer_load_dwordx2 v[2:3], v4, s[36:39], s48 offen sc1
    s_waitcnt vmcnt(0)
    v_cmp_ne_u64 vcc, s[60:61], v[2:3]""")
        a.poll_end(l, 3, sleep=8)
        a("    s_mov_b64 exec, -1")
        a.stamp(5)
        for m in range(2):
            for rb in range(4):
                so = ["s44", "s45", "s46", "s47"][2*m + (rb >> 1)]
                r = 16 + 8*m + 2*rb
                a(f"    buffer_load_dwordx2 v[{r}:{r+1}], v5, s[36:39], {so} offen offset:{(rb&1)*2048} sc1")
        a("    s_waitcnt vmcnt(0)")
        for m in range(2):
            b0 = 16 + 8*m
            for e in range(2):
                a(f"    v_add_f32 v{b0+e}, v{b0+e}, v{b0+2+e}\n    v_add_f32 v{b0+4+e}, v{b0+4+e}, v{b0+6+e}")
            for e in range(2):
                a(f"    v_add_f32 v{b0+e}, v{b0+e}, v{b0+4+e}")
        a(f"""    v_cvt_pk_bf16_f32 v2, v16, v17
    v_cvt_pk_bf16_f32 v3, v24, v25
    v_lshlrev_b32 v16, 16, v2
    v_and_b32 v17, 0xffff0000, v2
    v_lshlrev_b32 v24, 16, v3
    v_and_b32 v25, 0xffff0000, v3
    v_cmp_lt_f32 vcc, 0, v16
    v_cmp_lt_f32 s[54:55], 0, v17
    s_nop 1
    v_cndmask_b32 v2, 0, 1.0, vcc
    v_cndmask_b32 v3, 0, 1.0, s[54:55]
    v_mul_f32 v16, v16, v2
    v_mul_f32 v17, v17, v3
    v_mul_f32 v16, v16, v24
    v_mul_f32 v17, v17, v25
    v_cvt_pk_bf16_f32 v16, v16, v16
    v_cvt_pk_bf16_f32 v17, v17, v17
    ds_write_b32 v6, v16
    ds_write_b32 v6, v17 offset:32
    s_waitcnt lgkmcnt(0)
    ds_read_b128 v[16:19], v7
    ds_read_b128 v[20:23], v7 offset:16
    ds_read_b128 v[24:27], v7 offset:256
    ds_read_b128 v[28:31], v7 offset:272
    s_waitcnt lgkmcnt(0)""")
        a.selgemv(8, lambda pr, q: 16 + 8*pr + q, lambda q: 64 + 4*q, [40, 44])
        a(f"""    s_nop 7
    buffer_store_dwordx4 v[40:43], v48, s[36:39], s49 offen sc1
    buffer_store_dwordx4 v[44:47], v48, s[36:39], s50 offen sc1""")
        a("    s_branch L_scores")

    def scores(self):
        a = self
        a("; ---------------- scores\nL_scores:")
        if "vonly" in self.exp:
            a.stamp_dump(); a("    s_endpgm")
        a(f"""    v_and_b32 v2, 1, v1
    v_lshlrev_b32 v2, 9, v2
    v_lshrrev_b32 v3, 4, v1
    v_lshl_add_u32 v2, v3, 4, v2
    v_add_u32 v24, {LB + L_Q}, v2
    v_bfe_u32 v2, v1, 2, 2            ; jh
    v_and_b32 v3, 3, v1
    v_lshl_add_u32 v4, v2, 4, v3
    s_lshl_b32 s52, s3, 2
    v_add_u32 v4, s52, v4
    v_lshlrev_b32 v4, 9, v4
    v_lshrrev_b32 v5, 4, v1
    v_xor_b32 v5, v5, v3
    v_lshl_add_u32 v4, v5, 4, v4""")
        for m in range(4):
            a(f"    v_xor_b32 v5, {m}, v2\n    v_lshl_add_u32 v{16+m}, v5, 6, v4\n    v_add_u32 v{20+m}, 0x10000, v{16+m}")
        a(f"""    v_lshrrev_b32 v6, 2, v1
    s_and_b32 s52, s29, 15
    v_subrev_u32 v6, s52, v6
    v_and_b32 v6, 15, v6
    v_lshlrev_b32 v6, 2, v6
    v_and_b32 v7, 3, v1
    v_lshl_add_u32 v6, v7, 6, v6
    s_lshl_b32 s52, s3, 9
    s_add_u32 s52, s52, {LB + L_P}
    v_add_u32 v25, s52, v6
    s_lshl_b32 s52, s3, 3
    v_add_u32 v26, s52, v12
    s_mov_b32 s48, 0xffff0000
    s_mov_b32 s49, 0
    s_mov_b32 s50, 0
    s_mov_b32 s51, 0xffff
    s_mov_b32 s54, 0
    s_mov_b32 s55, 0xffff0000""")
        a.wait_flag(F_QRDY, 1, 4)
        a.stamp(6)
        for ks in range(8):
            a(f"    ds_read_b128 v[{64+4*ks}:{67+4*ks}], v24 offset:{64*ks}")
        a.wait_flag(F_KLAND, 4, 5)
        a.stamp(7)
        def kread(t, buf):
            for ks in range(8):
                m = ks & 3; hi = ks >> 2
                base = (16 if t < 2 else 20) + m
                off = (t & 1)*32768 + hi*256
                a(f"    ds_read_b128 v[{buf+4*ks}:{buf+4*ks+3}], v{base} offset:{off}")
        bufs = [96, 128]
        kread(0, bufs[0])
        for t in range(4):
            if t < 3:
                kread(t+1, bufs[(t+1) & 1])
                a("    s_waitcnt lgkmcnt(8)")
            else:
                a("    s_waitcnt lgkmcnt(0)")
            for ks in range(8):
                a.mfma(40 + 4*t, 64 + 4*ks, bufs[t & 1] + 4*ks, "0" if ks == 0 else None)
        a(f"""    s_nop 7
    v_cndmask_b32 v2, v40, v44, s[48:49]
    v_cndmask_b32 v3, v41, v45, s[48:49]
    v_cndmask_b32 v2, v2, v48, s[50:51]
    v_cndmask_b32 v3, v3, v49, s[50:51]
    v_cndmask_b32 v2, v2, v52, s[54:55]
    v_cndmask_b32 v3, v3, v53, s[54:55]
    v_cvt_pk_bf16_f32 v4, v2, v3
    v_lshlrev_b32 v2, 16, v4
    v_and_b32 v3, 0xffff0000, v4""")
        if self.dump:
            a(f"""    v_lshrrev_b32 v4, 2, v1
    v_lshlrev_b32 v4, 4, v4
    v_and_b32 v5, 3, v1
    v_add_u32 v4, v4, v5
    s_lshl_b32 s52, s3, 2
    v_add_u32 v4, s52, v4
    v_lshlrev_b32 v4, 2, v4
    s_lshl_b32 s52, s2, 11
    s_add_u32 s52, s52, {W_DUMP}
    buffer_store_dword v2, v4, s[36:39], s52 offen
    buffer_store_dword v3, v4, s[36:39], s52 offen offset:1024""")
        a("    v_mov_b32 v4, v2\n    v_mov_b32 v5, v3")
        a.reduce64("max_f32", [4, 5], [6, 7])
        a(f"""    s_mov_b64 exec, 1
    ds_write_b64 v26, v[4:5] offset:{L_SMMAX}
    s_waitcnt lgkmcnt(0)
    ds_add_u32 v12, v14 offset:{F_MAX}
    s_mov_b64 exec, -1""")
        a.wait_flag(F_MAX, 4, 6, sleep=0)
        a(f"""    ds_read_b128 v[16:19], v12 offset:{L_SMMAX}
    ds_read_b128 v[20:23], v12 offset:{L_SMMAX+16}
    s_waitcnt lgkmcnt(0)
    v_max3_f32 v4, v16, v18, v20
    v_max3_f32 v5, v17, v19, v21
    v_max_f32 v4, v4, v22             ; M0
    v_max_f32 v5, v5, v23             ; M1
    v_sub_f32 v2, v2, v4
    v_sub_f32 v3, v3, v5
    v_mul_f32 v2, {fbits(CEXP)}, v2
    v_mul_f32 v3, {fbits(CEXP)}, v3
    v_exp_f32 v2, v2
    v_exp_f32 v3, v3
    s_nop 0
    v_cvt_pk_bf16_f32 v16, v2, v2
    v_cvt_pk_bf16_f32 v17, v3, v3
    ds_write_b32 v25, v16
    ds_write_b32 v25, v17 offset:256""")
        a.reduce64("add_f32", [2, 3], [6, 7])
        a(f"""    s_mov_b64 exec, 1
    ds_write_b64 v26, v[2:3] offset:{L_SMSUM}
    s_waitcnt lgkmcnt(0)
    ds_add_rtn_u32 v13, v12, v14 offset:{F_PSUM}
    s_waitcnt lgkmcnt(0)
    s_mov_b64 exec, -1
    v_readfirstlane_b32 s58, v13
    s_cmp_eq_u32 s58, 3
    s_cbranch_scc0 L_noml""")
        a.get_epoch()
        a(f"""    ds_read_b128 v[16:19], v12 offset:{L_SMSUM}
    ds_read_b128 v[20:23], v12 offset:{L_SMSUM+16}
    v_and_b32 v6, 1, v1
    v_cmp_eq_u32 vcc, 1, v6
    v_lshrrev_b32 v7, 1, v1
    v_mul_u32_u24 v7, {8*REC}, v7
    v_lshl_add_u32 v6, v6, 4, v7
    s_mul_i32 s52, s32, {64*REC}
    s_mul_i32 s53, s30, {REC}
    s_add_u32 s52, s52, s53
    s_add_u32 s52, s52, {W_P3 + 512}
    s_waitcnt lgkmcnt(0)
    v_add_f32 v16, v16, v18
    v_add_f32 v17, v17, v19
    v_add_f32 v20, v20, v22
    v_add_f32 v21, v21, v23
    v_add_f32 v16, v16, v20           ; l0
    v_add_f32 v17, v17, v21           ; l1
    v_mov_b32 v18, s60
    v_mov_b32 v19, s61
    v_cndmask_b32 v17, v16, v17, vcc
    v_cndmask_b32 v16, v4, v5, vcc
    s_mov_b64 exec, 0xffff
    buffer_store_dwordx4 v[16:19], v6, s[36:39], s52 offen sc1
    s_mov_b64 exec, -1
L_noml:""")
        a(f"""    s_cmp_eq_u32 s3, 2
    s_cbranch_scc0 L_nof2
    s_cmp_ge_u32 s2, 224
    s_cbranch_scc1 L_nof2
    s_lshl_b32 s56, s2, 7
    s_add_u32 s56, s56, {W_F2}
    v_mov_b32 v4, s60
    v_mov_b32 v5, s61
    v_mov_b32 v6, 0
    s_waitcnt vmcnt(0)
    s_mov_b64 exec, 1
    buffer_store_dwordx2 v[4:5], v6, s[36:39], s56 offen sc1
    s_mov_b64 exec, -1
L_nof2:""")
        a.stamp(8)

    def tail_compute(self):
        a = self
        a.get_epoch()
        a(f"""    s_mov_b32 s44, s12
    s_mov_b32 s45, s13
    s_mov_b32 s46, 3670016
    s_mov_b32 s47, 0x20000
    v_lshrrev_b32 v2, 4, v1
    v_mul_u32_u24 v2, 896, v2
    v_and_b32 v3, 15, v1
    v_lshl_add_u32 v5, v3, 4, v2
    s_cmp_eq_u32 s3, 3
    s_cselect_b32 s54, 8, 16
    v_cmp_le_u32 vcc, s54, v3
    v_mov_b32 v6, {OOB}
    s_lshl_b32 s52, s28, 9
    s_lshl_b32 s53, s30, 5
    s_add_u32 s52, s52, s53
    s_mul_i32 s52, s52, 896
    s_lshl_b32 s53, s3, 8
    s_add_u32 s52, s52, s53
    v_cndmask_b32 v46, v5, v6, vcc
    v_add_u32 v47, 7168, v46""")
        for i in range(4):
            a(f"""    s_add_u32 s53, s31, {i}
    s_and_b32 s53, s53, 3
    s_mul_i32 s{40+i}, s53, 14336
    s_cmp_ge_u32 s53, 2
    s_cselect_b32 s53, 200704, 0
    s_add_u32 s{40+i}, s{40+i}, s53
    s_add_u32 s{40+i}, s{40+i}, s52""")
        a(f"""    ; o gather: lane (ph=l>>5, gi=l&31): producer p = k + 4ph
    v_lshrrev_b32 v2, 5, v1
    v_mul_u32_u24 v2, {4*REC}, v2
    v_and_b32 v3, 31, v1
    v_lshl_add_u32 v48, v3, 4, v2
    v_bfe_u32 v3, v1, 4, 1
    v_lshl_add_u32 v45, v3, 4, v2
    s_mul_i32 s48, s32, {64*REC}
    s_mul_i32 s53, s30, {8*REC}
    s_add_u32 s48, s48, s53
    s_add_u32 s48, s48, {W_P3}
    v_and_b32 v2, 1, v1
    v_lshlrev_b32 v2, 7, v2
    v_bfe_u32 v3, v1, 1, 4
    s_lshl_b32 s53, s31, 2
    v_subrev_u32 v3, s53, v3
    v_and_b32 v3, 15, v3
    v_lshl_add_u32 v2, v3, 2, v2
    s_lshl_b32 s53, s3, 8
    s_add_u32 s53, s53, {LB + L_OD}
    v_add_u32 v49, s53, v2
    v_lshrrev_b32 v3, 4, v1
    v_lshlrev_b32 v3, 6, v3
    v_add_u32 v50, s53, v3
    ; P4 store
    v_and_b32 v2, 15, v1
    v_lshlrev_b32 v2, 6, v2
    v_bfe_u32 v3, v1, 4, 1
    v_lshl_add_u32 v2, v3, 5, v2
    v_lshrrev_b32 v3, 5, v1
    v_lshl_add_u32 v51, v3, 4, v2
    v_and_b32 v3, 15, v1
    s_cmp_eq_u32 s3, 3
    s_cselect_b32 s54, 8, 16
    v_cmp_le_u32 vcc, s54, v3
    s_lshl_b32 s49, s31, 6
    s_lshl_b32 s53, s28, 3
    s_add_u32 s49, s49, s53
    s_add_u32 s49, s49, s30
    s_mul_i32 s49, s49, 3584
    s_lshl_b32 s53, s3, 10
    s_add_u32 s49, s49, s53
    s_add_u32 s49, s49, {W_P4}
    v_cndmask_b32 v51, v51, v6, vcc
    v_mov_b32 v54, s60
    v_mov_b32 v55, s61
    v_cmp_le_u32 s[50:51], 32, v1""")
        a.stamp(9)
        a("    s_barrier                         ; B1")
        a.stamp(10)
        for k in range(4):
            a(f"    buffer_load_dwordx4 v[{128+4*k}:{131+4*k}], v45, s[36:39], s48 offen offset:{REC*k + 512} sc1")
        for n in range(16):
            vo = "v46" if (n & 3) < 2 else "v47"
            if "nowo" in self.exp:
                a(f"    buffer_load_dword v{64+4*n}, v12, s[36:39], 0 offen")
                continue
            a(f"    buffer_load_dwordx4 v[{64+4*n}:{67+4*n}], {vo}, s[44:47], s{40 + (n >> 2)} offen offset:{3584*(n & 1)}{self.woflags}")
        a.stamp(11)
        a("    s_waitcnt vmcnt(16)")
        a.tagcheck([130, 134, 138, 142])
        lok = a.L("mlok")
        a(f"    s_cbranch_vccz {lok}")
        l = a.poll_begin("pml")
        for k in range(4):
            a(f"    buffer_load_dwordx4 v[{128+4*k}:{131+4*k}], v45, s[36:39], s48 offen offset:{REC*k + 512} sc1")
        a("    s_waitcnt vmcnt(0)")
        a.tagcheck([130, 134, 138, 142])
        a.poll_end(l, 10, sleep=2)
        a(f"{lok}:")
        if "tailst" in self.exp: a.stamp(1)
        a("""    v_max_f32 v144, v128, v132
    v_max_f32 v145, v136, v140
    v_max_f32 v144, v144, v145""")
        a.xrows("max_f32", [144], [145], which=("32",))
        for k in range(4):
            a(f"    v_sub_f32 v{146+k}, v{128+4*k}, v144")
        for k in range(4):
            a(f"    v_mul_f32 v{146+k}, {fbits(CEXP)}, v{146+k}")
        for k in range(4):
            a(f"    v_exp_f32 v{146+k}, v{146+k}")
        a("""    s_nop 0
    v_mul_f32 v150, v146, v129
    v_fmac_f32 v150, v147, v133
    v_fmac_f32 v150, v148, v137
    v_fmac_f32 v150, v149, v141""")
        a.xrows("add_f32", [150], [151], which=("32",))
        a("""    v_rcp_f32 v151, v150
    s_nop 0
    v_fma_f32 v152, -v150, v151, 1.0
    v_fmac_f32 v151, v152, v151""")
        for k in range(4):
            a(f"    v_mul_f32 v{146+k}, v{146+k}, v151")
        a.wait_flag(F_PUB, 1, 11, sleep=0)
        if "tailst" in self.exp:
            a.stamp(2)
            a("    s_waitcnt vmcnt(0)")
            a.stamp(3)
        l = a.poll_begin("po")
        for k in range(4):
            a(f"    buffer_load_dwordx4 v[{16+4*k}:{19+4*k}], v48, s[36:39], s48 offen offset:{REC*k} sc1")
        a("    s_waitcnt vmcnt(0)")
        a.tagcheck([18, 22, 26, 30])
        a.poll_end(l, 12, sleep=self.osleep)
        if "tailst" in self.exp: a("    s_lshl_b32 s78, s59, 0\n    s_mul_i32 s78, s78, 100\n    s_add_u32 s78, s78, s70")
        a.stamp(12)
        a(f"""    v_mul_f32 v16, v16, v146
    v_mul_f32 v17, v17, v146
    v_mul_f32 v24, v24, v148
    v_mul_f32 v25, v25, v148
    v_fmac_f32 v16, v20, v147
    v_fmac_f32 v17, v21, v147
    v_fmac_f32 v24, v28, v149
    v_fmac_f32 v25, v29, v149
    v_add_f32 v16, v16, v24
    v_add_f32 v17, v17, v25""")
        a.xrows("add_f32", [16, 17], [18, 19], which=("32",))
        a(f"""    v_cvt_pk_bf16_f32 v16, v16, v16
    v_cvt_pk_bf16_f32 v17, v17, v17
    s_mov_b32 exec_hi, 0
    ds_write_b32 v49, v16
    ds_write_b32 v49, v17 offset:64
    s_mov_b32 exec_hi, -1
    s_waitcnt lgkmcnt(0)
    ds_read_b128 v[16:19], v50
    ds_read_b128 v[20:23], v50 offset:16
    ds_read_b128 v[24:27], v50 offset:32
    ds_read_b128 v[28:31], v50 offset:48
    s_waitcnt lgkmcnt(0)""")
        a.selgemv(16, lambda pr, q: 16 + q, lambda q: 64 + 4*q, [40])
        a(f"""    s_nop 7
    v_cndmask_b32 v52, v40, v42, s[50:51]
    v_cndmask_b32 v53, v41, v43, s[50:51]
    buffer_store_dwordx4 v[52:55], v51, s[36:39], s49 offen sc1""")
        a.stamp(13)
        a.stamp_dump()
        a("    s_endpgm")

    def red8(self, v0, v1, t0, t1):
        a = self
        a(f"    s_nop 1\n    v_add_f32_dpp v{v0}, v{v0}, v{v0} row_ror:8 row_mask:0xf bank_mask:0xf\n    v_add_f32_dpp v{v1}, v{v1}, v{v1} row_ror:8 row_mask:0xf bank_mask:0xf")
        a.xrows("add_f32", [v0, v1], [t0, t1])

def generate(**kw):
    return Gen(**kw).build()

if __name__ == "__main__":
    import argparse
    ap = argparse.ArgumentParser()
    ap.add_argument("-o", default="recurrent_scan__sliding_block_cached__glu_gated_reglu__decode.s")
    ap.add_argument("--stamps", action="store_true")
    ap.add_argument("--dump", action="store_true")
    ap.add_argument("--thr", type=int, default=5)
    ap.add_argument("--khalf", type=int, default=20)
    ap.add_argument("--noprefetch", action="store_true")
    ap.add_argument("--exp", default="")
    ap.add_argument("--woflags", default=" nt")
    args = ap.parse_args()
    txt = generate(thr=args.thr, stamps=args.stamps, dump=args.dump, prefetch=not args.noprefetch,
                   exp=[e for e in args.exp.split(',') if e], woflags=args.woflags, khalf=args.khalf)
    open(args.o, "w").write(txt)
    print("wrote", args.o, len(txt))
```

```python
import sys, struct
sys.path.insert(0, "gen")
from asmlib import Asm

NAME = "recurrent_scan__sliding_block_cached__glu_gated_reglu__decode_kernel"

LB = 131072
F_KLAND, F_QRDY, F_MAX, F_PSUM, F_OW, F_XN, F_T1LAND, F_ERDY = 0, 4, 8, 12, 16, 20, 24, 28
L_E = 32
F_T1DONE, F_S1, F_KHALF, F_PUB = 40, 44, 48, 52
L_SMMAX = 64
L_SMSUM = 96
L_Q = 256
L_P = 1280
L_H = 3328
L_OD = 3840
L_XN = 4864
L_OW = 12032
L_S1 = 20224
LDS_TOTAL = LB + L_S1 + 8192
W_EPOCH = 0
W_F1 = 0x1000
W_F2 = 0x9000
W_P1 = 0x20000
W_P2 = 0xA0000
W_P3 = 0x110000
W_P4 = 0x260000
W_STAMP = 0x380000
W_DUMP = 0x3A0000
WS_SIZE = 0x440000
REC = 640

LOG2E = 1.4426950408889634
CEXP = 0.0625 * LOG2E
def fbits(x): return "0x%08x" % struct.unpack("<I", struct.pack("<f", x))[0]
OOB = "0x7ffffff0"

class Gen:
    def __init__(self, thr=5, stamps=False, dump=False, timeout=1 << 16, prefetch=True, exp=(), woflags=" nt", khalf=20, wsoff=0):
        self.wsoff = wsoff
        self.a = Asm()
        self.thr = thr; self.stamps = stamps; self.dump = dump; self.timeout = timeout
        self.prefetch = prefetch; self.exp = set(exp); self.woflags = woflags; self.khalf = khalf
        self.uid = 0
        self.osleep = 8 if 'osleep' in self.exp else 0
    def L(self, base):
        self.uid += 1
        return f"L_{base}_{self.uid}"
    def __call__(self, s): self.a(s)
    def stamp(self, i):
        if self.stamps: self(f"    s_memrealtime s[{70+2*i}:{71+2*i}]")
    def stamp_dump(self):
        if not self.stamps: return
        self(f"""    s_waitcnt lgkmcnt(0) vmcnt(0)
    s_lshl_b32 s52, s2, 3
    s_add_u32 s52, s52, s3
    s_lshl_b32 s52, s52, 6
    s_add_u32 s52, s52, {W_STAMP}
    s_mov_b64 exec, 1
    v_mov_b32 v2, s52""")
        for q in range(4):
            regs = [70 + 2*(4*q + r) if 4*q + r < 14 else 70 for r in range(4)]
            self(f"    v_mov_b32 v4, s{regs[0]}\n    v_mov_b32 v5, s{regs[1]}\n    v_mov_b32 v6, s{regs[2]}\n    v_mov_b32 v7, s{regs[3]}")
            self(f"    buffer_store_dwordx4 v[4:7], v2, s[36:39], 0 offen offset:{16*q}\n    s_nop 1")
    def signal(self, flag):
        self(f"""    s_mov_b64 exec, 1
    ds_add_u32 v12, v14 offset:{flag}
    s_mov_b64 exec, -1""")
    def wait_flag(self, flag, target, code, sleep=1):
        l = self.L("wf"); d = self.L("wfd")
        sl = f"    s_sleep {sleep}\n" if sleep else ""
        self(f"""    s_mov_b32 s59, 0
{l}:
    ds_read_b32 v13, v12 offset:{flag}
    s_waitcnt lgkmcnt(0)
    v_readfirstlane_b32 s58, v13
    s_cmp_ge_u32 s58, {target}
    s_cbranch_scc1 {d}
{sl}    s_add_u32 s59, s59, 1
    s_cmp_lt_u32 s59, {self.timeout}
    s_cbranch_scc1 {l}
    s_mov_b32 s57, {code}
    s_branch L_abort
{d}:""")
    def masks(self):
        self("""    v_and_b32 v2, 1, v1
    v_lshlrev_b32 v2, 4, v2
    v_mov_b32 v3, 0xffff
    v_lshlrev_b32 v2, v2, v3
    v_bfe_u32 v3, v1, 1, 2            ; (l>>1)&3
    v_cmp_eq_u32 vcc, 0, v3
    v_cmp_eq_u32 s[64:65], 1, v3
    v_cmp_eq_u32 s[66:67], 2, v3
    v_cmp_eq_u32 s[68:69], 3, v3
    s_nop 1
    v_cndmask_b32 v8, 0, v2, vcc
    v_cndmask_b32 v9, 0, v2, s[64:65]
    v_cndmask_b32 v10, 0, v2, s[66:67]
    v_cndmask_b32 v11, 0, v2, s[68:69]""")
    def sel(self, A, P):
        for r in range(4): self(f"    v_and_b32 v{A+r}, v{P}, v{8+r}")
    def mfma(self, D, A, B, C=None):
        c = f"v[{D}:{D+3}]" if C is None else C
        self(f"    v_mfma_f32_16x16x32_bf16 v[{D}:{D+3}], v[{A}:{A+3}], v[{B}:{B+3}], {c}")
    def selgemv(self, nq, Preg, Breg, accs, waits=None, A0=32, A1=36):
        seq = [(q, pr) for q in range(nq) for pr in range(len(accs))]
        Ab = [A0, A1]; first = set()
        self.sel(Ab[0], Preg(seq[0][1], seq[0][0]))
        for n, (q, pr) in enumerate(seq):
            if n + 1 < len(seq):
                q2, pr2 = seq[n+1]
                self.sel(Ab[(n+1) & 1], Preg(pr2, q2))
            else:
                self("    s_nop 1")
            if pr == 0 and waits is not None:
                w = waits(q)
                if w: self("    " + w)
            C = None
            if pr not in first:
                first.add(pr); C = "0"
            self.mfma(accs[pr], Ab[n & 1], Breg(q), C)
    def reduce64(self, op, regs, tmps):
        n = len(regs)
        pad = "    s_nop 1" if n == 1 else ("    s_nop 0" if n == 2 else None)
        for s in (8, 4, 2, 1):
            if pad: self(pad)
            for v in regs:
                self(f"    v_{op}_dpp v{v}, v{v}, v{v} row_ror:{s} row_mask:0xf bank_mask:0xf")
        self.xrows(op, regs, tmps)
    def xrows(self, op, regs, tmps, which=("16", "32")):
        for perm in which:
            for v, t in zip(regs, tmps): self(f"    v_mov_b32 v{t}, v{v}")
            self("    s_nop 1")
            for v, t in zip(regs, tmps): self(f"    v_permlane{perm}_swap_b32 v{v}, v{t}")
            self("    s_nop 1")
            for v, t in zip(regs, tmps): self(f"    v_{op} v{v}, v{v}, v{t}")
    def get_epoch(self):
        self.wait_flag(F_ERDY, 1, 20)
        self(f"""    ds_read_b64 v[2:3], v12 offset:{L_E}
    s_waitcnt lgkmcnt(0)
    v_readfirstlane_b32 s60, v2
    v_readfirstlane_b32 s61, v3""")
    def poll_begin(self, name):
        l = self.L(name)
        self(f"    s_mov_b32 s59, 0\n{l}:")
        return l
    def poll_end(self, l, code, sleep=2):
        d = self.L("pd")
        sl = f"    s_sleep {sleep}\n" if sleep else ""
        self(f"""    s_cbranch_vccz {d}
{sl}    s_add_u32 s59, s59, 1
    s_cmp_lt_u32 s59, {self.timeout}
    s_cbranch_scc1 {l}
    s_mov_b32 s57, {code}
    s_branch L_abort
{d}:""")
    def tagcheck(self, pairs):
        self(f"    v_cmp_ne_u64 vcc, s[60:61], v[{pairs[0]}:{pairs[0]+1}]")
        for p in pairs[1:]:
            self(f"    v_cmp_ne_u64 s[56:57], s[60:61], v[{p}:{p+1}]\n    s_or_b64 vcc, vcc, s[56:57]")

    def build(self):
        a = self
        hdr = open("recurrent_scan__sliding_block_cached__glu_gated_reglu__decode.s.ref").read().split("\n")
        for l in hdr:
            if l.startswith("; Override") or l.startswith("; grid=") or l.startswith("; @launch"): continue
            if l.startswith(";"): a(l)
            else: break
        a(f"; @launch grid=(256,1,1) block=(512,1,1) lds={LDS_TOTAL}")
        a('.amdgcn_target "amdgcn-amd-amdhsa--gfx950"')
        a(f".text\n.globl {NAME}\n.p2align 8\n.type {NAME},@function\n{NAME}:")
        a(f"""    s_cmp_ge_u32 s2, 256
    s_cbranch_scc1 L_end
    s_load_dwordx16 s[4:19], s[0:1], 0
    s_load_dwordx8 s[20:27], s[0:1], 64""")
        if self.prefetch:
            a(f"""    s_getpc_b64 s[52:53]
L_pc:
    s_lshr_b32 s54, s2, 3
    s_and_b32 s54, s54, 3
    s_lshl_b32 s54, s54, 12
    v_lshlrev_b32 v2, 3, v0
    v_add_u32 v2, s54, v2
    global_load_dwordx2 v[236:237], v2, s[52:53]""")
        a.stamp(0)
        a(f"""    v_and_b32 v1, 63, v0
    v_lshrrev_b32 v2, 6, v0
    v_lshlrev_b32 v3, 2, v1
    v_readfirstlane_b32 s3, v2
    v_mov_b32 v12, {LB}
    v_add_u32 v3, v12, v3
    v_mov_b32 v4, 0
    ds_write_b32 v3, v4
    v_mov_b32 v14, 1
    s_and_b32 s28, s2, 7              ; kvh
    s_lshr_b32 s29, s2, 3             ; r
    s_and_b32 s30, s29, 7             ; c
    s_lshr_b32 s31, s29, 3            ; b
    s_lshl_b32 s32, s31, 3
    s_add_u32 s32, s32, s28           ; grp
    s_cmp_lt_u32 s2, 128
    s_mov_b32 s62, 3584
    s_cselect_b32 s62, 8192, s62
    s_cselect_b32 s53, 0, 128
    s_cmp_lt_u32 s2, 184
    s_cselect_b32 s53, s53, 184
    s_sub_u32 s53, s2, s53            ; u
    s_and_b32 s63, s53, 3             ; rb
    s_lshr_b32 s33, s53, 2            ; colblk
    s_waitcnt lgkmcnt(0)
    s_add_u32 s26, s26, @WSOFF@
    s_addc_u32 s27, s27, 0
    s_mov_b32 s36, s26
    s_mov_b32 s37, s27
    s_mov_b32 s38, {WS_SIZE}
    s_mov_b32 s39, 0x20000
    s_barrier
    s_cmp_lt_u32 s3, 4
    s_cbranch_scc1 L_cw""")
        self.loader()
        a("L_cw:")
        if "nocomp" in self.exp:
            st = [e for e in self.exp if e.startswith("st_")]
            if st:
                _, n, fl, who = st[0].split("_")
                n = int(n); isld = fl.startswith("ld"); fl = {"sc1":" sc1", "pl":"", "nt":" nt", "sn":" sc1 nt", "ldsc1":" sc1", "ld":""}[fl]
                a("    s_cmp_eq_u32 s3, 0\n    s_cbranch_scc0 L_end")
                if who == "odd":
                    a("    s_and_b32 s52, s29, 1\n    s_cmp_eq_u32 s52, 1\n    s_cbranch_scc0 L_end")
                a.wait_flag(F_KHALF, 4, 50, sleep=4)
                a(f"    v_lshlrev_b32 v2, 4, v1\n    s_lshl_b32 s54, s2, 13\n    s_add_u32 s54, s54, {W_P3}")
                a.stamp(2)
                for i in range(n):
                    if isld:
                        a(f"    buffer_load_dwordx4 v[4:7], v2, s[36:39], s54 offen{fl}\n    s_add_u32 s54, s54, 1024")
                    else:
                        a(f"    buffer_store_dwordx4 v[4:7], v2, s[36:39], s54 offen{fl}\n    s_add_u32 s54, s54, 1024")
                a("    s_waitcnt vmcnt(0)")
                a.stamp(1)
                a.stamp_dump()
            a("    s_endpgm")
        self.stage1()
        self.w1()
        self.w2()
        self.scores()
        self.tail_compute()
        a("L_abort:")
        a(f"""    s_mov_b32 s40, s24
    s_mov_b32 s41, s25
    s_mov_b32 s42, 256
    s_mov_b32 s43, 0x20000
    s_mov_b64 exec, 1
    v_mov_b32 v2, s57
    v_mov_b32 v3, s2
    v_mov_b32 v4, 0
    buffer_store_dwordx2 v[2:3], v4, s[40:43], 0 offen
L_end:
    s_endpgm
L_codeend:
    .fill (16896 - (L_codeend - {NAME}))/4, 4, 0xbf810000
.section .rodata,"a"
.p2align 6
.amdhsa_kernel {NAME}
  .amdhsa_next_free_vgpr 240
  .amdhsa_next_free_sgpr 100
  .amdhsa_accum_offset 240
  .amdhsa_group_segment_fixed_size 0
  .amdhsa_kernarg_size 96
  .amdhsa_user_sgpr_count 2
  .amdhsa_user_sgpr_kernarg_segment_ptr 1
  .amdhsa_system_sgpr_workgroup_id_x 1
.end_amdhsa_kernel""")
        return self.a.text().replace("@NOPUB@", "0" if "nopub" in self.exp else "240").replace("@WSOFF@", str(self.wsoff))

    def loader(self):
        a = self; THR = self.thr
        a(f"""    s_setprio 3
    s_sub_u32 s35, s3, 4              ; w
    s_cmp_lt_u32 s2, 128
    s_cselect_b32 s40, s10, s16
    s_cselect_b32 s41, s11, s17
    s_mov_b32 s42, 1605632
    s_cselect_b32 s42, 3670016, s42
    s_cmp_lt_u32 s2, 184
    s_cselect_b32 s40, s40, s18
    s_cselect_b32 s41, s41, s19
    s_mov_b32 s43, 0x20000
    v_lshrrev_b32 v2, 4, v1           ; g
    v_and_b32 v3, 15, v1              ; j
    v_mul_lo_u32 v5, v2, s62
    v_lshl_add_u32 v5, v3, 4, v5
    s_mul_i32 s56, s63, 112
    s_lshl_b32 s52, s35, 2
    s_add_u32 s56, s56, s52
    s_mul_i32 s56, s56, s62
    s_lshl_b32 s52, s33, 8
    s_add_u32 s56, s56, s52
    s_cmp_ge_u32 s2, 240
    s_cselect_b32 s56, {OOB}, s56
    s_cselect_b32 s57, 0, s62
    s_lshl_b32 s57, s57, 4
    s_lshl_b32 s34, s29, 12           ; rotK
    s_lshl_b32 s52, s35, 10
    s_add_u32 s34, s34, s52           ; kpos0
    s_add_u32 s52, s34, {25*4096}""")
        for i in range(7):
            a(f"""    s_and_b32 s52, s52, 0x1ffff
    s_mov_b32 m0, s52
    s_add_u32 s52, s52, 4096
    buffer_load_dwordx4 v5, s[40:43], s56 offen nt lds
    s_add_u32 s56, s56, s57""")
        a(f"""    s_mov_b32 s44, s20
    s_mov_b32 s45, s21
    s_mov_b32 s46, 1605632
    s_mov_b32 s47, 0x20000
    v_mul_u32_u24 v6, 896, v2
    v_lshl_add_u32 v6, v3, 4, v6
    s_and_b32 s53, s2, 3              ; nb
    s_cmp_eq_u32 s53, 3
    s_cselect_b32 s54, 8, 16
    v_cmp_le_u32 vcc, s54, v3
    v_mov_b32 v7, {OOB}
    s_lshr_b32 s52, s2, 2             ; fb32
    s_mul_i32 s55, s52, 28672
    v_cndmask_b32 v6, v6, v7, vcc
    s_lshl_b32 s56, s53, 8
    s_add_u32 s55, s55, s56
    s_mul_i32 s56, s35, 3584
    s_add_u32 s55, s55, s56
    s_cmp_ge_u32 s2, 224
    s_cselect_b32 s55, {OOB}, s55
    s_lshl_b32 s56, s35, 10
    s_add_u32 s56, s56, {LB + L_OW}
    s_mov_b32 m0, s56
    s_add_u32 s56, s56, 4096
    buffer_load_dwordx4 v6, s[44:47], s55 offen nt lds
    s_mov_b32 m0, s56
    s_add_u32 s55, s55, 14336
    buffer_load_dwordx4 v6, s[44:47], s55 offen nt lds""")
        a(f"""    s_mov_b32 s40, s6
    s_mov_b32 s41, s7
    s_mov_b32 s42, 0x8000000
    s_mov_b32 s43, 0x20000
    s_lshl_b32 s33, s32, 22
    s_lshl_b32 s52, s30, 17
    s_add_u32 s33, s33, s52
    s_add_u32 s33, s33, 3145728
    v_lshrrev_b32 v3, 5, v1
    s_and_b32 s52, s35, 1
    s_lshl_b32 s52, s52, 1
    v_add_u32 v4, s52, v3
    v_and_b32 v5, 31, v1
    v_xor_b32 v5, v5, v4
    v_lshlrev_b32 v5, 4, v5
    v_lshl_add_u32 v2, v3, 9, v5
    s_mov_b32 s52, s34""")
        a.stamp(7)
        def kloop(n):
            if n <= 0: return
            l = a.L("k")
            a(f"""    s_mov_b32 s54, {n}
{l}:
    s_and_b32 s52, s52, 0x1ffff
    s_lshr_b32 s55, s52, 7
    s_and_b32 s55, s55, 0xc0
    v_xor_b32 v3, s55, v2
    s_mov_b32 m0, s52
    s_add_u32 s56, s52, s33
    s_waitcnt vmcnt({THR})
    buffer_load_dwordx4 v3, s[40:43], s56 offen nt lds
    s_add_u32 s52, s52, 4096
    s_sub_u32 s54, s54, 1
    s_cmp_lg_u32 s54, 0
    s_cbranch_scc1 {l}""")
        n0 = max(THR - 2, 1)
        kloop(n0)
        a(f"    s_waitcnt vmcnt({n0 + 2})")
        a.signal(F_T1LAND)
        kloop(self.khalf - n0)
        a.signal(F_KHALF)
        kloop(25 - self.khalf)
        if "nocomp" not in self.exp: a.wait_flag(F_T1DONE, 4, 30)
        kloop(7)
        a.stamp(1)
        a(f"""    s_mov_b32 s44, s8
    s_mov_b32 s45, s9
    s_mov_b32 s46, 0x8000000
    s_mov_b32 s47, 0x20000
    v_lshrrev_b32 v3, 4, v1
    v_and_b32 v4, 15, v1
    v_lshlrev_b32 v4, 4, v4
    v_lshl_add_u32 v6, v3, 9, v4      ; V voffset
    s_and_b32 s52, s29, 15
    s_lshl_b32 s52, s52, 13
    s_lshl_b32 s53, s35, 11
    s_add_u32 s52, s52, s53""")
        VB = 64; m = 0
        for n in range(16):
            a("    s_and_b32 s52, s52, 0x1ffff\n    s_add_u32 s56, s52, s33")
            for hf in range(2):
                a(f"    s_waitcnt vmcnt({THR})")
                if m == THR:
                    a.signal(F_KLAND); a.stamp(2)
                r = VB + 8*n + 4*hf
                a(f"    buffer_load_dwordx4 v[{r}:{r+3}], v6, s[44:47], s56 offen offset:{256*hf} nt")
                m += 1
            if n < 15: a("    s_add_u32 s52, s52, 8192")
        a.stamp(3)
        if "nocomp" in self.exp or "vonly" in self.exp:
            a("    s_waitcnt vmcnt(0)"); a.stamp(4); a.stamp_dump(); a("    s_endpgm")
        a.masks()
        a(f"""    v_bfe_u32 v2, v1, 3, 1
    v_lshlrev_b32 v2, 8, v2
    v_lshrrev_b32 v3, 4, v1
    v_lshl_add_u32 v2, v3, 6, v2
    s_lshl_b32 s52, s35, 9
    s_add_u32 s52, s52, {LB + L_P}
    v_add_u32 v2, s52, v2             ; P address
    v_lshlrev_b32 v48, 4, v1
    s_lshl_b32 s52, s35, 11
    s_add_u32 s52, s52, {LB + L_OW}
    v_add_u32 v49, s52, v48
    v_add_u32 v48, {LB + L_OW}, v48
    v_bfe_u32 v5, v1, 2, 2
    v_mul_u32_u24 v5, {8*REC}, v5
    v_lshrrev_b32 v6, 5, v1
    v_lshl_add_u32 v5, v6, 8, v5
    v_and_b32 v6, 3, v1
    v_lshl_add_u32 v5, v6, 6, v5
    v_bfe_u32 v6, v1, 4, 1
    v_lshl_add_u32 v51, v6, 5, v5
    s_mul_i32 s44, s32, {64*REC}
    s_mul_i32 s45, s30, {REC}
    s_add_u32 s44, s44, s45
    s_add_u32 s44, s44, {W_P3}
    s_add_u32 s45, s44, {32*REC}
    s_barrier                         ; B1""")
        a.stamp(4)
        for i in range(4):
            a(f"    ds_read_b128 v[{16+4*i}:{19+4*i}], v2 offset:{16*i}")
        a(f"    ds_read_b64 v[4:5], v12 offset:{L_E}")
        a("    s_waitcnt lgkmcnt(0)")
        for q in range(4):
            a(f"    v_mov_b32 v{198+4*q}, v4\n    v_mov_b32 v{199+4*q}, v5")
        a("    v_readfirstlane_b32 s60, v4\n    v_readfirstlane_b32 s61, v5")
        Ab = [32, 36]
        a.sel(Ab[0], 16)
        for n in range(16):
            if n < 15: a.sel(Ab[(n+1) & 1], 16 + n + 1)
            a(f"    s_waitcnt vmcnt({30 - 2*n})")
            c = "0" if n == 0 else None
            a.mfma(40, Ab[n & 1], VB + 8*n, c)
            a.mfma(44, Ab[n & 1], VB + 8*n + 4, c)
        a.stamp(5)
        a(f"""    s_nop 7
    ds_write_b128 v49, v[40:43]
    ds_write_b128 v49, v[44:47] offset:1024
    s_waitcnt lgkmcnt(0)
    s_mov_b64 exec, 1
    ds_add_rtn_u32 v13, v12, v14 offset:{F_OW}
    s_mov_b64 exec, -1
    s_waitcnt lgkmcnt(0)
    v_readfirstlane_b32 s58, v13
    s_cmp_eq_u32 s58, 3
    s_cbranch_scc0 L_vfin""")
        for w in range(4):
            for hf in range(2):
                r = 64 + 8*w + 4*hf
                a(f"    ds_read_b128 v[{r}:{r+3}], v48 offset:{2048*w + 1024*hf}")
        a("    s_waitcnt lgkmcnt(0)")
        for i in range(8):
            a(f"    v_add_f32 v{64+i}, v{64+i}, v{72+i}\n    v_add_f32 v{80+i}, v{80+i}, v{88+i}")
        for i in range(8):
            dst = 196 + 4*(i >> 1) + (i & 1)
            a(f"    v_add_f32 v{dst}, v{64+i}, v{80+i}")
        a(f"""    buffer_store_dwordx4 v[196:199], v51, s[36:39], s44 offen sc1
    buffer_store_dwordx4 v[200:203], v51, s[36:39], s44 offen offset:16 sc1
    buffer_store_dwordx4 v[204:207], v51, s[36:39], s45 offen sc1
    buffer_store_dwordx4 v[208:211], v51, s[36:39], s45 offen offset:16 sc1""")
        a.signal(F_PUB)
        a.stamp(6)
        a("L_vfin:")
        if "nofin" in self.exp: a("    s_branch L_vend")
        a(f"""    s_cmp_eq_u32 s3, 7
    s_cbranch_scc0 L_vend
    s_cmp_ge_u32 s2, 112
    s_cbranch_scc1 L_vend
    s_mul_i32 s62, s2, 2341
    s_lshr_b32 s62, s62, 16           ; b_f
    s_mul_i32 s63, s62, 28
    s_sub_u32 s63, s2, s63            ; nbk
    s_lshr_b32 s52, s63, 3
    s_lshl_b32 s52, s52, 7
    s_add_u32 s52, s52, {W_F2}
    v_lshlrev_b32 v4, 9, v1           ; k*4*128
    s_mul_i32 s53, s62, 448
    s_lshl_b32 s54, s63, 4
    s_add_u32 s53, s53, s54           ; b_f*448 + 16nbk
    s_mov_b32 s40, s4
    s_mov_b32 s41, s5
    s_mov_b32 s42, 3584
    s_mov_b32 s43, 0x20000
    s_lshl_b32 s48, s53, 1
    v_and_b32 v3, 7, v1
    v_lshlrev_b32 v2, 2, v3
    buffer_load_dword v30, v2, s[40:43], s48 offen      ; x: 2 bf16
    v_lshrrev_b32 v5, 3, v1
    v_mul_u32_u24 v6, 7168, v5
    v_lshl_add_u32 v6, v3, 3, v6      ; P2 voffset
    v_mul_u32_u24 v7, 3584, v5
    v_lshl_add_u32 v7, v3, 4, v7      ; P4 voffset
    s_mov_b32 exec_hi, 0x00ffffff""")
        l = a.poll_begin("pf")
        a(f"""    buffer_load_dwordx2 v[2:3], v4, s[36:39], s52 offen sc1
    s_waitcnt vmcnt(0)
    v_cmp_ne_u64 vcc, s[60:61], v[2:3]""")
        a.poll_end(l, 8, sleep=2)
        a(f"""    s_mov_b32 exec_hi, -1
    s_lshl_b32 s53, s53, 2
    s_add_u32 s53, s53, {W_P2}""")
        for k in range(7):
            a(f"    buffer_load_dwordx2 v[{16+2*k}:{17+2*k}], v6, s[36:39], s53 offen sc1")
            if k < 6: a(f"    s_add_u32 s53, s53, {8*7168}")
        a(f"""    s_mul_i32 s52, s62, {64*3584}
    s_lshl_b32 s53, s63, 7
    s_add_u32 s52, s52, s53
    s_add_u32 s52, s52, {W_P4}
    s_mov_b32 s40, s22
    s_mov_b32 s41, s23
    s_waitcnt vmcnt(0)
    v_add_f32 v16, v16, v18
    v_add_f32 v17, v17, v19
    v_add_f32 v20, v20, v22
    v_add_f32 v21, v21, v23
    v_add_f32 v24, v24, v26
    v_add_f32 v25, v25, v27
    v_add_f32 v16, v16, v20
    v_add_f32 v17, v17, v21
    v_add_f32 v24, v24, v28
    v_add_f32 v25, v25, v29
    v_add_f32 v16, v16, v24
    v_add_f32 v17, v17, v25""")
        self.red8(16, 17, 18, 19)
        a(f"""    v_cvt_pk_bf16_f32 v20, v16, v17
    v_lshlrev_b32 v16, 16, v20
    v_and_b32 v17, 0xffff0000, v20
    v_mul_f32 v20, {fbits(-LOG2E)}, v16
    v_mul_f32 v21, {fbits(-LOG2E)}, v17
    v_exp_f32 v20, v20
    v_exp_f32 v21, v21
    s_nop 0
    v_add_f32 v20, 1.0, v20
    v_add_f32 v21, 1.0, v21
    v_rcp_f32 v20, v20
    v_rcp_f32 v21, v21
    s_nop 0
    v_mul_f32 v16, v16, v20
    v_mul_f32 v17, v17, v21
    v_cvt_pk_bf16_f32 v20, v16, v17
    v_lshlrev_b32 v32, 16, v20
    v_and_b32 v33, 0xffff0000, v20      ; g
    v_lshlrev_b32 v34, 16, v30
    v_and_b32 v35, 0xffff0000, v30      ; x""")
        a.stamp(8)
        l = a.poll_begin("pz")
        a("    s_mov_b32 s53, s52")
        for k in range(8):
            a(f"    buffer_load_dwordx4 v[{64+4*k}:{67+4*k}], v7, s[36:39], s53 offen sc1")
            if k < 7: a(f"    s_add_u32 s53, s53, {8*3584}")
        a("    s_waitcnt vmcnt(0)")
        a.tagcheck([66 + 4*k for k in range(8)])
        a.poll_end(l, 13, sleep=0)
        a.stamp(9)
        for k in range(0, 8, 2):
            a(f"    v_add_f32 v{64+4*k}, v{64+4*k}, v{68+4*k}\n    v_add_f32 v{65+4*k}, v{65+4*k}, v{69+4*k}")
        a("""    v_add_f32 v64, v64, v72
    v_add_f32 v65, v65, v73
    v_add_f32 v80, v80, v88
    v_add_f32 v81, v81, v89
    v_add_f32 v16, v64, v80
    v_add_f32 v17, v65, v81""")
        self.red8(16, 17, 18, 19)
        a(f"""    v_cvt_pk_bf16_f32 v20, v16, v17
    v_lshlrev_b32 v16, 16, v20
    v_and_b32 v17, 0xffff0000, v20
    v_mul_f32 v16, v16, v32
    v_mul_f32 v17, v17, v33
    v_cvt_pk_bf16_f32 v20, v16, v17
    v_lshlrev_b32 v16, 16, v20
    v_and_b32 v17, 0xffff0000, v20
    v_add_f32 v16, v16, v34
    v_add_f32 v17, v17, v35
    v_cvt_pk_bf16_f32 v20, v16, v17
    v_lshlrev_b32 v2, 2, v1
    s_mov_b64 exec, 0xff
    buffer_store_dword v20, v2, s[40:43], s48 offen
    s_cmp_eq_u32 s2, 111
    s_cbranch_scc0 L_vend
    s_mov_b64 exec, 1
    v_mov_b32 v2, s60
    v_mov_b32 v3, s61
    v_mov_b32 v4, 0
    buffer_store_dwordx2 v[2:3], v4, s[36:39], 0 offen sc1""")
        a("L_vend:\n    s_mov_b64 exec, -1")
        a.stamp(10)
        a.stamp_dump()
        a("    s_endpgm")

    def stage1(self):
        a = self
        a(f"""    s_mov_b32 s40, s4
    s_mov_b32 s41, s5
    s_mov_b32 s42, 3584
    s_mov_b32 s43, 0x20000
    v_lshlrev_b32 v4, 4, v1
    s_mul_i32 s52, s3, 896
    v_add_u32 v4, s52, v4
    v_mov_b32 v5, {OOB}
    v_cmp_le_u32 vcc, 56, v1
    s_cmp_eq_u32 s3, 0
    s_cbranch_scc0 L_noep
    s_load_dwordx2 s[60:61], s[26:27], {W_EPOCH}
L_noep:
    v_cndmask_b32 v4, v4, v5, vcc
    buffer_load_dwordx4 v[16:19], v4, s[40:43], 0 offen""")
        a.masks()
        a(f"""    s_mul_i32 s52, s3, 1792
    s_add_u32 s52, s52, {LB + L_XN}
    v_lshlrev_b32 v6, 3, v1
    v_add_u32 v6, s52, v6
    v_bfe_u32 v2, v1, 3, 1
    v_lshlrev_b32 v2, 2, v2
    v_lshrrev_b32 v3, 4, v1
    v_add_u32 v2, v2, v3
    v_mul_u32_u24 v2, 448, v2
    s_mul_i32 s52, s63, 112
    s_lshl_b32 s53, s3, 2
    s_add_u32 s52, s52, s53
    s_add_u32 s52, s52, {LB + L_XN}
    v_add_u32 v7, s52, v2
    s_cmp_eq_u32 s3, 0
    s_cbranch_scc0 L_noep2
    s_waitcnt lgkmcnt(0)
    s_add_u32 s60, s60, 1
    s_addc_u32 s61, s61, 0
    v_mov_b32 v2, s60
    v_mov_b32 v3, s61
    ds_write_b64 v12, v[2:3] offset:{L_E}
    s_waitcnt lgkmcnt(0)""")
        a.signal(F_ERDY)
        a("L_noep2:")
        a(f"""    s_lshl_b32 s52, s29, 12
    s_lshl_b32 s53, s3, 10
    s_add_u32 s52, s52, s53
    s_add_u32 s52, s52, {25*4096}
    v_lshlrev_b32 v2, 4, v1""")
        for i in range(7):
            a(f"    s_and_b32 s52, s52, 0x1ffff\n    v_add_u32 v{96+i}, s52, v2\n    s_add_u32 s52, s52, 4096")
        a(f"""    s_lshl_b32 s52, s3, 11
    s_add_u32 s52, s52, {LB + L_S1}
    v_add_u32 v103, s52, v2""")
        a("    s_waitcnt vmcnt(0)")
        a.stamp(1)
        for d in range(4):
            a(f"    v_lshlrev_b32 v{20+2*d}, 16, v{16+d}\n    v_and_b32 v{21+2*d}, 0xffff0000, v{16+d}")
        a("""    v_add_f32 v2, v20, v21
    v_add_f32 v3, v22, v23
    v_add_f32 v4, v24, v25
    v_add_f32 v5, v26, v27
    v_add_f32 v2, v2, v3
    v_add_f32 v4, v4, v5
    v_add_f32 v2, v2, v4""")
        a.reduce64("add_f32", [2], [3])
        a(f"""    v_mul_f32 v2, {fbits(1.0/448)}, v2      ; mean (f32)
    v_mov_b32 v4, 0
    v_mov_b32 v5, 0
    s_mov_b32 exec_hi, 0x00ffffff""")
        for i in range(8):
            a(f"    v_sub_f32 v{28+i}, v{20+i}, v2")
        for i in range(0, 8, 2):
            a(f"    v_fmac_f32 v4, v{28+i}, v{28+i}\n    v_fmac_f32 v5, v{29+i}, v{29+i}")
        a("    s_mov_b32 exec_hi, -1\n    v_add_f32 v4, v4, v5")
        a.reduce64("add_f32", [4], [3])
        a(f"""    v_mul_f32 v4, {fbits(1.0/448)}, v4      ; var
    v_cvt_pk_bf16_f32 v3, v2, v4
    v_lshlrev_b32 v2, 16, v3          ; m_bf
    v_and_b32 v4, 0xffff0000, v3      ; v_bf
    v_add_f32 v4, {fbits(1e-5)}, v4
    v_cvt_pk_bf16_f32 v4, v4, v4
    v_and_b32 v4, 0xffff0000, v4
    v_sqrt_f32 v4, v4""")
        for i in range(8):
            a(f"    v_sub_f32 v{20+i}, v{20+i}, v2")
        a(f"""    v_cvt_pk_bf16_f32 v4, v4, v4
    v_and_b32 v4, 0xffff0000, v4      ; s
    v_rcp_f32 v5, v4""")
        for d in range(4):
            a(f"    v_cvt_pk_bf16_f32 v{16+d}, v{20+2*d}, v{21+2*d}")
        for d in range(4):
            a(f"    v_lshlrev_b32 v{20+2*d}, 16, v{16+d}\n    v_and_b32 v{21+2*d}, 0xffff0000, v{16+d}")
        for i in range(8): a(f"    v_mul_f32 v{28+i}, v{20+i}, v5")
        for i in range(8): a(f"    v_fma_f32 v{20+i}, -v{28+i}, v4, v{20+i}")
        for i in range(8): a(f"    v_fmac_f32 v{28+i}, v{20+i}, v5")
        for g in range(4):
            a(f"    v_cvt_pk_bf16_f32 v{40+2*g}, v{28+g}, v{28+g}\n    v_cvt_pk_bf16_f32 v{41+2*g}, v{32+g}, v{32+g}")
        a("    s_mov_b32 exec_hi, 0x00ffffff")
        for g in range(4):
            a(f"    ds_write_b64 v6, v[{40+2*g}:{41+2*g}] offset:{448*g}")
        a("    s_mov_b32 exec_hi, -1\n    s_waitcnt lgkmcnt(0)")
        a.signal(F_XN)
        a.stamp(2)
        a.wait_flag(F_XN, 4, 21, sleep=0)
        for pr in range(2):
            for i in range(7):
                a(f"    ds_read_b32 v{48+7*pr+i}, v7 offset:{pr*3584 + 16*i}")
        a.wait_flag(F_T1LAND, 4, 22, sleep=0)
        a.stamp(3)
        for i in range(7):
            a(f"    ds_read_b128 v[{64+4*i}:{67+4*i}], v{96+i}")
        a("    s_waitcnt lgkmcnt(0)")
        a.signal(F_T1DONE)
        a.selgemv(7, lambda pr, q: 48 + 7*pr + q, lambda q: 64 + 4*q, [40, 44])
        a(f"""    s_nop 7
    ds_write_b128 v103, v[40:43]
    ds_write_b128 v103, v[44:47] offset:1024
    s_waitcnt lgkmcnt(0)""")
        a.signal(F_S1)
        a.stamp(4)
        a(f"""    s_cmp_eq_u32 s3, 1
    s_cbranch_scc1 L_w1
    s_cmp_eq_u32 s3, 2
    s_cbranch_scc1 L_w2
    s_cmp_eq_u32 s3, 3
    s_cbranch_scc1 L_scores
    s_cmp_ge_u32 s2, @NOPUB@
    s_cbranch_scc1 L_scores
    v_lshlrev_b32 v2, 4, v1
    v_add_u32 v2, {LB + L_S1}, v2
    v_lshrrev_b32 v4, 5, v1
    v_lshlrev_b32 v4, 9, v4
    v_and_b32 v3, 15, v1
    v_lshl_add_u32 v4, v3, 5, v4
    v_bfe_u32 v3, v1, 4, 1
    v_lshl_add_u32 v4, v3, 4, v4
    s_lshl_b32 s54, s2, 11
    s_add_u32 s54, s54, {W_P1}""")
        a.wait_flag(F_S1, 4, 23, sleep=0)
        for w in range(4):
            for pr in range(2):
                r = 64 + 8*w + 4*pr
                a(f"    ds_read_b128 v[{r}:{r+3}], v2 offset:{2048*w + 1024*pr}")
        a("    s_waitcnt lgkmcnt(0)")
        for i in range(8):
            a(f"    v_add_f32 v{64+i}, v{64+i}, v{72+i}\n    v_add_f32 v{80+i}, v{80+i}, v{88+i}")
        for i in range(8):
            a(f"    v_add_f32 v{64+i}, v{64+i}, v{80+i}")
        a(f"""    buffer_store_dwordx4 v[64:67], v4, s[36:39], s54 offen sc1
    buffer_store_dwordx4 v[68:71], v4, s[36:39], s54 offen offset:1024 sc1
    s_lshl_b32 s54, s2, 7
    s_add_u32 s54, s54, {W_F1}
    v_mov_b32 v2, s60
    v_mov_b32 v3, s61
    v_mov_b32 v4, 0
    s_waitcnt vmcnt(0)
    s_mov_b64 exec, 1
    buffer_store_dwordx2 v[2:3], v4, s[36:39], s54 offen sc1
    s_mov_b64 exec, -1""")
        a.stamp(5)
        a("    s_branch L_scores")

    def w1(self):
        a = self
        a("; ---------------- W1\nL_w1:")
        if "now1" in self.exp: a("    s_branch L_scores")
        a.get_epoch()
        a(f"""    v_lshlrev_b32 v4, 7, v1
    s_lshl_b32 s54, s28, 11
    s_add_u32 s54, s54, {W_F1}
    v_lshrrev_b32 v5, 4, v1
    v_lshlrev_b32 v5, 13, v5
    v_and_b32 v3, 15, v1
    v_lshl_add_u32 v5, v3, 5, v5
    s_lshl_b32 s52, s28, 15
    s_lshl_b32 s53, s31, 9
    s_add_u32 s52, s52, s53
    s_add_u32 s52, s52, {W_P1}
    s_add_u32 s53, s52, 4096
    v_lshlrev_b32 v6, 4, v1
    v_add_u32 v6, {LB + L_Q}, v6""")
        a.wait_flag(F_KHALF, 4, 40, sleep=4)
        a("    s_mov_b64 exec, 0xffff")
        l = a.poll_begin("pq")
        a(f"""    buffer_load_dwordx2 v[2:3], v4, s[36:39], s54 offen sc1
    s_waitcnt vmcnt(0)
    v_cmp_ne_u64 vcc, s[60:61], v[2:3]""")
        a.poll_end(l, 2, sleep=8)
        a("    s_mov_b64 exec, -1")
        a.stamp(5)
        for rb in range(4):
            so = "s52" if rb < 2 else "s53"
            for hf in range(2):
                r = 16 + 8*rb + 4*hf
                a(f"    buffer_load_dwordx4 v[{r}:{r+3}], v5, s[36:39], {so} offen offset:{(rb&1)*2048 + hf*16} sc1")
        a("    s_waitcnt vmcnt(0)")
        for i in range(8): a(f"    v_add_f32 v{16+i}, v{16+i}, v{24+i}\n    v_add_f32 v{32+i}, v{32+i}, v{40+i}")
        for i in range(8): a(f"    v_add_f32 v{16+i}, v{16+i}, v{32+i}")
        for i in range(4): a(f"    v_cvt_pk_bf16_f32 v{24+i}, v{16+2*i}, v{17+2*i}")
        a(f"""    ds_write_b128 v6, v[24:27]
    s_waitcnt lgkmcnt(0)""")
        a.signal(F_QRDY)
        a("    s_branch L_scores")

    def w2(self):
        a = self
        a("; ---------------- W2\nL_w2:")
        if "now2" in self.exp: a("    s_branch L_scores")
        a(f"""    s_cmp_ge_u32 s2, 224
    s_cbranch_scc1 L_scores""")
        a.get_epoch()
        a(f"""    s_lshr_b32 s52, s2, 2             ; fb32
    s_and_b32 s53, s2, 3              ; nb
    v_lshrrev_b32 v2, 2, v1
    v_mul_u32_u24 v2, 56, v2
    v_and_b32 v3, 3, v1
    v_add_u32 v2, v2, v3
    v_lshlrev_b32 v4, 7, v2
    s_lshr_b32 s54, s52, 2            ; cbk
    s_lshl_b32 s55, s54, 2
    s_add_u32 s55, s55, 128
    s_lshl_b32 s48, s55, 7
    s_add_u32 s48, s48, {W_F1}
    v_lshrrev_b32 v5, 4, v1
    v_lshlrev_b32 v5, 9, v5
    v_and_b32 v3, 15, v1
    v_lshl_add_u32 v5, v3, 3, v5
    s_lshl_b32 s55, s55, 11
    s_and_b32 s56, s52, 3
    s_lshl_b32 s56, s56, 7
    s_add_u32 s55, s55, s56
    s_add_u32 s44, s55, {W_P1}
    s_add_u32 s45, s44, 4096
    s_add_u32 s46, s44, {56*2048}
    s_add_u32 s47, s46, 4096
    v_lshrrev_b32 v6, 4, v1
    v_lshlrev_b32 v6, 7, v6
    v_and_b32 v3, 1, v1
    v_lshl_add_u32 v6, v3, 6, v6
    v_bfe_u32 v3, v1, 1, 3
    v_lshl_add_u32 v6, v3, 2, v6
    v_add_u32 v6, {LB + L_H}, v6
    v_bfe_u32 v7, v1, 3, 1
    v_lshlrev_b32 v7, 7, v7
    v_lshrrev_b32 v3, 4, v1
    v_lshl_add_u32 v7, v3, 5, v7
    v_add_u32 v7, {LB + L_H}, v7
    v_lshlrev_b32 v15, 4, v1
    v_add_u32 v15, {LB + L_OW}, v15
    ; P2 address
    v_lshrrev_b32 v48, 5, v1
    v_mul_u32_u24 v48, 1792, v48
    v_and_b32 v3, 15, v1
    v_lshl_add_u32 v48, v3, 5, v48
    v_bfe_u32 v49, v1, 4, 1
    v_lshl_add_u32 v48, v49, 4, v48
    s_cmp_eq_u32 s53, 3
    s_cselect_b32 s54, 8, 16
    v_cmp_le_u32 vcc, s54, v3
    v_mov_b32 v49, {OOB}
    s_mul_i32 s49, s52, 7168
    s_lshl_b32 s55, s53, 9
    s_add_u32 s49, s49, s55
    s_add_u32 s49, s49, {W_P2}
    s_add_u32 s50, s49, 3584
    v_cndmask_b32 v48, v48, v49, vcc""")
        a.wait_flag(F_KHALF, 4, 41, sleep=4)
        for q in range(8):
            a(f"    ds_read_b128 v[{64+4*q}:{67+4*q}], v15 offset:{1024*q}")
        a("    s_mov_b64 exec, 0xff")
        l = a.poll_begin("pm")
        a(f"""    buffer_load_dwordx2 v[2:3], v4, s[36:39], s48 offen sc1
    s_waitcnt vmcnt(0)
    v_cmp_ne_u64 vcc, s[60:61], v[2:3]""")
        a.poll_end(l, 3, sleep=8)
        a("    s_mov_b64 exec, -1")
        a.stamp(5)
        for m in range(2):
            for rb in range(4):
                so = ["s44", "s45", "s46", "s47"][2*m + (rb >> 1)]
                r = 16 + 8*m + 2*rb
                a(f"    buffer_load_dwordx2 v[{r}:{r+1}], v5, s[36:39], {so} offen offset:{(rb&1)*2048} sc1")
        a("    s_waitcnt vmcnt(0)")
        for m in range(2):
            b0 = 16 + 8*m
            for e in range(2):
                a(f"    v_add_f32 v{b0+e}, v{b0+e}, v{b0+2+e}\n    v_add_f32 v{b0+4+e}, v{b0+4+e}, v{b0+6+e}")
            for e in range(2):
                a(f"    v_add_f32 v{b0+e}, v{b0+e}, v{b0+4+e}")
        a(f"""    v_cvt_pk_bf16_f32 v2, v16, v17
    v_cvt_pk_bf16_f32 v3, v24, v25
    v_lshlrev_b32 v16, 16, v2
    v_and_b32 v17, 0xffff0000, v2
    v_lshlrev_b32 v24, 16, v3
    v_and_b32 v25, 0xffff0000, v3
    v_cmp_lt_f32 vcc, 0, v16
    v_cmp_lt_f32 s[54:55], 0, v17
    s_nop 1
    v_cndmask_b32 v2, 0, 1.0, vcc
    v_cndmask_b32 v3, 0, 1.0, s[54:55]
    v_mul_f32 v16, v16, v2
    v_mul_f32 v17, v17, v3
    v_mul_f32 v16, v16, v24
    v_mul_f32 v17, v17, v25
    v_cvt_pk_bf16_f32 v16, v16, v16
    v_cvt_pk_bf16_f32 v17, v17, v17
    ds_write_b32 v6, v16
    ds_write_b32 v6, v17 offset:32
    s_waitcnt lgkmcnt(0)
    ds_read_b128 v[16:19], v7
    ds_read_b128 v[20:23], v7 offset:16
    ds_read_b128 v[24:27], v7 offset:256
    ds_read_b128 v[28:31], v7 offset:272
    s_waitcnt lgkmcnt(0)""")
        a.selgemv(8, lambda pr, q: 16 + 8*pr + q, lambda q: 64 + 4*q, [40, 44])
        a(f"""    s_nop 7
    buffer_store_dwordx4 v[40:43], v48, s[36:39], s49 offen sc1
    buffer_store_dwordx4 v[44:47], v48, s[36:39], s50 offen sc1""")
        a("    s_branch L_scores")

    def scores(self):
        a = self
        a("; ---------------- scores\nL_scores:")
        if "vonly" in self.exp:
            a.stamp_dump(); a("    s_endpgm")
        a(f"""    v_and_b32 v2, 1, v1
    v_lshlrev_b32 v2, 9, v2
    v_lshrrev_b32 v3, 4, v1
    v_lshl_add_u32 v2, v3, 4, v2
    v_add_u32 v24, {LB + L_Q}, v2
    v_bfe_u32 v2, v1, 2, 2            ; jh
    v_and_b32 v3, 3, v1
    v_lshl_add_u32 v4, v2, 4, v3
    s_lshl_b32 s52, s3, 2
    v_add_u32 v4, s52, v4
    v_lshlrev_b32 v4, 9, v4
    v_lshrrev_b32 v5, 4, v1
    v_xor_b32 v5, v5, v3
    v_lshl_add_u32 v4, v5, 4, v4""")
        for m in range(4):
            a(f"    v_xor_b32 v5, {m}, v2\n    v_lshl_add_u32 v{16+m}, v5, 6, v4\n    v_add_u32 v{20+m}, 0x10000, v{16+m}")
        a(f"""    v_lshrrev_b32 v6, 2, v1
    s_and_b32 s52, s29, 15
    v_subrev_u32 v6, s52, v6
    v_and_b32 v6, 15, v6
    v_lshlrev_b32 v6, 2, v6
    v_and_b32 v7, 3, v1
    v_lshl_add_u32 v6, v7, 6, v6
    s_lshl_b32 s52, s3, 9
    s_add_u32 s52, s52, {LB + L_P}
    v_add_u32 v25, s52, v6
    s_lshl_b32 s52, s3, 3
    v_add_u32 v26, s52, v12
    s_mov_b32 s48, 0xffff0000
    s_mov_b32 s49, 0
    s_mov_b32 s50, 0
    s_mov_b32 s51, 0xffff
    s_mov_b32 s54, 0
    s_mov_b32 s55, 0xffff0000""")
        a.wait_flag(F_QRDY, 1, 4)
        a.stamp(6)
        for ks in range(8):
            a(f"    ds_read_b128 v[{64+4*ks}:{67+4*ks}], v24 offset:{64*ks}")
        a.wait_flag(F_KLAND, 4, 5)
        a.stamp(7)
        def kread(t, buf):
            for ks in range(8):
                m = ks & 3; hi = ks >> 2
                base = (16 if t < 2 else 20) + m
                off = (t & 1)*32768 + hi*256
                a(f"    ds_read_b128 v[{buf+4*ks}:{buf+4*ks+3}], v{base} offset:{off}")
        bufs = [96, 128]
        kread(0, bufs[0])
        for t in range(4):
            if t < 3:
                kread(t+1, bufs[(t+1) & 1])
                a("    s_waitcnt lgkmcnt(8)")
            else:
                a("    s_waitcnt lgkmcnt(0)")
            for ks in range(8):
                a.mfma(40 + 4*t, 64 + 4*ks, bufs[t & 1] + 4*ks, "0" if ks == 0 else None)
        a(f"""    s_nop 7
    v_cndmask_b32 v2, v40, v44, s[48:49]
    v_cndmask_b32 v3, v41, v45, s[48:49]
    v_cndmask_b32 v2, v2, v48, s[50:51]
    v_cndmask_b32 v3, v3, v49, s[50:51]
    v_cndmask_b32 v2, v2, v52, s[54:55]
    v_cndmask_b32 v3, v3, v53, s[54:55]
    v_cvt_pk_bf16_f32 v4, v2, v3
    v_lshlrev_b32 v2, 16, v4
    v_and_b32 v3, 0xffff0000, v4""")
        if self.dump:
            a(f"""    v_lshrrev_b32 v4, 2, v1
    v_lshlrev_b32 v4, 4, v4
    v_and_b32 v5, 3, v1
    v_add_u32 v4, v4, v5
    s_lshl_b32 s52, s3, 2
    v_add_u32 v4, s52, v4
    v_lshlrev_b32 v4, 2, v4
    s_lshl_b32 s52, s2, 11
    s_add_u32 s52, s52, {W_DUMP}
    buffer_store_dword v2, v4, s[36:39], s52 offen
    buffer_store_dword v3, v4, s[36:39], s52 offen offset:1024""")
        a("    v_mov_b32 v4, v2\n    v_mov_b32 v5, v3")
        a.reduce64("max_f32", [4, 5], [6, 7])
        a(f"""    s_mov_b64 exec, 1
    ds_write_b64 v26, v[4:5] offset:{L_SMMAX}
    s_waitcnt lgkmcnt(0)
    ds_add_u32 v12, v14 offset:{F_MAX}
    s_mov_b64 exec, -1""")
        a.wait_flag(F_MAX, 4, 6, sleep=0)
        a(f"""    ds_read_b128 v[16:19], v12 offset:{L_SMMAX}
    ds_read_b128 v[20:23], v12 offset:{L_SMMAX+16}
    s_waitcnt lgkmcnt(0)
    v_max3_f32 v4, v16, v18, v20
    v_max3_f32 v5, v17, v19, v21
    v_max_f32 v4, v4, v22             ; M0
    v_max_f32 v5, v5, v23             ; M1
    v_sub_f32 v2, v2, v4
    v_sub_f32 v3, v3, v5
    v_mul_f32 v2, {fbits(CEXP)}, v2
    v_mul_f32 v3, {fbits(CEXP)}, v3
    v_exp_f32 v2, v2
    v_exp_f32 v3, v3
    s_nop 0
    v_cvt_pk_bf16_f32 v16, v2, v2
    v_cvt_pk_bf16_f32 v17, v3, v3
    ds_write_b32 v25, v16
    ds_write_b32 v25, v17 offset:256""")
        a.reduce64("add_f32", [2, 3], [6, 7])
        a(f"""    s_mov_b64 exec, 1
    ds_write_b64 v26, v[2:3] offset:{L_SMSUM}
    s_waitcnt lgkmcnt(0)
    ds_add_rtn_u32 v13, v12, v14 offset:{F_PSUM}
    s_waitcnt lgkmcnt(0)
    s_mov_b64 exec, -1
    v_readfirstlane_b32 s58, v13
    s_cmp_eq_u32 s58, 3
    s_cbranch_scc0 L_noml""")
        a.get_epoch()
        a(f"""    ds_read_b128 v[16:19], v12 offset:{L_SMSUM}
    ds_read_b128 v[20:23], v12 offset:{L_SMSUM+16}
    v_and_b32 v6, 1, v1
    v_cmp_eq_u32 vcc, 1, v6
    v_lshrrev_b32 v7, 1, v1
    v_mul_u32_u24 v7, {8*REC}, v7
    v_lshl_add_u32 v6, v6, 4, v7
    s_mul_i32 s52, s32, {64*REC}
    s_mul_i32 s53, s30, {REC}
    s_add_u32 s52, s52, s53
    s_add_u32 s52, s52, {W_P3 + 512}
    s_waitcnt lgkmcnt(0)
    v_add_f32 v16, v16, v18
    v_add_f32 v17, v17, v19
    v_add_f32 v20, v20, v22
    v_add_f32 v21, v21, v23
    v_add_f32 v16, v16, v20           ; l0
    v_add_f32 v17, v17, v21           ; l1
    v_mov_b32 v18, s60
    v_mov_b32 v19, s61
    v_cndmask_b32 v17, v16, v17, vcc
    v_cndmask_b32 v16, v4, v5, vcc
    s_mov_b64 exec, 0xffff
    buffer_store_dwordx4 v[16:19], v6, s[36:39], s52 offen sc1
    s_mov_b64 exec, -1
L_noml:""")
        a(f"""    s_cmp_eq_u32 s3, 2
    s_cbranch_scc0 L_nof2
    s_cmp_ge_u32 s2, 224
    s_cbranch_scc1 L_nof2
    s_lshl_b32 s56, s2, 7
    s_add_u32 s56, s56, {W_F2}
    v_mov_b32 v4, s60
    v_mov_b32 v5, s61
    v_mov_b32 v6, 0
    s_waitcnt vmcnt(0)
    s_mov_b64 exec, 1
    buffer_store_dwordx2 v[4:5], v6, s[36:39], s56 offen sc1
    s_mov_b64 exec, -1
L_nof2:""")
        a.stamp(8)

    def tail_compute(self):
        a = self
        a.get_epoch()
        a(f"""    s_mov_b32 s44, s12
    s_mov_b32 s45, s13
    s_mov_b32 s46, 3670016
    s_mov_b32 s47, 0x20000
    v_lshrrev_b32 v2, 4, v1
    v_mul_u32_u24 v2, 896, v2
    v_and_b32 v3, 15, v1
    v_lshl_add_u32 v5, v3, 4, v2
    s_cmp_eq_u32 s3, 3
    s_cselect_b32 s54, 8, 16
    v_cmp_le_u32 vcc, s54, v3
    v_mov_b32 v6, {OOB}
    s_lshl_b32 s52, s28, 9
    s_lshl_b32 s53, s30, 5
    s_add_u32 s52, s52, s53
    s_mul_i32 s52, s52, 896
    s_lshl_b32 s53, s3, 8
    s_add_u32 s52, s52, s53
    v_cndmask_b32 v46, v5, v6, vcc
    v_add_u32 v47, 7168, v46""")
        for i in range(4):
            a(f"""    s_add_u32 s53, s31, {i}
    s_and_b32 s53, s53, 3
    s_mul_i32 s{40+i}, s53, 14336
    s_cmp_ge_u32 s53, 2
    s_cselect_b32 s53, 200704, 0
    s_add_u32 s{40+i}, s{40+i}, s53
    s_add_u32 s{40+i}, s{40+i}, s52""")
        a(f"""    ; o gather: lane (ph=l>>5, gi=l&31): producer p = k + 4ph
    v_lshrrev_b32 v2, 5, v1
    v_mul_u32_u24 v2, {4*REC}, v2
    v_and_b32 v3, 31, v1
    v_lshl_add_u32 v48, v3, 4, v2
    v_bfe_u32 v3, v1, 4, 1
    v_lshl_add_u32 v45, v3, 4, v2
    s_mul_i32 s48, s32, {64*REC}
    s_mul_i32 s53, s30, {8*REC}
    s_add_u32 s48, s48, s53
    s_add_u32 s48, s48, {W_P3}
    v_and_b32 v2, 1, v1
    v_lshlrev_b32 v2, 7, v2
    v_bfe_u32 v3, v1, 1, 4
    s_lshl_b32 s53, s31, 2
    v_subrev_u32 v3, s53, v3
    v_and_b32 v3, 15, v3
    v_lshl_add_u32 v2, v3, 2, v2
    s_lshl_b32 s53, s3, 8
    s_add_u32 s53, s53, {LB + L_OD}
    v_add_u32 v49, s53, v2
    v_lshrrev_b32 v3, 4, v1
    v_lshlrev_b32 v3, 6, v3
    v_add_u32 v50, s53, v3
    ; P4 store
    v_and_b32 v2, 15, v1
    v_lshlrev_b32 v2, 6, v2
    v_bfe_u32 v3, v1, 4, 1
    v_lshl_add_u32 v2, v3, 5, v2
    v_lshrrev_b32 v3, 5, v1
    v_lshl_add_u32 v51, v3, 4, v2
    v_and_b32 v3, 15, v1
    s_cmp_eq_u32 s3, 3
    s_cselect_b32 s54, 8, 16
    v_cmp_le_u32 vcc, s54, v3
    s_lshl_b32 s49, s31, 6
    s_lshl_b32 s53, s28, 3
    s_add_u32 s49, s49, s53
    s_add_u32 s49, s49, s30
    s_mul_i32 s49, s49, 3584
    s_lshl_b32 s53, s3, 10
    s_add_u32 s49, s49, s53
    s_add_u32 s49, s49, {W_P4}
    v_cndmask_b32 v51, v51, v6, vcc
    v_mov_b32 v54, s60
    v_mov_b32 v55, s61
    v_cmp_le_u32 s[50:51], 32, v1""")
        a.stamp(9)
        a("    s_barrier                         ; B1")
        a.stamp(10)
        for k in range(4):
            a(f"    buffer_load_dwordx4 v[{128+4*k}:{131+4*k}], v45, s[36:39], s48 offen offset:{REC*k + 512} sc1")
        for n in range(16):
            vo = "v46" if (n & 3) < 2 else "v47"
            if "nowo" in self.exp:
                a(f"    buffer_load_dword v{64+4*n}, v12, s[36:39], 0 offen")
                continue
            a(f"    buffer_load_dwordx4 v[{64+4*n}:{67+4*n}], {vo}, s[44:47], s{40 + (n >> 2)} offen offset:{3584*(n & 1)}{self.woflags}")
        a.stamp(11)
        a("    s_waitcnt vmcnt(16)")
        a.tagcheck([130, 134, 138, 142])
        lok = a.L("mlok")
        a(f"    s_cbranch_vccz {lok}")
        l = a.poll_begin("pml")
        for k in range(4):
            a(f"    buffer_load_dwordx4 v[{128+4*k}:{131+4*k}], v45, s[36:39], s48 offen offset:{REC*k + 512} sc1")
        a("    s_waitcnt vmcnt(0)")
        a.tagcheck([130, 134, 138, 142])
        a.poll_end(l, 10, sleep=2)
        a(f"{lok}:")
        if "tailst" in self.exp: a.stamp(1)
        a("""    v_max_f32 v144, v128, v132
    v_max_f32 v145, v136, v140
    v_max_f32 v144, v144, v145""")
        a.xrows("max_f32", [144], [145], which=("32",))
        for k in range(4):
            a(f"    v_sub_f32 v{146+k}, v{128+4*k}, v144")
        for k in range(4):
            a(f"    v_mul_f32 v{146+k}, {fbits(CEXP)}, v{146+k}")
        for k in range(4):
            a(f"    v_exp_f32 v{146+k}, v{146+k}")
        a("""    s_nop 0
    v_mul_f32 v150, v146, v129
    v_fmac_f32 v150, v147, v133
    v_fmac_f32 v150, v148, v137
    v_fmac_f32 v150, v149, v141""")
        a.xrows("add_f32", [150], [151], which=("32",))
        a("""    v_rcp_f32 v151, v150
    s_nop 0
    v_fma_f32 v152, -v150, v151, 1.0
    v_fmac_f32 v151, v152, v151""")
        for k in range(4):
            a(f"    v_mul_f32 v{146+k}, v{146+k}, v151")
        a.wait_flag(F_PUB, 1, 11, sleep=0)
        if "tailst" in self.exp:
            a.stamp(2)
            a("    s_waitcnt vmcnt(0)")
            a.stamp(3)
        l = a.poll_begin("po")
        for k in range(4):
            a(f"    buffer_load_dwordx4 v[{16+4*k}:{19+4*k}], v48, s[36:39], s48 offen offset:{REC*k} sc1")
        a("    s_waitcnt vmcnt(0)")
        a.tagcheck([18, 22, 26, 30])
        a.poll_end(l, 12, sleep=self.osleep)
        if "tailst" in self.exp: a("    s_lshl_b32 s78, s59, 0\n    s_mul_i32 s78, s78, 100\n    s_add_u32 s78, s78, s70")
        a.stamp(12)
        a(f"""    v_mul_f32 v16, v16, v146
    v_mul_f32 v17, v17, v146
    v_mul_f32 v24, v24, v148
    v_mul_f32 v25, v25, v148
    v_fmac_f32 v16, v20, v147
    v_fmac_f32 v17, v21, v147
    v_fmac_f32 v24, v28, v149
    v_fmac_f32 v25, v29, v149
    v_add_f32 v16, v16, v24
    v_add_f32 v17, v17, v25""")
        a.xrows("add_f32", [16, 17], [18, 19], which=("32",))
        a(f"""    v_cvt_pk_bf16_f32 v16, v16, v16
    v_cvt_pk_bf16_f32 v17, v17, v17
    s_mov_b32 exec_hi, 0
    ds_write_b32 v49, v16
    ds_write_b32 v49, v17 offset:64
    s_mov_b32 exec_hi, -1
    s_waitcnt lgkmcnt(0)
    ds_read_b128 v[16:19], v50
    ds_read_b128 v[20:23], v50 offset:16
    ds_read_b128 v[24:27], v50 offset:32
    ds_read_b128 v[28:31], v50 offset:48
    s_waitcnt lgkmcnt(0)""")
        a.selgemv(16, lambda pr, q: 16 + q, lambda q: 64 + 4*q, [40])
        a(f"""    s_nop 7
    v_cndmask_b32 v52, v40, v42, s[50:51]
    v_cndmask_b32 v53, v41, v43, s[50:51]
    buffer_store_dwordx4 v[52:55], v51, s[36:39], s49 offen sc1""")
        a.stamp(13)
        a.stamp_dump()
        a("    s_endpgm")

    def red8(self, v0, v1, t0, t1):
        a = self
        a(f"    s_nop 1\n    v_add_f32_dpp v{v0}, v{v0}, v{v0} row_ror:8 row_mask:0xf bank_mask:0xf\n    v_add_f32_dpp v{v1}, v{v1}, v{v1} row_ror:8 row_mask:0xf bank_mask:0xf")
        a.xrows("add_f32", [v0, v1], [t0, t1])

def generate(**kw):
    return Gen(**kw).build()

if __name__ == "__main__":
    import argparse
    ap = argparse.ArgumentParser()
    ap.add_argument("-o", default="recurrent_scan__sliding_block_cached__glu_gated_reglu__decode.s")
    ap.add_argument("--stamps", action="store_true")
    ap.add_argument("--dump", action="store_true")
    ap.add_argument("--thr", type=int, default=5)
    ap.add_argument("--khalf", type=int, default=20)
    ap.add_argument("--wsoff", type=lambda x: int(x, 0), default=0)
    ap.add_argument("--noprefetch", action="store_true")
    ap.add_argument("--exp", default="")
    ap.add_argument("--woflags", default=" nt")
    args = ap.parse_args()
    txt = generate(thr=args.thr, stamps=args.stamps, dump=args.dump, prefetch=not args.noprefetch,
                   exp=[e for e in args.exp.split(',') if e], woflags=args.woflags, khalf=args.khalf, wsoff=args.wsoff)
    open(args.o, "w").write(txt)
    print("wrote", args.o, len(txt))
```

```python
import sys, struct
sys.path.insert(0, "gen")
from asmlib import Asm

NAME = "recurrent_scan__sliding_block_cached__glu_gated_reglu__decode_kernel"

LB = 131072
F_KLAND, F_QRDY, F_MAX, F_PSUM, F_OW, F_XN, F_T1LAND, F_ERDY = 0, 4, 8, 12, 16, 20, 24, 28
L_E = 32
F_T1DONE, F_S1, F_KHALF, F_PUB = 40, 44, 48, 52
L_VERD = 56
L_SMMAX = 64
L_SMSUM = 96
L_Q = 256
L_P = 1280
L_H = 3328
L_OD = 3840
L_XN = 4864
L_OW = 12032
L_S1 = 20224
LDS_TOTAL = LB + L_S1 + 8192
W_EPOCH = 0
W_F1 = 0x1000
W_F2 = 0x9000
W_ML = 0x11000
W_XT = 0x14000
W_P1 = 0x20000
W_P2 = 0xA0000
W_P3 = 0x110000
W_P4 = 0x260000
W_STAMP = 0x380000
W_DUMP = 0x3A0000
WS_SIZE = 0x440000
REC = 512

LOG2E = 1.4426950408889634
CEXP = 0.0625 * LOG2E
def fbits(x): return "0x%08x" % struct.unpack("<I", struct.pack("<f", x))[0]
OOB = "0x7ffffff0"

class Gen:
    def __init__(self, thr=5, stamps=False, dump=False, timeout=1 << 16, prefetch=True, exp=(), woflags=" nt", khalf=20, wsoff=0):
        self.wsoff = wsoff
        self.a = Asm()
        self.thr = thr; self.stamps = stamps; self.dump = dump; self.timeout = timeout
        self.prefetch = prefetch; self.exp = set(exp); self.woflags = woflags; self.khalf = khalf
        self.uid = 0
        if 'p3plain' in self.exp: self.p3sf = ''
        else: self.p3sf = None
        self.tsf = ' sc1 nt' if 'tstnt' in self.exp else ' sc1'
        self.tgf = ' sc1 nt' if 'tldnt' in self.exp else ' sc1'
        self.sf = ' sc1' if 'nostnt' in self.exp else ' sc1 nt'
        self.gf = ' sc1' if 'noldnt' in self.exp else ' sc1 nt'
        self.osleep = 8 if 'osleep' in self.exp else 0
    def L(self, base):
        self.uid += 1
        return f"L_{base}_{self.uid}"
    def __call__(self, s): self.a(s)
    def stamp(self, i):
        if self.stamps: self(f"    s_memrealtime s[{70+2*i}:{71+2*i}]")
    def stamp_dump(self):
        if not self.stamps: return
        self(f"""    s_waitcnt lgkmcnt(0) vmcnt(0)
    s_lshl_b32 s52, s2, 3
    s_add_u32 s52, s52, s3
    s_lshl_b32 s52, s52, 6
    s_add_u32 s52, s52, {W_STAMP}
    s_mov_b64 exec, 1
    v_mov_b32 v2, s52""")
        for q in range(4):
            regs = [70 + 2*(4*q + r) if 4*q + r < 14 else 70 for r in range(4)]
            self(f"    v_mov_b32 v4, s{regs[0]}\n    v_mov_b32 v5, s{regs[1]}\n    v_mov_b32 v6, s{regs[2]}\n    v_mov_b32 v7, s{regs[3]}")
            self(f"    buffer_store_dwordx4 v[4:7], v2, s[36:39], 0 offen offset:{16*q}\n    s_nop 1")
    def signal(self, flag):
        self(f"""    s_mov_b64 exec, 1
    ds_add_u32 v12, v14 offset:{flag}
    s_mov_b64 exec, -1""")
    def wait_flag(self, flag, target, code, sleep=1):
        l = self.L("wf"); d = self.L("wfd")
        sl = f"    s_sleep {sleep}\n" if sleep else ""
        self(f"""    s_mov_b32 s59, 0
{l}:
    ds_read_b32 v13, v12 offset:{flag}
    s_waitcnt lgkmcnt(0)
    v_readfirstlane_b32 s58, v13
    s_cmp_ge_u32 s58, {target}
    s_cbranch_scc1 {d}
{sl}    s_add_u32 s59, s59, 1
    s_cmp_lt_u32 s59, {self.timeout}
    s_cbranch_scc1 {l}
    s_mov_b32 s57, {code}
    s_branch L_abort
{d}:""")
    def masks(self):
        self("""    v_and_b32 v2, 1, v1
    v_lshlrev_b32 v2, 4, v2
    v_mov_b32 v3, 0xffff
    v_lshlrev_b32 v2, v2, v3
    v_bfe_u32 v3, v1, 1, 2            ; (l>>1)&3
    v_cmp_eq_u32 vcc, 0, v3
    v_cmp_eq_u32 s[64:65], 1, v3
    v_cmp_eq_u32 s[66:67], 2, v3
    v_cmp_eq_u32 s[68:69], 3, v3
    s_nop 1
    v_cndmask_b32 v8, 0, v2, vcc
    v_cndmask_b32 v9, 0, v2, s[64:65]
    v_cndmask_b32 v10, 0, v2, s[66:67]
    v_cndmask_b32 v11, 0, v2, s[68:69]""")
    def sel(self, A, P):
        for r in range(4): self(f"    v_and_b32 v{A+r}, v{P}, v{8+r}")
    def mfma(self, D, A, B, C=None):
        c = f"v[{D}:{D+3}]" if C is None else C
        self(f"    v_mfma_f32_16x16x32_bf16 v[{D}:{D+3}], v[{A}:{A+3}], v[{B}:{B+3}], {c}")
    def selgemv(self, nq, Preg, Breg, accs, waits=None, A0=32, A1=36):
        seq = [(q, pr) for q in range(nq) for pr in range(len(accs))]
        Ab = [A0, A1]; first = set()
        self.sel(Ab[0], Preg(seq[0][1], seq[0][0]))
        for n, (q, pr) in enumerate(seq):
            if n + 1 < len(seq):
                q2, pr2 = seq[n+1]
                self.sel(Ab[(n+1) & 1], Preg(pr2, q2))
            else:
                self("    s_nop 1")
            if pr == 0 and waits is not None:
                w = waits(q)
                if w: self("    " + w)
            C = None
            if pr not in first:
                first.add(pr); C = "0"
            self.mfma(accs[pr], Ab[n & 1], Breg(q), C)
    def reduce64(self, op, regs, tmps):
        n = len(regs)
        pad = "    s_nop 1" if n == 1 else ("    s_nop 0" if n == 2 else None)
        for s in (8, 4, 2, 1):
            if pad: self(pad)
            for v in regs:
                self(f"    v_{op}_dpp v{v}, v{v}, v{v} row_ror:{s} row_mask:0xf bank_mask:0xf")
        self.xrows(op, regs, tmps)
    def xrows(self, op, regs, tmps, which=("16", "32")):
        for perm in which:
            for v, t in zip(regs, tmps): self(f"    v_mov_b32 v{t}, v{v}")
            self("    s_nop 1")
            for v, t in zip(regs, tmps): self(f"    v_permlane{perm}_swap_b32 v{v}, v{t}")
            self("    s_nop 1")
            for v, t in zip(regs, tmps): self(f"    v_{op} v{v}, v{v}, v{t}")
    def get_epoch(self):
        self.wait_flag(F_ERDY, 1, 20)
        self(f"""    ds_read_b64 v[2:3], v12 offset:{L_E}
    s_waitcnt lgkmcnt(0)
    v_readfirstlane_b32 s60, v2
    v_readfirstlane_b32 s61, v3""")
    def poll_begin(self, name):
        l = self.L(name)
        self(f"    s_mov_b32 s59, 0\n{l}:")
        return l
    def poll_end(self, l, code, sleep=2):
        d = self.L("pd")
        sl = f"    s_sleep {sleep}\n" if sleep else ""
        self(f"""    s_cbranch_vccz {d}
{sl}    s_add_u32 s59, s59, 1
    s_cmp_lt_u32 s59, {self.timeout}
    s_cbranch_scc1 {l}
    s_mov_b32 s57, {code}
    s_branch L_abort
{d}:""")
    def tagcheck(self, pairs):
        self(f"    v_cmp_ne_u64 vcc, s[60:61], v[{pairs[0]}:{pairs[0]+1}]")
        for p in pairs[1:]:
            self(f"    v_cmp_ne_u64 s[56:57], s[60:61], v[{p}:{p+1}]\n    s_or_b64 vcc, vcc, s[56:57]")

    def build(self):
        a = self
        hdr = open("recurrent_scan__sliding_block_cached__glu_gated_reglu__decode.s.ref").read().split("\n")
        for l in hdr:
            if l.startswith("; Override") or l.startswith("; grid=") or l.startswith("; @launch"): continue
            if l.startswith(";"): a(l)
            else: break
        a(f"; @launch grid=(256,1,1) block=(512,1,1) lds={LDS_TOTAL}")
        a('.amdgcn_target "amdgcn-amd-amdhsa--gfx950"')
        a(f".text\n.globl {NAME}\n.p2align 8\n.type {NAME},@function\n{NAME}:")
        a(f"""    s_cmp_ge_u32 s2, 256
    s_cbranch_scc1 L_end
    s_load_dwordx16 s[4:19], s[0:1], 0
    s_load_dwordx8 s[20:27], s[0:1], 64""")
        if self.prefetch:
            a(f"""    s_getpc_b64 s[52:53]
L_pc:
    s_lshr_b32 s54, s2, 3
    s_and_b32 s54, s54, 3
    s_lshl_b32 s54, s54, 12
    v_lshlrev_b32 v2, 3, v0
    v_add_u32 v2, s54, v2
    global_load_dwordx2 v[236:237], v2, s[52:53]""")
        a.stamp(0)
        a(f"""    v_and_b32 v1, 63, v0
    v_lshrrev_b32 v2, 6, v0
    v_lshlrev_b32 v3, 2, v1
    v_readfirstlane_b32 s3, v2
    v_mov_b32 v12, {LB}
    v_add_u32 v3, v12, v3
    v_mov_b32 v4, 0
    ds_write_b32 v3, v4
    v_mov_b32 v14, 1
    s_and_b32 s28, s2, 7              ; kvh
    s_lshr_b32 s29, s2, 3             ; r
    s_and_b32 s30, s29, 7             ; c
    s_lshr_b32 s31, s29, 3            ; b
    s_lshl_b32 s32, s31, 3
    s_add_u32 s32, s32, s28           ; grp
    s_mov_b32 s98, s2
    s_cmp_lt_u32 s98, 128
    s_mov_b32 s62, 3584
    s_cselect_b32 s62, 8192, s62
    s_cselect_b32 s53, 0, 128
    s_cmp_lt_u32 s98, 184
    s_cselect_b32 s53, s53, 184
    s_sub_u32 s53, s98, s53           ; u
    s_and_b32 s63, s53, 3             ; rb
    s_lshr_b32 s33, s53, 2            ; colblk
    s_getreg_b32 s99, hwreg(HW_REG_XCC_ID)
    s_waitcnt lgkmcnt(0)
    s_add_u32 s26, s26, @WSOFF@
    s_addc_u32 s27, s27, 0
    s_mov_b32 s36, s26
    s_mov_b32 s37, s27
    s_mov_b32 s38, {WS_SIZE}
    s_mov_b32 s39, 0x20000
    s_cmp_lt_u32 s3, 4
    s_cbranch_scc0 L_b0
    s_mov_b32 s40, s4
    s_mov_b32 s41, s5
    s_mov_b32 s42, 3584
    s_mov_b32 s43, 0x20000
    v_lshlrev_b32 v4, 4, v1
    s_mul_i32 s52, s3, 896
    v_add_u32 v4, s52, v4
    v_mov_b32 v5, {OOB}
    v_cmp_le_u32 vcc, 56, v1
    s_cmp_eq_u32 s3, 0
    s_cbranch_scc0 L_noep
    s_load_dwordx2 s[60:61], s[26:27], {W_EPOCH}
L_noep:
    v_cndmask_b32 v4, v4, v5, vcc
    buffer_load_dwordx4 v[16:19], v4, s[40:43], 0 offen
L_b0:
    s_barrier
    s_cmp_lt_u32 s3, 4
    s_cbranch_scc1 L_cw""")
        self.loader()
        a("L_cw:")
        if "nocomp" in self.exp:
            st = [e for e in self.exp if e.startswith("st_")]
            if st:
                _, n, fl, who = st[0].split("_")
                n = int(n); isld = fl.startswith("ld"); fl = {"sc1":" sc1", "pl":"", "nt":" nt", "sn":" sc1 nt", "ldsc1":" sc1", "ld":""}[fl]
                a("    s_cmp_eq_u32 s3, 0\n    s_cbranch_scc0 L_end")
                if who == "odd":
                    a("    s_and_b32 s52, s29, 1\n    s_cmp_eq_u32 s52, 1\n    s_cbranch_scc0 L_end")
                a.wait_flag(F_KHALF, 4, 50, sleep=4)
                a(f"    v_lshlrev_b32 v2, 4, v1\n    s_lshl_b32 s54, s2, 13\n    s_add_u32 s54, s54, {W_P3}")
                a.stamp(2)
                for i in range(n):
                    if isld:
                        a(f"    buffer_load_dwordx4 v[4:7], v2, s[36:39], s54 offen{fl}\n    s_add_u32 s54, s54, 1024")
                    else:
                        a(f"    buffer_store_dwordx4 v[4:7], v2, s[36:39], s54 offen{fl}\n    s_add_u32 s54, s54, 1024")
                a("    s_waitcnt vmcnt(0)")
                a.stamp(1)
                a.stamp_dump()
            a("    s_endpgm")
        self.stage1()
        self.w1()
        self.w2()
        self.scores()
        self.tail_compute()
        a("L_abort:")
        a(f"""    s_mov_b32 s40, s24
    s_mov_b32 s41, s25
    s_mov_b32 s42, 256
    s_mov_b32 s43, 0x20000
    s_mov_b64 exec, 1
    v_mov_b32 v2, s57
    v_mov_b32 v3, s2
    v_mov_b32 v4, 0
    buffer_store_dwordx2 v[2:3], v4, s[40:43], 0 offen
L_end:
    s_endpgm
L_codeend:
    .fill (16896 - (L_codeend - {NAME}))/4, 4, 0xbf810000
.section .rodata,"a"
.p2align 6
.amdhsa_kernel {NAME}
  .amdhsa_next_free_vgpr 240
  .amdhsa_next_free_sgpr 100
  .amdhsa_accum_offset 240
  .amdhsa_group_segment_fixed_size 0
  .amdhsa_kernarg_size 96
  .amdhsa_user_sgpr_count 2
  .amdhsa_user_sgpr_kernarg_segment_ptr 1
  .amdhsa_system_sgpr_workgroup_id_x 1
.end_amdhsa_kernel""")
        return self.a.text().replace("@NOPUB@", "0" if "nopub" in self.exp else "240").replace("@WSOFF@", str(self.wsoff)).replace("@XTST@", "buffer_store_dwordx4 v[20:23], v24, s[36:39], s52 offen sc1" if ("noxt" not in self.exp or "xtst" in self.exp) else "buffer_load_dword v25, v24, s[36:39], 0 offen")

    def loader(self):
        a = self; THR = self.thr
        a(f"""    s_setprio 3
    s_sub_u32 s35, s3, 4              ; w
    s_cmp_lt_u32 s98, 128
    s_cselect_b32 s40, s10, s16
    s_cselect_b32 s41, s11, s17
    s_mov_b32 s42, 1605632
    s_cselect_b32 s42, 3670016, s42
    s_cmp_lt_u32 s98, 184
    s_cselect_b32 s40, s40, s18
    s_cselect_b32 s41, s41, s19
    s_mov_b32 s43, 0x20000
    v_lshrrev_b32 v2, 4, v1           ; g
    v_and_b32 v3, 15, v1              ; j
    v_mul_lo_u32 v5, v2, s62
    v_lshl_add_u32 v5, v3, 4, v5
    s_mul_i32 s56, s63, 112
    s_lshl_b32 s52, s35, 2
    s_add_u32 s56, s56, s52
    s_mul_i32 s56, s56, s62
    s_lshl_b32 s52, s33, 8
    s_add_u32 s56, s56, s52
    s_cmp_ge_u32 s98, 240
    s_cselect_b32 s56, {OOB}, s56
    s_cselect_b32 s57, 0, s62
    s_lshl_b32 s57, s57, 4
    s_lshl_b32 s34, s29, 12           ; rotK
    s_lshl_b32 s52, s35, 10
    s_add_u32 s34, s34, s52           ; kpos0
    s_add_u32 s52, s34, {25*4096}""")
        for i in range(7):
            a(f"""    s_and_b32 s52, s52, 0x1ffff
    s_mov_b32 m0, s52
    s_add_u32 s52, s52, 4096
    buffer_load_dwordx4 v5, s[40:43], s56 offen nt lds
    s_add_u32 s56, s56, s57""")
        a(f"""    s_mov_b32 s44, s20
    s_mov_b32 s45, s21
    s_mov_b32 s46, 1605632
    s_mov_b32 s47, 0x20000
    v_mul_u32_u24 v6, 896, v2
    v_lshl_add_u32 v6, v3, 4, v6
    s_and_b32 s53, s2, 3              ; nb
    s_cmp_eq_u32 s53, 3
    s_cselect_b32 s54, 8, 16
    v_cmp_le_u32 vcc, s54, v3
    v_mov_b32 v7, {OOB}
    s_lshr_b32 s52, s2, 2             ; fb32
    s_mul_i32 s55, s52, 28672
    v_cndmask_b32 v6, v6, v7, vcc
    s_lshl_b32 s56, s53, 8
    s_add_u32 s55, s55, s56
    s_mul_i32 s56, s35, 3584
    s_add_u32 s55, s55, s56
    s_cmp_ge_u32 s2, 224
    s_cselect_b32 s55, {OOB}, s55
    s_lshl_b32 s56, s35, 10
    s_add_u32 s56, s56, {LB + L_OW}
    s_mov_b32 m0, s56
    s_add_u32 s56, s56, 4096
    buffer_load_dwordx4 v6, s[44:47], s55 offen nt lds
    s_mov_b32 m0, s56
    s_add_u32 s55, s55, 14336
    buffer_load_dwordx4 v6, s[44:47], s55 offen nt lds""")
        a(f"""    s_mov_b32 s40, s6
    s_mov_b32 s41, s7
    s_mov_b32 s42, 0x8000000
    s_mov_b32 s43, 0x20000
    s_lshl_b32 s33, s32, 22
    s_lshl_b32 s52, s30, 17
    s_add_u32 s33, s33, s52
    s_add_u32 s33, s33, 3145728
    v_lshrrev_b32 v3, 5, v1
    s_and_b32 s52, s35, 1
    s_lshl_b32 s52, s52, 1
    v_add_u32 v4, s52, v3
    v_and_b32 v5, 31, v1
    v_xor_b32 v5, v5, v4
    v_lshlrev_b32 v5, 4, v5
    v_lshl_add_u32 v2, v3, 9, v5
    s_mov_b32 s52, s34""")
        a.stamp(7)
        def kloop(n):
            if n <= 0: return
            l = a.L("k")
            a(f"""    s_mov_b32 s54, {n}
{l}:
    s_and_b32 s52, s52, 0x1ffff
    s_lshr_b32 s55, s52, 7
    s_and_b32 s55, s55, 0xc0
    v_xor_b32 v3, s55, v2
    s_mov_b32 m0, s52
    s_add_u32 s56, s52, s33
    s_waitcnt vmcnt({THR})
    buffer_load_dwordx4 v3, s[40:43], s56 offen nt lds
    s_add_u32 s52, s52, 4096
    s_sub_u32 s54, s54, 1
    s_cmp_lg_u32 s54, 0
    s_cbranch_scc1 {l}""")
        n0 = max(THR - 2, 1)
        kloop(n0)
        a(f"    s_waitcnt vmcnt({n0 + 2})")
        a.signal(F_T1LAND)
        kloop(self.khalf - n0)
        a.signal(F_KHALF)
        kloop(25 - self.khalf)
        if "nocomp" not in self.exp: a.wait_flag(F_T1DONE, 4, 30)
        kloop(7)
        a.stamp(1)
        a(f"""    s_mov_b32 s44, s8
    s_mov_b32 s45, s9
    s_mov_b32 s46, 0x8000000
    s_mov_b32 s47, 0x20000
    v_lshrrev_b32 v3, 4, v1
    v_and_b32 v4, 15, v1
    v_lshlrev_b32 v4, 4, v4
    v_lshl_add_u32 v6, v3, 9, v4      ; V voffset
    s_and_b32 s52, s29, 15
    s_lshl_b32 s52, s52, 13
    s_lshl_b32 s53, s35, 11
    s_add_u32 s52, s52, s53""")
        VB = 64; m = 0
        for n in range(16):
            a("    s_and_b32 s52, s52, 0x1ffff\n    s_add_u32 s56, s52, s33")
            for hf in range(2):
                a(f"    s_waitcnt vmcnt({THR})")
                if m == THR:
                    a.signal(F_KLAND); a.stamp(2)
                r = VB + 8*n + 4*hf
                a(f"    buffer_load_dwordx4 v[{r}:{r+3}], v6, s[44:47], s56 offen offset:{256*hf} nt")
                m += 1
            if n < 15: a("    s_add_u32 s52, s52, 8192")
        a.stamp(3)
        if "nocomp" in self.exp or "vonly" in self.exp:
            a("    s_waitcnt vmcnt(0)"); a.stamp(4); a.stamp_dump(); a("    s_endpgm")
        a.masks()
        a(f"""    v_bfe_u32 v2, v1, 3, 1
    v_lshlrev_b32 v2, 8, v2
    v_lshrrev_b32 v3, 4, v1
    v_lshl_add_u32 v2, v3, 6, v2
    s_lshl_b32 s52, s35, 9
    s_add_u32 s52, s52, {LB + L_P}
    v_add_u32 v2, s52, v2             ; P address
    v_lshlrev_b32 v48, 4, v1
    s_lshl_b32 s52, s35, 11
    s_add_u32 s52, s52, {LB + L_OW}
    v_add_u32 v49, s52, v48
    v_add_u32 v48, {LB + L_OW}, v48
    v_bfe_u32 v5, v1, 2, 2
    v_mul_u32_u24 v5, {8*REC}, v5
    v_lshrrev_b32 v6, 5, v1
    v_lshl_add_u32 v5, v6, 7, v5
    v_and_b32 v6, 3, v1
    v_lshl_add_u32 v5, v6, 5, v5
    v_bfe_u32 v6, v1, 4, 1
    v_lshl_add_u32 v51, v6, 4, v5
    s_mul_i32 s44, s32, {64*REC}
    s_mul_i32 s45, s30, {REC}
    s_add_u32 s44, s44, s45
    s_add_u32 s44, s44, {W_P3}
    s_add_u32 s45, s44, {32*REC}
    s_barrier                         ; B1""")
        a.stamp(4)
        for i in range(4):
            a(f"    ds_read_b128 v[{16+4*i}:{19+4*i}], v2 offset:{16*i}")
        a(f"    ds_read_b64 v[4:5], v12 offset:{L_E}\n    ds_read_b32 v6, v12 offset:{L_VERD}")
        a("    s_waitcnt lgkmcnt(0)\n    v_readfirstlane_b32 s97, v6")
        for q in range(4):
            a(f"    v_mov_b32 v{198+4*q}, v4\n    v_mov_b32 v{199+4*q}, v5")
        a("    v_readfirstlane_b32 s60, v4\n    v_readfirstlane_b32 s61, v5")
        Ab = [32, 36]
        a.sel(Ab[0], 16)
        for n in range(16):
            if n < 15: a.sel(Ab[(n+1) & 1], 16 + n + 1)
            a(f"    s_waitcnt vmcnt({30 - 2*n})")
            c = "0" if n == 0 else None
            a.mfma(40, Ab[n & 1], VB + 8*n, c)
            a.mfma(44, Ab[n & 1], VB + 8*n + 4, c)
        a.stamp(5)
        a(f"""    s_nop 7
    ds_write_b128 v49, v[40:43]
    ds_write_b128 v49, v[44:47] offset:1024
    s_waitcnt lgkmcnt(0)
    s_mov_b64 exec, 1
    ds_add_rtn_u32 v13, v12, v14 offset:{F_OW}
    s_mov_b64 exec, -1
    s_waitcnt lgkmcnt(0)
    v_readfirstlane_b32 s58, v13
    s_cmp_eq_u32 s58, 3
    s_cbranch_scc0 L_vfin""")
        for w in range(4):
            for hf in range(2):
                r = 64 + 8*w + 4*hf
                a(f"    ds_read_b128 v[{r}:{r+3}], v48 offset:{2048*w + 1024*hf}")
        a("    s_waitcnt lgkmcnt(0)")
        for i in range(8):
            a(f"    v_add_f32 v{64+i}, v{64+i}, v{72+i}\n    v_add_f32 v{80+i}, v{80+i}, v{88+i}")
        for i in range(8):
            dst = 196 + 4*(i >> 1) + (i & 1)
            a(f"    v_add_f32 v{dst}, v{64+i}, v{80+i}")
        a(f"""    s_cmp_eq_u32 s97, 1
    s_cbranch_scc1 L_p3loc
    buffer_store_dwordx4 v[196:199], v51, s[36:39], s44 offen sc1
    buffer_store_dwordx4 v[200:203], v51, s[36:39], s44 offen offset:256 sc1
    buffer_store_dwordx4 v[204:207], v51, s[36:39], s45 offen sc1
    buffer_store_dwordx4 v[208:211], v51, s[36:39], s45 offen offset:256 sc1
    s_branch L_p3done
L_p3loc:
    buffer_store_dwordx4 v[196:199], v51, s[36:39], s44 offen
    buffer_store_dwordx4 v[200:203], v51, s[36:39], s44 offen offset:256
    buffer_store_dwordx4 v[204:207], v51, s[36:39], s45 offen
    buffer_store_dwordx4 v[208:211], v51, s[36:39], s45 offen offset:256
L_p3done:""")
        a.signal(F_PUB)
        a.stamp(6)
        a("L_vfin:")
        if "nofin" in self.exp: a("    s_branch L_vend")
        a(f"""    s_cmp_eq_u32 s3, 7
    s_cbranch_scc0 L_vend
    s_cmp_ge_u32 s2, 112
    s_cbranch_scc1 L_vend
    s_mul_i32 s62, s2, 2341
    s_lshr_b32 s62, s62, 16           ; b_f
    s_mul_i32 s63, s62, 28
    s_sub_u32 s63, s2, s63            ; nbk
    s_lshr_b32 s52, s63, 3
    s_lshl_b32 s52, s52, 7
    s_add_u32 s52, s52, {W_F2}
    v_lshlrev_b32 v4, 9, v1           ; k*4*128
    s_mul_i32 s53, s62, 448
    s_lshl_b32 s54, s63, 4
    s_add_u32 s53, s53, s54           ; b_f*448 + 16nbk
    s_mov_b32 s40, s4
    s_mov_b32 s41, s5
    s_mov_b32 s42, 3584
    s_mov_b32 s43, 0x20000
    s_lshl_b32 s48, s53, 1
    v_and_b32 v3, 7, v1
    v_lshlrev_b32 v2, 2, v3
    buffer_load_dword v30, v2, s[40:43], s48 offen      ; x: 2 bf16
    v_lshrrev_b32 v5, 3, v1
    v_mul_u32_u24 v6, 7168, v5
    v_lshl_add_u32 v6, v3, 3, v6      ; P2 voffset
    v_mul_u32_u24 v7, 3584, v5
    v_lshl_add_u32 v7, v3, 4, v7      ; P4 voffset
    s_mov_b32 exec_hi, 0x00ffffff""")
        l = a.poll_begin("pf")
        a(f"""    buffer_load_dwordx2 v[2:3], v4, s[36:39], s52 offen sc1
    s_waitcnt vmcnt(0)
    v_cmp_ne_u64 vcc, s[60:61], v[2:3]""")
        a.poll_end(l, 8, sleep=2)
        a(f"""    s_mov_b32 exec_hi, -1
    s_lshl_b32 s53, s53, 2
    s_add_u32 s53, s53, {W_P2}""")
        for k in range(7):
            a(f"    buffer_load_dwordx2 v[{16+2*k}:{17+2*k}], v6, s[36:39], s53 offen{self.gf}")
            if k < 6: a(f"    s_add_u32 s53, s53, {8*7168}")
        a(f"""    s_mul_i32 s52, s62, {64*3584}
    s_lshl_b32 s53, s63, 7
    s_add_u32 s52, s52, s53
    s_add_u32 s52, s52, {W_P4}
    s_mov_b32 s40, s22
    s_mov_b32 s41, s23
    s_waitcnt vmcnt(0)
    v_add_f32 v16, v16, v18
    v_add_f32 v17, v17, v19
    v_add_f32 v20, v20, v22
    v_add_f32 v21, v21, v23
    v_add_f32 v24, v24, v26
    v_add_f32 v25, v25, v27
    v_add_f32 v16, v16, v20
    v_add_f32 v17, v17, v21
    v_add_f32 v24, v24, v28
    v_add_f32 v25, v25, v29
    v_add_f32 v16, v16, v24
    v_add_f32 v17, v17, v25""")
        self.red8(16, 17, 18, 19)
        a(f"""    v_cvt_pk_bf16_f32 v20, v16, v17
    v_lshlrev_b32 v16, 16, v20
    v_and_b32 v17, 0xffff0000, v20
    v_mul_f32 v20, {fbits(-LOG2E)}, v16
    v_mul_f32 v21, {fbits(-LOG2E)}, v17
    v_exp_f32 v20, v20
    v_exp_f32 v21, v21
    s_nop 0
    v_add_f32 v20, 1.0, v20
    v_add_f32 v21, 1.0, v21
    v_rcp_f32 v20, v20
    v_rcp_f32 v21, v21
    s_nop 0
    v_mul_f32 v16, v16, v20
    v_mul_f32 v17, v17, v21
    v_cvt_pk_bf16_f32 v20, v16, v17
    v_lshlrev_b32 v32, 16, v20
    v_and_b32 v33, 0xffff0000, v20      ; g
    v_lshlrev_b32 v34, 16, v30
    v_and_b32 v35, 0xffff0000, v30      ; x""")
        a.stamp(8)
        l = a.poll_begin("pz")
        a("    s_mov_b32 s53, s52")
        for k in range(8):
            a(f"    buffer_load_dwordx4 v[{64+4*k}:{67+4*k}], v7, s[36:39], s53 offen{self.tgf}")
            if k < 7: a(f"    s_add_u32 s53, s53, {8*3584}")
        a("    s_waitcnt vmcnt(0)")
        a.tagcheck([66 + 4*k for k in range(8)])
        a.poll_end(l, 13, sleep=0)
        a.stamp(9)
        for k in range(0, 8, 2):
            a(f"    v_add_f32 v{64+4*k}, v{64+4*k}, v{68+4*k}\n    v_add_f32 v{65+4*k}, v{65+4*k}, v{69+4*k}")
        a("""    v_add_f32 v64, v64, v72
    v_add_f32 v65, v65, v73
    v_add_f32 v80, v80, v88
    v_add_f32 v81, v81, v89
    v_add_f32 v16, v64, v80
    v_add_f32 v17, v65, v81""")
        self.red8(16, 17, 18, 19)
        a(f"""    v_cvt_pk_bf16_f32 v20, v16, v17
    v_lshlrev_b32 v16, 16, v20
    v_and_b32 v17, 0xffff0000, v20
    v_mul_f32 v16, v16, v32
    v_mul_f32 v17, v17, v33
    v_cvt_pk_bf16_f32 v20, v16, v17
    v_lshlrev_b32 v16, 16, v20
    v_and_b32 v17, 0xffff0000, v20
    v_add_f32 v16, v16, v34
    v_add_f32 v17, v17, v35
    v_cvt_pk_bf16_f32 v20, v16, v17
    v_lshlrev_b32 v2, 2, v1
    s_mov_b64 exec, 0xff
    buffer_store_dword v20, v2, s[40:43], s48 offen
    s_cmp_eq_u32 s2, 111
    s_cbranch_scc0 L_vend
    s_mov_b64 exec, 1
    v_mov_b32 v2, s60
    v_mov_b32 v3, s61
    v_mov_b32 v4, 0
    buffer_store_dwordx2 v[2:3], v4, s[36:39], 0 offen sc1""")
        a("L_vend:\n    s_mov_b64 exec, -1")
        a.stamp(10)
        a.stamp_dump()
        a("    s_endpgm")

    def stage1(self):
        a = self
        a.masks()
        a(f"""    s_mul_i32 s52, s3, 1792
    s_add_u32 s52, s52, {LB + L_XN}
    v_lshlrev_b32 v6, 3, v1
    v_add_u32 v6, s52, v6
    v_bfe_u32 v2, v1, 3, 1
    v_lshlrev_b32 v2, 2, v2
    v_lshrrev_b32 v3, 4, v1
    v_add_u32 v2, v2, v3
    v_mul_u32_u24 v2, 448, v2
    s_mul_i32 s52, s63, 112
    s_lshl_b32 s53, s3, 2
    s_add_u32 s52, s52, s53
    s_add_u32 s52, s52, {LB + L_XN}
    v_add_u32 v7, s52, v2
    s_cmp_eq_u32 s3, 0
    s_cbranch_scc0 L_noep2
    s_waitcnt lgkmcnt(0)
    s_add_u32 s60, s60, 1
    s_addc_u32 s61, s61, 0
    v_mov_b32 v2, s60
    v_mov_b32 v3, s61
    ds_write_b64 v12, v[2:3] offset:{L_E}
    v_mov_b32 v20, s99
    v_mov_b32 v21, 0
    v_mov_b32 v22, s60
    v_mov_b32 v23, s61
    s_lshl_b32 s52, s28, 12
    s_lshl_b32 s53, s29, 7
    s_add_u32 s52, s52, s53
    s_add_u32 s52, s52, {W_XT}
    v_mov_b32 v24, 0
    s_mov_b64 exec, 1
    @XTST@
    s_mov_b64 exec, -1
    s_waitcnt lgkmcnt(0)""")
        a.signal(F_ERDY)
        a("L_noep2:")
        a(f"""    s_lshl_b32 s52, s29, 12
    s_lshl_b32 s53, s3, 10
    s_add_u32 s52, s52, s53
    s_add_u32 s52, s52, {25*4096}
    v_lshlrev_b32 v2, 4, v1""")
        for i in range(7):
            a(f"    s_and_b32 s52, s52, 0x1ffff\n    v_add_u32 v{96+i}, s52, v2\n    s_add_u32 s52, s52, 4096")
        a(f"""    s_lshl_b32 s52, s3, 11
    s_add_u32 s52, s52, {LB + L_S1}
    v_add_u32 v103, s52, v2""")
        a("    s_cmp_eq_u32 s3, 0\n    s_cbranch_scc1 L_xw0\n    s_waitcnt vmcnt(0)\n    s_branch L_xw1\nL_xw0:\n    s_waitcnt vmcnt(1)\nL_xw1:")
        a.stamp(1)
        for d in range(4):
            a(f"    v_lshlrev_b32 v{20+2*d}, 16, v{16+d}\n    v_and_b32 v{21+2*d}, 0xffff0000, v{16+d}")
        a("""    v_add_f32 v2, v20, v21
    v_add_f32 v3, v22, v23
    v_add_f32 v4, v24, v25
    v_add_f32 v5, v26, v27
    v_add_f32 v2, v2, v3
    v_add_f32 v4, v4, v5
    v_add_f32 v2, v2, v4""")
        a.reduce64("add_f32", [2], [3])
        a(f"""    v_mul_f32 v2, {fbits(1.0/448)}, v2      ; mean (f32)
    v_mov_b32 v4, 0
    v_mov_b32 v5, 0
    s_mov_b32 exec_hi, 0x00ffffff""")
        for i in range(8):
            a(f"    v_sub_f32 v{28+i}, v{20+i}, v2")
        for i in range(0, 8, 2):
            a(f"    v_fmac_f32 v4, v{28+i}, v{28+i}\n    v_fmac_f32 v5, v{29+i}, v{29+i}")
        a("    s_mov_b32 exec_hi, -1\n    v_add_f32 v4, v4, v5")
        a.reduce64("add_f32", [4], [3])
        a(f"""    v_mul_f32 v4, {fbits(1.0/448)}, v4      ; var
    v_cvt_pk_bf16_f32 v3, v2, v4
    v_lshlrev_b32 v2, 16, v3          ; m_bf
    v_and_b32 v4, 0xffff0000, v3      ; v_bf
    v_add_f32 v4, {fbits(1e-5)}, v4
    v_cvt_pk_bf16_f32 v4, v4, v4
    v_and_b32 v4, 0xffff0000, v4
    v_sqrt_f32 v4, v4""")
        for i in range(8):
            a(f"    v_sub_f32 v{20+i}, v{20+i}, v2")
        a(f"""    v_cvt_pk_bf16_f32 v4, v4, v4
    v_and_b32 v4, 0xffff0000, v4      ; s
    v_rcp_f32 v5, v4""")
        for d in range(4):
            a(f"    v_cvt_pk_bf16_f32 v{16+d}, v{20+2*d}, v{21+2*d}")
        for d in range(4):
            a(f"    v_lshlrev_b32 v{20+2*d}, 16, v{16+d}\n    v_and_b32 v{21+2*d}, 0xffff0000, v{16+d}")
        for i in range(8): a(f"    v_mul_f32 v{28+i}, v{20+i}, v5")
        for i in range(8): a(f"    v_fma_f32 v{20+i}, -v{28+i}, v4, v{20+i}")
        for i in range(8): a(f"    v_fmac_f32 v{28+i}, v{20+i}, v5")
        for g in range(4):
            a(f"    v_cvt_pk_bf16_f32 v{40+2*g}, v{28+g}, v{28+g}\n    v_cvt_pk_bf16_f32 v{41+2*g}, v{32+g}, v{32+g}")
        a("    s_mov_b32 exec_hi, 0x00ffffff")
        for g in range(4):
            a(f"    ds_write_b64 v6, v[{40+2*g}:{41+2*g}] offset:{448*g}")
        a("    s_mov_b32 exec_hi, -1\n    s_waitcnt lgkmcnt(0)")
        a.signal(F_XN)
        a.stamp(2)
        a.wait_flag(F_XN, 4, 21, sleep=0)
        for pr in range(2):
            for i in range(7):
                a(f"    ds_read_b32 v{48+7*pr+i}, v7 offset:{pr*3584 + 16*i}")
        a.wait_flag(F_T1LAND, 4, 22, sleep=0)
        a.stamp(3)
        for i in range(7):
            a(f"    ds_read_b128 v[{64+4*i}:{67+4*i}], v{96+i}")
        a("    s_waitcnt lgkmcnt(0)")
        a.signal(F_T1DONE)
        a.selgemv(7, lambda pr, q: 48 + 7*pr + q, lambda q: 64 + 4*q, [40, 44])
        a(f"""    s_nop 7
    ds_write_b128 v103, v[40:43]
    ds_write_b128 v103, v[44:47] offset:1024
    s_waitcnt lgkmcnt(0)""")
        a.signal(F_S1)
        a.stamp(4)
        a(f"""    s_cmp_eq_u32 s3, 1
    s_cbranch_scc1 L_w1
    s_cmp_eq_u32 s3, 2
    s_cbranch_scc1 L_w2
    s_cmp_eq_u32 s3, 3
    s_cbranch_scc1 L_scores
    s_cmp_ge_u32 s98, @NOPUB@
    s_cbranch_scc1 L_w0v
    v_lshlrev_b32 v2, 4, v1
    v_add_u32 v2, {LB + L_S1}, v2
    v_lshrrev_b32 v4, 5, v1
    v_lshlrev_b32 v4, 9, v4
    v_and_b32 v3, 15, v1
    v_lshl_add_u32 v4, v3, 5, v4
    v_bfe_u32 v3, v1, 4, 1
    v_lshl_add_u32 v4, v3, 4, v4
    s_lshl_b32 s54, s98, 11
    s_add_u32 s54, s54, {W_P1}""")
        a.wait_flag(F_S1, 4, 23, sleep=0)
        for w in range(4):
            for pr in range(2):
                r = 64 + 8*w + 4*pr
                a(f"    ds_read_b128 v[{r}:{r+3}], v2 offset:{2048*w + 1024*pr}")
        a("    s_waitcnt lgkmcnt(0)")
        for i in range(8):
            a(f"    v_add_f32 v{64+i}, v{64+i}, v{72+i}\n    v_add_f32 v{80+i}, v{80+i}, v{88+i}")
        for i in range(8):
            a(f"    v_add_f32 v{64+i}, v{64+i}, v{80+i}")
        a(f"""    s_lshl_b32 s55, s98, 7
    s_add_u32 s55, s55, {W_F1}
    v_mov_b32 v2, s60
    v_mov_b32 v3, s61
    v_mov_b32 v5, 0
    buffer_store_dwordx4 v[64:67], v4, s[36:39], s54 offen{self.sf}
    buffer_store_dwordx4 v[68:71], v4, s[36:39], s54 offen offset:1024{self.sf}
    s_waitcnt vmcnt(0)
    s_mov_b64 exec, 1
    buffer_store_dwordx2 v[2:3], v5, s[36:39], s55 offen sc1
    s_mov_b64 exec, -1""")
        a.stamp(5)
        a("L_w0v:")
        a("    s_branch L_scores")

    def verdict(self):
        a = self
        a(f"""    s_waitcnt vmcnt(0)
    s_mov_b64 exec, 0xff
    v_cmp_ne_u64 vcc, s[60:61], v[110:111]
    v_cmp_ne_u32 s[56:57], s99, v108
    s_mov_b64 exec, -1
    s_or_b64 vcc, vcc, s[56:57]
    s_cmp_eq_u64 vcc, 0
    s_cselect_b32 s97, 1, 0""")
        if "forceslow" in self.exp: a("    s_mov_b32 s97, 0")
        a(f"    v_mov_b32 v13, s97\n    ds_write_b32 v12, v13 offset:{L_VERD}\n    s_waitcnt lgkmcnt(0)")

    def w1(self):
        a = self
        a("; ---------------- W1\nL_w1:")
        if "now1" in self.exp: a("    s_branch L_scores")
        a.get_epoch()
        a(f"""    v_lshlrev_b32 v4, 7, v1
    s_lshl_b32 s54, s28, 11
    s_add_u32 s54, s54, {W_F1}
    v_lshrrev_b32 v5, 4, v1
    v_lshlrev_b32 v5, 13, v5
    v_and_b32 v3, 15, v1
    v_lshl_add_u32 v5, v3, 5, v5
    s_lshl_b32 s52, s28, 15
    s_lshl_b32 s53, s31, 9
    s_add_u32 s52, s52, s53
    s_add_u32 s52, s52, {W_P1}
    s_add_u32 s53, s52, 4096
    v_lshlrev_b32 v6, 4, v1
    v_add_u32 v6, {LB + L_Q}, v6""")
        a.wait_flag(F_KHALF, 4, 40, sleep=4)
        a("    s_mov_b64 exec, 0xffff")
        l = a.poll_begin("pq")
        a(f"""    buffer_load_dwordx2 v[2:3], v4, s[36:39], s54 offen sc1
    s_waitcnt vmcnt(0)
    v_cmp_ne_u64 vcc, s[60:61], v[2:3]""")
        a.poll_end(l, 2, sleep=8)
        a("    s_mov_b64 exec, -1")
        a.stamp(5)
        for rb in range(4):
            so = "s52" if rb < 2 else "s53"
            for hf in range(2):
                r = 16 + 8*rb + 4*hf
                a(f"    buffer_load_dwordx4 v[{r}:{r+3}], v5, s[36:39], {so} offen offset:{(rb&1)*2048 + hf*16}{self.gf}")
        a("    s_waitcnt vmcnt(0)")
        for i in range(8): a(f"    v_add_f32 v{16+i}, v{16+i}, v{24+i}\n    v_add_f32 v{32+i}, v{32+i}, v{40+i}")
        for i in range(8): a(f"    v_add_f32 v{16+i}, v{16+i}, v{32+i}")
        for i in range(4): a(f"    v_cvt_pk_bf16_f32 v{24+i}, v{16+2*i}, v{17+2*i}")
        a(f"""    ds_write_b128 v6, v[24:27]
    s_waitcnt lgkmcnt(0)""")
        a.signal(F_QRDY)
        a("    s_branch L_scores")

    def w2(self):
        a = self
        a("; ---------------- W2\nL_w2:")
        if "now2" in self.exp: a("    s_branch L_scores")
        a(f"""    s_cmp_ge_u32 s2, 224
    s_cbranch_scc1 L_scores""")
        a.get_epoch()
        a(f"""    s_lshr_b32 s52, s2, 2             ; fb32
    s_and_b32 s53, s2, 3              ; nb
    v_lshrrev_b32 v2, 2, v1
    v_mul_u32_u24 v2, 56, v2
    v_and_b32 v3, 3, v1
    v_add_u32 v2, v2, v3
    v_lshlrev_b32 v4, 7, v2
    s_lshr_b32 s54, s52, 2            ; cbk
    s_lshl_b32 s55, s54, 2
    s_add_u32 s55, s55, 128
    s_lshl_b32 s48, s55, 7
    s_add_u32 s48, s48, {W_F1}
    v_lshrrev_b32 v5, 4, v1
    v_lshlrev_b32 v5, 9, v5
    v_and_b32 v3, 15, v1
    v_lshl_add_u32 v5, v3, 3, v5
    s_lshl_b32 s55, s55, 11
    s_and_b32 s56, s52, 3
    s_lshl_b32 s56, s56, 7
    s_add_u32 s55, s55, s56
    s_add_u32 s44, s55, {W_P1}
    s_add_u32 s45, s44, 4096
    s_add_u32 s46, s44, {56*2048}
    s_add_u32 s47, s46, 4096
    v_lshrrev_b32 v6, 4, v1
    v_lshlrev_b32 v6, 7, v6
    v_and_b32 v3, 1, v1
    v_lshl_add_u32 v6, v3, 6, v6
    v_bfe_u32 v3, v1, 1, 3
    v_lshl_add_u32 v6, v3, 2, v6
    v_add_u32 v6, {LB + L_H}, v6
    v_bfe_u32 v7, v1, 3, 1
    v_lshlrev_b32 v7, 7, v7
    v_lshrrev_b32 v3, 4, v1
    v_lshl_add_u32 v7, v3, 5, v7
    v_add_u32 v7, {LB + L_H}, v7
    v_lshlrev_b32 v15, 4, v1
    v_add_u32 v15, {LB + L_OW}, v15
    ; P2 address
    v_lshrrev_b32 v48, 5, v1
    v_mul_u32_u24 v48, 1792, v48
    v_and_b32 v3, 15, v1
    v_lshl_add_u32 v48, v3, 5, v48
    v_bfe_u32 v49, v1, 4, 1
    v_lshl_add_u32 v48, v49, 4, v48
    s_cmp_eq_u32 s53, 3
    s_cselect_b32 s54, 8, 16
    v_cmp_le_u32 vcc, s54, v3
    v_mov_b32 v49, {OOB}
    s_mul_i32 s49, s52, 7168
    s_lshl_b32 s55, s53, 9
    s_add_u32 s49, s49, s55
    s_add_u32 s49, s49, {W_P2}
    s_add_u32 s50, s49, 3584
    v_cndmask_b32 v48, v48, v49, vcc""")
        a.wait_flag(F_KHALF, 4, 41, sleep=4)
        for q in range(8):
            a(f"    ds_read_b128 v[{64+4*q}:{67+4*q}], v15 offset:{1024*q}")
        a("    s_mov_b64 exec, 0xff")
        l = a.poll_begin("pm")
        a(f"""    buffer_load_dwordx2 v[2:3], v4, s[36:39], s48 offen sc1
    s_waitcnt vmcnt(0)
    v_cmp_ne_u64 vcc, s[60:61], v[2:3]""")
        a.poll_end(l, 3, sleep=8)
        a("    s_mov_b64 exec, -1")
        a.stamp(5)
        for m in range(2):
            for rb in range(4):
                so = ["s44", "s45", "s46", "s47"][2*m + (rb >> 1)]
                r = 16 + 8*m + 2*rb
                a(f"    buffer_load_dwordx2 v[{r}:{r+1}], v5, s[36:39], {so} offen offset:{(rb&1)*2048}{self.gf}")
        a("    s_waitcnt vmcnt(0)")
        for m in range(2):
            b0 = 16 + 8*m
            for e in range(2):
                a(f"    v_add_f32 v{b0+e}, v{b0+e}, v{b0+2+e}\n    v_add_f32 v{b0+4+e}, v{b0+4+e}, v{b0+6+e}")
            for e in range(2):
                a(f"    v_add_f32 v{b0+e}, v{b0+e}, v{b0+4+e}")
        a(f"""    v_cvt_pk_bf16_f32 v2, v16, v17
    v_cvt_pk_bf16_f32 v3, v24, v25
    v_lshlrev_b32 v16, 16, v2
    v_and_b32 v17, 0xffff0000, v2
    v_lshlrev_b32 v24, 16, v3
    v_and_b32 v25, 0xffff0000, v3
    v_cmp_lt_f32 vcc, 0, v16
    v_cmp_lt_f32 s[54:55], 0, v17
    s_nop 1
    v_cndmask_b32 v2, 0, 1.0, vcc
    v_cndmask_b32 v3, 0, 1.0, s[54:55]
    v_mul_f32 v16, v16, v2
    v_mul_f32 v17, v17, v3
    v_mul_f32 v16, v16, v24
    v_mul_f32 v17, v17, v25
    v_cvt_pk_bf16_f32 v16, v16, v16
    v_cvt_pk_bf16_f32 v17, v17, v17
    ds_write_b32 v6, v16
    ds_write_b32 v6, v17 offset:32
    s_waitcnt lgkmcnt(0)
    ds_read_b128 v[16:19], v7
    ds_read_b128 v[20:23], v7 offset:16
    ds_read_b128 v[24:27], v7 offset:256
    ds_read_b128 v[28:31], v7 offset:272
    s_waitcnt lgkmcnt(0)""")
        a.selgemv(8, lambda pr, q: 16 + 8*pr + q, lambda q: 64 + 4*q, [40, 44])
        a(f"""    s_nop 7
    buffer_store_dwordx4 v[40:43], v48, s[36:39], s49 offen{self.sf}
    buffer_store_dwordx4 v[44:47], v48, s[36:39], s50 offen{self.sf}""")
        a("    s_branch L_scores")

    def scores(self):
        a = self
        a("; ---------------- scores\nL_scores:")
        if "vonly" in self.exp:
            a.stamp_dump(); a("    s_endpgm")
        a(f"""    v_and_b32 v2, 1, v1
    v_lshlrev_b32 v2, 9, v2
    v_lshrrev_b32 v3, 4, v1
    v_lshl_add_u32 v2, v3, 4, v2
    v_add_u32 v24, {LB + L_Q}, v2
    v_bfe_u32 v2, v1, 2, 2            ; jh
    v_and_b32 v3, 3, v1
    v_lshl_add_u32 v4, v2, 4, v3
    s_lshl_b32 s52, s3, 2
    v_add_u32 v4, s52, v4
    v_lshlrev_b32 v4, 9, v4
    v_lshrrev_b32 v5, 4, v1
    v_xor_b32 v5, v5, v3
    v_lshl_add_u32 v4, v5, 4, v4""")
        for m in range(4):
            a(f"    v_xor_b32 v5, {m}, v2\n    v_lshl_add_u32 v{16+m}, v5, 6, v4\n    v_add_u32 v{20+m}, 0x10000, v{16+m}")
        a(f"""    v_lshrrev_b32 v6, 2, v1
    s_and_b32 s52, s29, 15
    v_subrev_u32 v6, s52, v6
    v_and_b32 v6, 15, v6
    v_lshlrev_b32 v6, 2, v6
    v_and_b32 v7, 3, v1
    v_lshl_add_u32 v6, v7, 6, v6
    s_lshl_b32 s52, s3, 9
    s_add_u32 s52, s52, {LB + L_P}
    v_add_u32 v25, s52, v6
    s_lshl_b32 s52, s3, 3
    v_add_u32 v26, s52, v12
    s_mov_b32 s48, 0xffff0000
    s_mov_b32 s49, 0
    s_mov_b32 s50, 0
    s_mov_b32 s51, 0xffff
    s_mov_b32 s54, 0
    s_mov_b32 s55, 0xffff0000""")
        a.wait_flag(F_QRDY, 1, 4)
        a.stamp(6)
        for ks in range(8):
            a(f"    ds_read_b128 v[{64+4*ks}:{67+4*ks}], v24 offset:{64*ks}")
        a.wait_flag(F_KLAND, 4, 5)
        a.stamp(7)
        def kread(t, buf):
            for ks in range(8):
                m = ks & 3; hi = ks >> 2
                base = (16 if t < 2 else 20) + m
                off = (t & 1)*32768 + hi*256
                a(f"    ds_read_b128 v[{buf+4*ks}:{buf+4*ks+3}], v{base} offset:{off}")
        bufs = [96, 128]
        kread(0, bufs[0])
        for t in range(4):
            if t < 3:
                kread(t+1, bufs[(t+1) & 1])
                a("    s_waitcnt lgkmcnt(8)")
            else:
                a("    s_waitcnt lgkmcnt(0)")
            for ks in range(8):
                a.mfma(40 + 4*t, 64 + 4*ks, bufs[t & 1] + 4*ks, "0" if ks == 0 else None)
        a(f"""    s_nop 7
    v_cndmask_b32 v2, v40, v44, s[48:49]
    v_cndmask_b32 v3, v41, v45, s[48:49]
    v_cndmask_b32 v2, v2, v48, s[50:51]
    v_cndmask_b32 v3, v3, v49, s[50:51]
    v_cndmask_b32 v2, v2, v52, s[54:55]
    v_cndmask_b32 v3, v3, v53, s[54:55]
    v_cvt_pk_bf16_f32 v4, v2, v3
    v_lshlrev_b32 v2, 16, v4
    v_and_b32 v3, 0xffff0000, v4""")
        if self.dump:
            a(f"""    v_lshrrev_b32 v4, 2, v1
    v_lshlrev_b32 v4, 4, v4
    v_and_b32 v5, 3, v1
    v_add_u32 v4, v4, v5
    s_lshl_b32 s52, s3, 2
    v_add_u32 v4, s52, v4
    v_lshlrev_b32 v4, 2, v4
    s_lshl_b32 s52, s2, 11
    s_add_u32 s52, s52, {W_DUMP}
    buffer_store_dword v2, v4, s[36:39], s52 offen
    buffer_store_dword v3, v4, s[36:39], s52 offen offset:1024""")
        a("    v_mov_b32 v4, v2\n    v_mov_b32 v5, v3")
        a.reduce64("max_f32", [4, 5], [6, 7])
        a(f"""    s_mov_b64 exec, 1
    ds_write_b64 v26, v[4:5] offset:{L_SMMAX}
    s_waitcnt lgkmcnt(0)
    ds_add_u32 v12, v14 offset:{F_MAX}
    s_mov_b64 exec, -1""")
        a.wait_flag(F_MAX, 4, 6, sleep=0)
        a(f"""    ds_read_b128 v[16:19], v12 offset:{L_SMMAX}
    ds_read_b128 v[20:23], v12 offset:{L_SMMAX+16}
    s_waitcnt lgkmcnt(0)
    v_max3_f32 v4, v16, v18, v20
    v_max3_f32 v5, v17, v19, v21
    v_max_f32 v4, v4, v22             ; M0
    v_max_f32 v5, v5, v23             ; M1
    v_sub_f32 v2, v2, v4
    v_sub_f32 v3, v3, v5
    v_mul_f32 v2, {fbits(CEXP)}, v2
    v_mul_f32 v3, {fbits(CEXP)}, v3
    v_exp_f32 v2, v2
    v_exp_f32 v3, v3
    s_nop 0
    v_cvt_pk_bf16_f32 v16, v2, v2
    v_cvt_pk_bf16_f32 v17, v3, v3
    ds_write_b32 v25, v16
    ds_write_b32 v25, v17 offset:256""")
        a.reduce64("add_f32", [2, 3], [6, 7])
        a(f"""    s_mov_b64 exec, 1
    ds_write_b64 v26, v[2:3] offset:{L_SMSUM}
    s_waitcnt lgkmcnt(0)
    ds_add_rtn_u32 v13, v12, v14 offset:{F_PSUM}
    s_waitcnt lgkmcnt(0)
    s_mov_b64 exec, -1
    v_readfirstlane_b32 s58, v13
    s_cmp_eq_u32 s58, 3
    s_cbranch_scc0 L_noml""")
        a.get_epoch()
        a(f"""    ds_read_b128 v[16:19], v12 offset:{L_SMSUM}
    ds_read_b128 v[20:23], v12 offset:{L_SMSUM+16}
    v_cmp_eq_u32 vcc, 1, v1
    v_lshlrev_b32 v6, 4, v1
    s_lshl_b32 s52, s32, 8
    s_lshl_b32 s53, s30, 5
    s_add_u32 s52, s52, s53
    s_add_u32 s52, s52, {W_ML}
    s_waitcnt lgkmcnt(0)
    v_add_f32 v16, v16, v18
    v_add_f32 v17, v17, v19
    v_add_f32 v20, v20, v22
    v_add_f32 v21, v21, v23
    v_add_f32 v16, v16, v20           ; l0
    v_add_f32 v17, v17, v21           ; l1
    v_mov_b32 v18, s60
    v_mov_b32 v19, s61
    v_cndmask_b32 v17, v16, v17, vcc
    v_cndmask_b32 v16, v4, v5, vcc
    s_mov_b64 exec, 3
    buffer_store_dwordx4 v[16:19], v6, s[36:39], s52 offen sc1
    s_mov_b64 exec, -1
L_noml:""")
        a(f"""    s_cmp_eq_u32 s3, 2
    s_cbranch_scc0 L_nof2
    s_cmp_ge_u32 s2, 224
    s_cbranch_scc1 L_nof2
    s_lshl_b32 s56, s2, 7
    s_add_u32 s56, s56, {W_F2}
    v_mov_b32 v4, s60
    v_mov_b32 v5, s61
    v_mov_b32 v6, 0
    s_waitcnt vmcnt(0)
    s_mov_b64 exec, 1
    buffer_store_dwordx2 v[4:5], v6, s[36:39], s56 offen sc1
    s_mov_b64 exec, -1
L_nof2:""")
        a.stamp(8)

    def tail_compute(self):
        a = self
        a.get_epoch()
        a(f"""    s_cmp_eq_u32 s3, 0
    s_cbranch_scc0 L_norecheck
    v_lshlrev_b32 v104, 7, v1
    s_lshl_b32 s52, s28, 12
    s_lshl_b32 s53, s31, 10
    s_add_u32 s52, s52, s53
    s_add_u32 s52, s52, {W_XT}
    s_mov_b64 exec, 0xff
    buffer_load_dwordx4 v[108:111], v104, s[36:39], s52 offen sc1
    s_mov_b64 exec, -1""")
        self.verdict()
        a("L_norecheck:")
        if self.stamps:
            a(f"""    s_cmp_eq_u32 s3, 0
    s_cbranch_scc0 L_nodbgv
    v_mov_b32 v2, s99
    v_mov_b32 v3, s97
    s_lshl_b32 s52, s2, 3
    s_add_u32 s52, s52, {W_DUMP + 0x90000}
    v_mov_b32 v4, 0
    s_mov_b64 exec, 1
    buffer_store_dwordx2 v[2:3], v4, s[36:39], s52 offen
    s_mov_b64 exec, -1
L_nodbgv:""")
        a(f"""    s_mov_b32 s44, s12
    s_mov_b32 s45, s13
    s_mov_b32 s46, 3670016
    s_mov_b32 s47, 0x20000
    v_lshrrev_b32 v2, 4, v1
    v_mul_u32_u24 v2, 896, v2
    v_and_b32 v3, 15, v1
    v_lshl_add_u32 v5, v3, 4, v2
    s_cmp_eq_u32 s3, 3
    s_cselect_b32 s54, 8, 16
    v_cmp_le_u32 vcc, s54, v3
    v_mov_b32 v6, {OOB}
    s_lshl_b32 s52, s28, 9
    s_lshl_b32 s53, s30, 5
    s_add_u32 s52, s52, s53
    s_mul_i32 s52, s52, 896
    s_lshl_b32 s53, s3, 8
    s_add_u32 s52, s52, s53
    v_cndmask_b32 v46, v5, v6, vcc
    v_add_u32 v47, 7168, v46""")
        for i in range(4):
            a(f"""    s_add_u32 s53, s31, {i}
    s_and_b32 s53, s53, 3
    s_mul_i32 s{40+i}, s53, 14336
    s_cmp_ge_u32 s53, 2
    s_cselect_b32 s53, 200704, 0
    s_add_u32 s{40+i}, s{40+i}, s53
    s_add_u32 s{40+i}, s{40+i}, s52""")
        a(f"""    ; o gather: lane (ph=l>>5, gi=l&31): producer p = k + 4ph
    v_lshrrev_b32 v2, 5, v1
    v_mul_u32_u24 v2, {4*REC}, v2
    v_and_b32 v3, 31, v1
    v_lshl_add_u32 v48, v3, 4, v2
    v_bfe_u32 v3, v1, 3, 1
    v_lshrrev_b32 v45, 5, v1
    v_lshlrev_b32 v45, 7, v45         ; ph*4*32
    v_lshl_add_u32 v45, v3, 4, v45
    s_lshl_b32 s34, s32, 8
    s_add_u32 s34, s34, {W_ML}
    s_mul_i32 s48, s32, {64*REC}
    s_mul_i32 s53, s30, {8*REC}
    s_add_u32 s48, s48, s53
    s_add_u32 s48, s48, {W_P3}
    v_bfe_u32 v2, v1, 4, 1            ; s
    v_lshlrev_b32 v2, 7, v2           ; (2s)*64
    v_and_b32 v3, 15, v1
    s_lshl_b32 s53, s31, 2
    v_subrev_u32 v3, s53, v3
    v_and_b32 v3, 15, v3
    v_lshl_add_u32 v2, v3, 2, v2
    s_lshl_b32 s53, s3, 8
    s_add_u32 s53, s53, {LB + L_OD}
    v_add_u32 v49, s53, v2
    v_lshrrev_b32 v3, 4, v1
    v_lshlrev_b32 v3, 6, v3
    v_add_u32 v50, s53, v3
    ; P4 store
    v_and_b32 v2, 15, v1
    v_lshlrev_b32 v2, 6, v2
    v_bfe_u32 v3, v1, 4, 1
    v_lshl_add_u32 v2, v3, 5, v2
    v_lshrrev_b32 v3, 5, v1
    v_lshl_add_u32 v51, v3, 4, v2
    v_and_b32 v3, 15, v1
    s_cmp_eq_u32 s3, 3
    s_cselect_b32 s54, 8, 16
    v_cmp_le_u32 vcc, s54, v3
    s_lshl_b32 s49, s31, 6
    s_lshl_b32 s53, s28, 3
    s_add_u32 s49, s49, s53
    s_add_u32 s49, s49, s30
    s_mul_i32 s49, s49, 3584
    s_lshl_b32 s53, s3, 10
    s_add_u32 s49, s49, s53
    s_add_u32 s49, s49, {W_P4}
    v_cndmask_b32 v51, v51, v6, vcc
    v_mov_b32 v54, s60
    v_mov_b32 v55, s61
    v_cmp_le_u32 s[50:51], 32, v1""")
        a.stamp(9)
        a("    s_barrier                         ; B1")
        a.stamp(10)
        for k in range(4):
            a(f"    buffer_load_dwordx4 v[{128+4*k}:{131+4*k}], v45, s[36:39], s34 offen offset:{32*k} sc1")
        for n in range(16):
            vo = "v46" if (n & 3) < 2 else "v47"
            if "nowo" in self.exp:
                a(f"    buffer_load_dword v{64+4*n}, v12, s[36:39], 0 offen")
                continue
            a(f"    buffer_load_dwordx4 v[{64+4*n}:{67+4*n}], {vo}, s[44:47], s{40 + (n >> 2)} offen offset:{3584*(n & 1)}{self.woflags}")
        a.stamp(11)
        a("    s_waitcnt vmcnt(16)")
        a.tagcheck([130, 134, 138, 142])
        lok = a.L("mlok")
        a(f"    s_cbranch_vccz {lok}")
        l = a.poll_begin("pml")
        for k in range(4):
            a(f"    buffer_load_dwordx4 v[{128+4*k}:{131+4*k}], v45, s[36:39], s34 offen offset:{32*k} sc1")
        a("    s_waitcnt vmcnt(0)")
        a.tagcheck([130, 134, 138, 142])
        a.poll_end(l, 10, sleep=2)
        a(f"{lok}:")
        if "tailst" in self.exp: a.stamp(1)
        a("""    v_max_f32 v144, v128, v132
    v_max_f32 v145, v136, v140
    v_max_f32 v144, v144, v145""")
        a.xrows("max_f32", [144], [145], which=("32",))
        for k in range(4):
            a(f"    v_sub_f32 v{146+k}, v{128+4*k}, v144")
        for k in range(4):
            a(f"    v_mul_f32 v{146+k}, {fbits(CEXP)}, v{146+k}")
        for k in range(4):
            a(f"    v_exp_f32 v{146+k}, v{146+k}")
        a("""    s_nop 0
    v_mul_f32 v150, v146, v129
    v_fmac_f32 v150, v147, v133
    v_fmac_f32 v150, v148, v137
    v_fmac_f32 v150, v149, v141""")
        a.xrows("add_f32", [150], [151], which=("32",))
        a("""    v_rcp_f32 v151, v150
    s_nop 0
    v_fma_f32 v152, -v150, v151, 1.0
    v_fmac_f32 v151, v152, v151""")
        for k in range(4):
            a(f"    v_mul_f32 v{146+k}, v{146+k}, v151")
        a.wait_flag(F_PUB, 1, 11, sleep=0)
        if "tailst" in self.exp:
            a.stamp(2)
            a("    s_waitcnt vmcnt(0)")
            a.stamp(3)
        l = a.poll_begin("po")
        for k in range(4):
            a(f"    buffer_load_dwordx4 v[{16+4*k}:{19+4*k}], v48, s[36:39], s48 offen offset:{REC*k}{self.tgf}")
        a("    s_waitcnt vmcnt(0)")
        a.tagcheck([18, 22, 26, 30])
        a.poll_end(l, 12, sleep=self.osleep)
        if "tailst" in self.exp: a("    s_lshl_b32 s78, s59, 0\n    s_mul_i32 s78, s78, 100\n    s_add_u32 s78, s78, s70")
        a.stamp(12)
        a(f"""    v_mul_f32 v16, v16, v146
    v_mul_f32 v17, v17, v146
    v_mul_f32 v24, v24, v148
    v_mul_f32 v25, v25, v148
    v_fmac_f32 v16, v20, v147
    v_fmac_f32 v17, v21, v147
    v_fmac_f32 v24, v28, v149
    v_fmac_f32 v25, v29, v149
    v_add_f32 v16, v16, v24
    v_add_f32 v17, v17, v25""")
        a.xrows("add_f32", [16, 17], [18, 19], which=("32",))
        a(f"""    v_cvt_pk_bf16_f32 v16, v16, v16
    v_cvt_pk_bf16_f32 v17, v17, v17
    s_mov_b32 exec_hi, 0
    ds_write_b32 v49, v16
    ds_write_b32 v49, v17 offset:64
    s_mov_b32 exec_hi, -1
    s_waitcnt lgkmcnt(0)
    ds_read_b128 v[16:19], v50
    ds_read_b128 v[20:23], v50 offset:16
    ds_read_b128 v[24:27], v50 offset:32
    ds_read_b128 v[28:31], v50 offset:48
    s_waitcnt lgkmcnt(0)""")
        a.selgemv(16, lambda pr, q: 16 + q, lambda q: 64 + 4*q, [40])
        a(f"""    s_nop 7
    v_cndmask_b32 v52, v40, v42, s[50:51]
    v_cndmask_b32 v53, v41, v43, s[50:51]
    buffer_store_dwordx4 v[52:55], v51, s[36:39], s49 offen{self.tsf}""")
        a.stamp(13)
        a.stamp_dump()
        a("    s_endpgm")

    def red8(self, v0, v1, t0, t1):
        a = self
        a(f"    s_nop 1\n    v_add_f32_dpp v{v0}, v{v0}, v{v0} row_ror:8 row_mask:0xf bank_mask:0xf\n    v_add_f32_dpp v{v1}, v{v1}, v{v1} row_ror:8 row_mask:0xf bank_mask:0xf")
        a.xrows("add_f32", [v0, v1], [t0, t1])

def generate(**kw):
    return Gen(**kw).build()

if __name__ == "__main__":
    import argparse
    ap = argparse.ArgumentParser()
    ap.add_argument("-o", default="recurrent_scan__sliding_block_cached__glu_gated_reglu__decode.s")
    ap.add_argument("--stamps", action="store_true")
    ap.add_argument("--dump", action="store_true")
    ap.add_argument("--thr", type=int, default=5)
    ap.add_argument("--khalf", type=int, default=20)
    ap.add_argument("--wsoff", type=lambda x: int(x, 0), default=0)
    ap.add_argument("--noprefetch", action="store_true")
    ap.add_argument("--exp", default="")
    ap.add_argument("--woflags", default=" nt")
    args = ap.parse_args()
    txt = generate(thr=args.thr, stamps=args.stamps, dump=args.dump, prefetch=not args.noprefetch,
                   exp=[e for e in args.exp.split(',') if e], woflags=args.woflags, khalf=args.khalf, wsoff=args.wsoff)
    open(args.o, "w").write(txt)
    print("wrote", args.o, len(txt))
```

```python
import sys, struct
sys.path.insert(0, "gen")
from asmlib import Asm

NAME = "recurrent_scan__sliding_block_cached__glu_gated_reglu__decode_kernel"

LB = 131072
F_KLAND, F_QRDY, F_MAX, F_PSUM, F_OW, F_XN, F_T1LAND, F_ERDY = 0, 4, 8, 12, 16, 20, 24, 28
L_E = 32
F_T1DONE, F_S1, F_KHALF, F_PUB = 40, 44, 48, 52
L_VERD = 56
L_SMMAX = 64
L_SMSUM = 96
L_Q = 256
L_P = 1280
L_H = 3328
L_OD = 3840
L_XN = 4864
L_OW = 12032
L_S1 = 20224
LDS_TOTAL = LB + L_S1 + 8192
W_EPOCH = 0
W_F1 = 0x1000
W_F2 = 0x9000
W_ML = 0x11000
W_XT = 0x14000
W_P1 = 0x20000
W_P2 = 0xA0000
W_P3 = 0x110000
W_P4 = 0x260000
W_STAMP = 0x380000
W_DUMP = 0x3A0000
WS_SIZE = 0x440000
REC = 512

LOG2E = 1.4426950408889634
CEXP = 0.0625 * LOG2E
def fbits(x): return "0x%08x" % struct.unpack("<I", struct.pack("<f", x))[0]
OOB = "0x7ffffff0"

class Gen:
    def __init__(self, thr=5, stamps=False, dump=False, timeout=1 << 16, prefetch=True, exp=(), woflags=" nt", khalf=20, wsoff=0):
        self.wsoff = wsoff
        self.a = Asm()
        self.thr = thr; self.stamps = stamps; self.dump = dump; self.timeout = timeout
        self.prefetch = prefetch; self.exp = set(exp); self.woflags = woflags; self.khalf = khalf
        self.uid = 0
        if 'p3plain' in self.exp: self.p3sf = ''
        else: self.p3sf = None
        self.tsf = ' sc1 nt' if 'tstnt' in self.exp else ' sc1'
        self.tgf = ' sc1 nt' if 'tldnt' in self.exp else ' sc1'
        self.sf = ' sc1' if 'nostnt' in self.exp else ' sc1 nt'
        self.gf = ' sc1' if 'noldnt' in self.exp else ' sc1 nt'
        self.osleep = 8 if 'osleep' in self.exp else 0
    def L(self, base):
        self.uid += 1
        return f"L_{base}_{self.uid}"
    def __call__(self, s): self.a(s)
    def stamp(self, i):
        if self.stamps: self(f"    s_memrealtime s[{70+2*i}:{71+2*i}]")
    def stamp_dump(self):
        if not self.stamps: return
        self(f"""    s_waitcnt lgkmcnt(0) vmcnt(0)
    s_lshl_b32 s52, s2, 3
    s_add_u32 s52, s52, s3
    s_lshl_b32 s52, s52, 6
    s_add_u32 s52, s52, {W_STAMP}
    s_mov_b64 exec, 1
    v_mov_b32 v2, s52""")
        for q in range(4):
            regs = [70 + 2*(4*q + r) if 4*q + r < 14 else 70 for r in range(4)]
            self(f"    v_mov_b32 v4, s{regs[0]}\n    v_mov_b32 v5, s{regs[1]}\n    v_mov_b32 v6, s{regs[2]}\n    v_mov_b32 v7, s{regs[3]}")
            self(f"    buffer_store_dwordx4 v[4:7], v2, s[36:39], 0 offen offset:{16*q}\n    s_nop 1")
    def dbgtime(self, idx, inv=False, cond=None):
        if "dbgtime" not in self.exp: return
        l = self.L("dt")
        self(f"""    s_memrealtime s[88:89]
    s_mov_b32 s84, s24
    s_mov_b32 s85, s25
    s_mov_b32 s86, 256
    s_mov_b32 s87, 0x20000
    s_waitcnt lgkmcnt(0)""")
        if inv: self("    s_not_b32 s88, s88")
        self(f"""    v_mov_b32 v238, s88
    v_mov_b32 v239, {4*idx}
    s_mov_b64 s[90:91], exec
    s_mov_b64 exec, 1
    buffer_atomic_umax v238, v239, s[84:87], 0 offen
    s_mov_b64 exec, s[90:91]""")
    def signal(self, flag):
        self(f"""    s_mov_b64 exec, 1
    ds_add_u32 v12, v14 offset:{flag}
    s_mov_b64 exec, -1""")
    def wait_flag(self, flag, target, code, sleep=1):
        l = self.L("wf"); d = self.L("wfd")
        sl = f"    s_sleep {sleep}\n" if sleep else ""
        self(f"""    s_mov_b32 s59, 0
{l}:
    ds_read_b32 v13, v12 offset:{flag}
    s_waitcnt lgkmcnt(0)
    v_readfirstlane_b32 s58, v13
    s_cmp_ge_u32 s58, {target}
    s_cbranch_scc1 {d}
{sl}    s_add_u32 s59, s59, 1
    s_cmp_lt_u32 s59, {self.timeout}
    s_cbranch_scc1 {l}
    s_mov_b32 s57, {code}
    s_branch L_abort
{d}:""")
    def masks(self):
        self("""    v_and_b32 v2, 1, v1
    v_lshlrev_b32 v2, 4, v2
    v_mov_b32 v3, 0xffff
    v_lshlrev_b32 v2, v2, v3
    v_bfe_u32 v3, v1, 1, 2            ; (l>>1)&3
    v_cmp_eq_u32 vcc, 0, v3
    v_cmp_eq_u32 s[64:65], 1, v3
    v_cmp_eq_u32 s[66:67], 2, v3
    v_cmp_eq_u32 s[68:69], 3, v3
    s_nop 1
    v_cndmask_b32 v8, 0, v2, vcc
    v_cndmask_b32 v9, 0, v2, s[64:65]
    v_cndmask_b32 v10, 0, v2, s[66:67]
    v_cndmask_b32 v11, 0, v2, s[68:69]""")
    def sel(self, A, P):
        for r in range(4): self(f"    v_and_b32 v{A+r}, v{P}, v{8+r}")
    def mfma(self, D, A, B, C=None):
        c = f"v[{D}:{D+3}]" if C is None else C
        self(f"    v_mfma_f32_16x16x32_bf16 v[{D}:{D+3}], v[{A}:{A+3}], v[{B}:{B+3}], {c}")
    def selgemv(self, nq, Preg, Breg, accs, waits=None, A0=32, A1=36):
        seq = [(q, pr) for q in range(nq) for pr in range(len(accs))]
        Ab = [A0, A1]; first = set()
        self.sel(Ab[0], Preg(seq[0][1], seq[0][0]))
        for n, (q, pr) in enumerate(seq):
            if n + 1 < len(seq):
                q2, pr2 = seq[n+1]
                self.sel(Ab[(n+1) & 1], Preg(pr2, q2))
            else:
                self("    s_nop 1")
            if pr == 0 and waits is not None:
                w = waits(q)
                if w: self("    " + w)
            C = None
            if pr not in first:
                first.add(pr); C = "0"
            self.mfma(accs[pr], Ab[n & 1], Breg(q), C)
    def reduce64(self, op, regs, tmps):
        n = len(regs)
        pad = "    s_nop 1" if n == 1 else ("    s_nop 0" if n == 2 else None)
        for s in (8, 4, 2, 1):
            if pad: self(pad)
            for v in regs:
                self(f"    v_{op}_dpp v{v}, v{v}, v{v} row_ror:{s} row_mask:0xf bank_mask:0xf")
        self.xrows(op, regs, tmps)
    def xrows(self, op, regs, tmps, which=("16", "32")):
        for perm in which:
            for v, t in zip(regs, tmps): self(f"    v_mov_b32 v{t}, v{v}")
            self("    s_nop 1")
            for v, t in zip(regs, tmps): self(f"    v_permlane{perm}_swap_b32 v{v}, v{t}")
            self("    s_nop 1")
            for v, t in zip(regs, tmps): self(f"    v_{op} v{v}, v{v}, v{t}")
    def get_epoch(self):
        self.wait_flag(F_ERDY, 1, 20)
        self(f"""    ds_read_b64 v[2:3], v12 offset:{L_E}
    s_waitcnt lgkmcnt(0)
    v_readfirstlane_b32 s60, v2
    v_readfirstlane_b32 s61, v3""")
    def poll_begin(self, name):
        l = self.L(name)
        self(f"    s_mov_b32 s59, 0\n{l}:")
        return l
    def poll_end(self, l, code, sleep=2):
        d = self.L("pd")
        sl = f"    s_sleep {sleep}\n" if sleep else ""
        self(f"""    s_cbranch_vccz {d}
{sl}    s_add_u32 s59, s59, 1
    s_cmp_lt_u32 s59, {self.timeout}
    s_cbranch_scc1 {l}
    s_mov_b32 s57, {code}
    s_branch L_abort
{d}:""")
    def tagcheck(self, pairs):
        self(f"    v_cmp_ne_u64 vcc, s[60:61], v[{pairs[0]}:{pairs[0]+1}]")
        for p in pairs[1:]:
            self(f"    v_cmp_ne_u64 s[56:57], s[60:61], v[{p}:{p+1}]\n    s_or_b64 vcc, vcc, s[56:57]")

    def build(self):
        a = self
        hdr = open("recurrent_scan__sliding_block_cached__glu_gated_reglu__decode.s.ref").read().split("\n")
        for l in hdr:
            if l.startswith("; Override") or l.startswith("; grid=") or l.startswith("; @launch"): continue
            if l.startswith(";"): a(l)
            else: break
        a(f"; @launch grid=(256,1,1) block=(512,1,1) lds={LDS_TOTAL}")
        a('.amdgcn_target "amdgcn-amd-amdhsa--gfx950"')
        a(f".text\n.globl {NAME}\n.p2align 8\n.type {NAME},@function\n{NAME}:")
        a(f"""    s_cmp_ge_u32 s2, 256
    s_cbranch_scc1 L_end
    s_load_dwordx16 s[4:19], s[0:1], 0
    s_load_dwordx8 s[20:27], s[0:1], 64""")
        if self.prefetch:
            a(f"""    s_getpc_b64 s[52:53]
L_pc:
    s_lshr_b32 s54, s2, 3
    s_and_b32 s54, s54, 3
    s_lshl_b32 s54, s54, 12
    v_lshlrev_b32 v2, 3, v0
    v_add_u32 v2, s54, v2
    global_load_dwordx2 v[236:237], v2, s[52:53]""")
        a.stamp(0)
        a(f"""    v_and_b32 v1, 63, v0
    v_lshrrev_b32 v2, 6, v0
    v_lshlrev_b32 v3, 2, v1
    v_readfirstlane_b32 s3, v2
    v_mov_b32 v12, {LB}
    v_add_u32 v3, v12, v3
    v_mov_b32 v4, 0
    ds_write_b32 v3, v4
    v_mov_b32 v14, 1
    s_and_b32 s28, s2, 7              ; kvh
    s_lshr_b32 s29, s2, 3             ; r
    s_and_b32 s30, s29, 7             ; c
    s_lshr_b32 s31, s29, 3            ; b
    s_lshl_b32 s32, s31, 3
    s_add_u32 s32, s32, s28           ; grp
    s_mov_b32 s98, s2
    s_cmp_lt_u32 s98, 128
    s_mov_b32 s62, 3584
    s_cselect_b32 s62, 8192, s62
    s_cselect_b32 s53, 0, 128
    s_cmp_lt_u32 s98, 184
    s_cselect_b32 s53, s53, 184
    s_sub_u32 s53, s98, s53           ; u
    s_and_b32 s63, s53, 3             ; rb
    s_lshr_b32 s33, s53, 2            ; colblk
    s_getreg_b32 s99, hwreg(HW_REG_XCC_ID)
    s_waitcnt lgkmcnt(0)
    s_add_u32 s26, s26, @WSOFF@
    s_addc_u32 s27, s27, 0
    s_mov_b32 s36, s26
    s_mov_b32 s37, s27
    s_mov_b32 s38, {WS_SIZE}
    s_mov_b32 s39, 0x20000
    s_cmp_lt_u32 s3, 4
    s_cbranch_scc0 L_b0
    s_mov_b32 s40, s4
    s_mov_b32 s41, s5
    s_mov_b32 s42, 3584
    s_mov_b32 s43, 0x20000
    v_lshlrev_b32 v4, 4, v1
    s_mul_i32 s52, s3, 896
    v_add_u32 v4, s52, v4
    v_mov_b32 v5, {OOB}
    v_cmp_le_u32 vcc, 56, v1
    s_cmp_eq_u32 s3, 0
    s_cbranch_scc0 L_noep
    s_load_dwordx2 s[60:61], s[26:27], {W_EPOCH}
L_noep:
    v_cndmask_b32 v4, v4, v5, vcc
    buffer_load_dwordx4 v[16:19], v4, s[40:43], 0 offen
L_b0:
    s_barrier
    s_cmp_lt_u32 s3, 4
    s_cbranch_scc1 L_cw""")
        self.loader()
        a("L_cw:")
        if "nocomp" in self.exp:
            st = [e for e in self.exp if e.startswith("st_")]
            if st:
                _, n, fl, who = st[0].split("_")
                n = int(n); isld = fl.startswith("ld"); fl = {"sc1":" sc1", "pl":"", "nt":" nt", "sn":" sc1 nt", "ldsc1":" sc1", "ld":""}[fl]
                a("    s_cmp_eq_u32 s3, 0\n    s_cbranch_scc0 L_end")
                if who == "odd":
                    a("    s_and_b32 s52, s29, 1\n    s_cmp_eq_u32 s52, 1\n    s_cbranch_scc0 L_end")
                a.wait_flag(F_KHALF, 4, 50, sleep=4)
                a(f"    v_lshlrev_b32 v2, 4, v1\n    s_lshl_b32 s54, s2, 13\n    s_add_u32 s54, s54, {W_P3}")
                a.stamp(2)
                for i in range(n):
                    if isld:
                        a(f"    buffer_load_dwordx4 v[4:7], v2, s[36:39], s54 offen{fl}\n    s_add_u32 s54, s54, 1024")
                    else:
                        a(f"    buffer_store_dwordx4 v[4:7], v2, s[36:39], s54 offen{fl}\n    s_add_u32 s54, s54, 1024")
                a("    s_waitcnt vmcnt(0)")
                a.stamp(1)
                a.stamp_dump()
            a("    s_endpgm")
        self.stage1()
        self.w1()
        self.w2()
        self.scores()
        self.tail_compute()
        a("L_abort:")
        a(f"""    s_mov_b32 s40, s24
    s_mov_b32 s41, s25
    s_mov_b32 s42, 256
    s_mov_b32 s43, 0x20000
    s_mov_b64 exec, 1
    v_mov_b32 v2, s57
    v_mov_b32 v3, s2
    v_mov_b32 v4, 0
    buffer_store_dwordx2 v[2:3], v4, s[40:43], 0 offen
L_end:
    s_endpgm
L_codeend:
    .fill (16896 - (L_codeend - {NAME}))/4, 4, 0xbf810000
.section .rodata,"a"
.p2align 6
.amdhsa_kernel {NAME}
  .amdhsa_next_free_vgpr 240
  .amdhsa_next_free_sgpr 100
  .amdhsa_accum_offset 240
  .amdhsa_group_segment_fixed_size 0
  .amdhsa_kernarg_size 96
  .amdhsa_user_sgpr_count 2
  .amdhsa_user_sgpr_kernarg_segment_ptr 1
  .amdhsa_system_sgpr_workgroup_id_x 1
.end_amdhsa_kernel""")
        return self.a.text().replace("@NOPUB@", "0" if "nopub" in self.exp else "240").replace("@WSOFF@", str(self.wsoff)).replace("@XTST@", "buffer_store_dwordx4 v[20:23], v24, s[36:39], s52 offen sc1" if ("noxt" not in self.exp or "xtst" in self.exp) else "buffer_load_dword v25, v24, s[36:39], 0 offen")

    def loader(self):
        a = self; THR = self.thr
        if "dbgtime" in self.exp:
            a("    s_cmp_eq_u32 s3, 4\n    s_cbranch_scc0 L_nodt0\n    s_cmp_lt_u32 s2, 8\n    s_cbranch_scc0 L_nodt0")
            a.dbgtime(1, inv=True)
            a("L_nodt0:")
        a(f"""    s_setprio 3
    s_sub_u32 s35, s3, 4              ; w
    s_cmp_lt_u32 s98, 128
    s_cselect_b32 s40, s10, s16
    s_cselect_b32 s41, s11, s17
    s_mov_b32 s42, 1605632
    s_cselect_b32 s42, 3670016, s42
    s_cmp_lt_u32 s98, 184
    s_cselect_b32 s40, s40, s18
    s_cselect_b32 s41, s41, s19
    s_mov_b32 s43, 0x20000
    v_lshrrev_b32 v2, 4, v1           ; g
    v_and_b32 v3, 15, v1              ; j
    v_mul_lo_u32 v5, v2, s62
    v_lshl_add_u32 v5, v3, 4, v5
    s_mul_i32 s56, s63, 112
    s_lshl_b32 s52, s35, 2
    s_add_u32 s56, s56, s52
    s_mul_i32 s56, s56, s62
    s_lshl_b32 s52, s33, 8
    s_add_u32 s56, s56, s52
    s_cmp_ge_u32 s98, 240
    s_cselect_b32 s56, {OOB}, s56
    s_cselect_b32 s57, 0, s62
    s_lshl_b32 s57, s57, 4
    s_lshl_b32 s34, s29, 12           ; rotK
    s_lshl_b32 s52, s35, 10
    s_add_u32 s34, s34, s52           ; kpos0
    s_add_u32 s52, s34, {25*4096}""")
        for i in range(7):
            a(f"""    s_and_b32 s52, s52, 0x1ffff
    s_mov_b32 m0, s52
    s_add_u32 s52, s52, 4096
    buffer_load_dwordx4 v5, s[40:43], s56 offen nt lds
    s_add_u32 s56, s56, s57""")
        a(f"""    s_mov_b32 s44, s20
    s_mov_b32 s45, s21
    s_mov_b32 s46, 1605632
    s_mov_b32 s47, 0x20000
    v_mul_u32_u24 v6, 896, v2
    v_lshl_add_u32 v6, v3, 4, v6
    s_and_b32 s53, s2, 3              ; nb
    s_cmp_eq_u32 s53, 3
    s_cselect_b32 s54, 8, 16
    v_cmp_le_u32 vcc, s54, v3
    v_mov_b32 v7, {OOB}
    s_lshr_b32 s52, s2, 2             ; fb32
    s_mul_i32 s55, s52, 28672
    v_cndmask_b32 v6, v6, v7, vcc
    s_lshl_b32 s56, s53, 8
    s_add_u32 s55, s55, s56
    s_mul_i32 s56, s35, 3584
    s_add_u32 s55, s55, s56
    s_cmp_ge_u32 s2, 224
    s_cselect_b32 s55, {OOB}, s55
    s_lshl_b32 s56, s35, 10
    s_add_u32 s56, s56, {LB + L_OW}
    s_mov_b32 m0, s56
    s_add_u32 s56, s56, 4096
    buffer_load_dwordx4 v6, s[44:47], s55 offen nt lds
    s_mov_b32 m0, s56
    s_add_u32 s55, s55, 14336
    buffer_load_dwordx4 v6, s[44:47], s55 offen nt lds""")
        a(f"""    s_mov_b32 s40, s6
    s_mov_b32 s41, s7
    s_mov_b32 s42, 0x8000000
    s_mov_b32 s43, 0x20000
    s_lshl_b32 s33, s32, 22
    s_lshl_b32 s52, s30, 17
    s_add_u32 s33, s33, s52
    s_add_u32 s33, s33, 3145728
    v_lshrrev_b32 v3, 5, v1
    s_and_b32 s52, s35, 1
    s_lshl_b32 s52, s52, 1
    v_add_u32 v4, s52, v3
    v_and_b32 v5, 31, v1
    v_xor_b32 v5, v5, v4
    v_lshlrev_b32 v5, 4, v5
    v_lshl_add_u32 v2, v3, 9, v5
    s_mov_b32 s52, s34""")
        a.stamp(7)
        def kloop(n):
            if n <= 0: return
            l = a.L("k")
            a(f"""    s_mov_b32 s54, {n}
{l}:
    s_and_b32 s52, s52, 0x1ffff
    s_lshr_b32 s55, s52, 7
    s_and_b32 s55, s55, 0xc0
    v_xor_b32 v3, s55, v2
    s_mov_b32 m0, s52
    s_add_u32 s56, s52, s33
    s_waitcnt vmcnt({THR})
    buffer_load_dwordx4 v3, s[40:43], s56 offen nt lds
    s_add_u32 s52, s52, 4096
    s_sub_u32 s54, s54, 1
    s_cmp_lg_u32 s54, 0
    s_cbranch_scc1 {l}""")
        n0 = max(THR - 2, 1)
        kloop(n0)
        a(f"    s_waitcnt vmcnt({n0 + 2})")
        a.signal(F_T1LAND)
        kloop(self.khalf - n0)
        a.signal(F_KHALF)
        kloop(25 - self.khalf)
        if "nocomp" not in self.exp: a.wait_flag(F_T1DONE, 4, 30)
        kloop(7)
        a.stamp(1)
        a(f"""    s_mov_b32 s44, s8
    s_mov_b32 s45, s9
    s_mov_b32 s46, 0x8000000
    s_mov_b32 s47, 0x20000
    v_lshrrev_b32 v3, 4, v1
    v_and_b32 v4, 15, v1
    v_lshlrev_b32 v4, 4, v4
    v_lshl_add_u32 v6, v3, 9, v4      ; V voffset
    s_and_b32 s52, s29, 15
    s_lshl_b32 s52, s52, 13
    s_lshl_b32 s53, s35, 11
    s_add_u32 s52, s52, s53""")
        VB = 64; m = 0
        for n in range(16):
            a("    s_and_b32 s52, s52, 0x1ffff\n    s_add_u32 s56, s52, s33")
            for hf in range(2):
                a(f"    s_waitcnt vmcnt({THR})")
                if m == THR:
                    a.signal(F_KLAND); a.stamp(2)
                    if "dbgtime" in self.exp:
                        a("    s_cmp_eq_u32 s3, 4\n    s_cbranch_scc0 L_nodt4")
                        a.dbgtime(4)
                        a("L_nodt4:")
                r = VB + 8*n + 4*hf
                a(f"    buffer_load_dwordx4 v[{r}:{r+3}], v6, s[44:47], s56 offen offset:{256*hf} nt")
                m += 1
            if n < 15: a("    s_add_u32 s52, s52, 8192")
        a.stamp(3)
        if "nocomp" in self.exp or "vonly" in self.exp:
            a("    s_waitcnt vmcnt(0)"); a.stamp(4); a.stamp_dump(); a("    s_endpgm")
        a.masks()
        a(f"""    v_bfe_u32 v2, v1, 3, 1
    v_lshlrev_b32 v2, 8, v2
    v_lshrrev_b32 v3, 4, v1
    v_lshl_add_u32 v2, v3, 6, v2
    s_lshl_b32 s52, s35, 9
    s_add_u32 s52, s52, {LB + L_P}
    v_add_u32 v2, s52, v2             ; P address
    v_lshlrev_b32 v48, 4, v1
    s_lshl_b32 s52, s35, 11
    s_add_u32 s52, s52, {LB + L_OW}
    v_add_u32 v49, s52, v48
    v_add_u32 v48, {LB + L_OW}, v48
    v_bfe_u32 v5, v1, 2, 2
    v_mul_u32_u24 v5, {8*REC}, v5
    v_lshrrev_b32 v6, 5, v1
    v_lshl_add_u32 v5, v6, 7, v5
    v_and_b32 v6, 3, v1
    v_lshl_add_u32 v5, v6, 5, v5
    v_bfe_u32 v6, v1, 4, 1
    v_lshl_add_u32 v51, v6, 4, v5
    s_mul_i32 s44, s32, {64*REC}
    s_mul_i32 s45, s30, {REC}
    s_add_u32 s44, s44, s45
    s_add_u32 s44, s44, {W_P3}
    s_add_u32 s45, s44, {32*REC}
    s_barrier                         ; B1""")
        if "dbgtime" in self.exp:
            a("    s_cmp_eq_u32 s3, 4\n    s_cbranch_scc0 L_nodt1")
            a.dbgtime(2)
            a("L_nodt1:")
        a.stamp(4)
        for i in range(4):
            a(f"    ds_read_b128 v[{16+4*i}:{19+4*i}], v2 offset:{16*i}")
        a(f"    ds_read_b64 v[4:5], v12 offset:{L_E}\n    ds_read_b32 v6, v12 offset:{L_VERD}")
        a("    s_waitcnt lgkmcnt(0)\n    v_readfirstlane_b32 s97, v6")
        for q in range(4):
            a(f"    v_mov_b32 v{198+4*q}, v4\n    v_mov_b32 v{199+4*q}, v5")
        a("    v_readfirstlane_b32 s60, v4\n    v_readfirstlane_b32 s61, v5")
        Ab = [32, 36]
        a.sel(Ab[0], 16)
        for n in range(16):
            if n < 15: a.sel(Ab[(n+1) & 1], 16 + n + 1)
            a(f"    s_waitcnt vmcnt({30 - 2*n})")
            c = "0" if n == 0 else None
            a.mfma(40, Ab[n & 1], VB + 8*n, c)
            a.mfma(44, Ab[n & 1], VB + 8*n + 4, c)
        a.stamp(5)
        a(f"""    s_nop 7
    ds_write_b128 v49, v[40:43]
    ds_write_b128 v49, v[44:47] offset:1024
    s_waitcnt lgkmcnt(0)
    s_mov_b64 exec, 1
    ds_add_rtn_u32 v13, v12, v14 offset:{F_OW}
    s_mov_b64 exec, -1
    s_waitcnt lgkmcnt(0)
    v_readfirstlane_b32 s58, v13
    s_cmp_eq_u32 s58, 3
    s_cbranch_scc0 L_vfin""")
        for w in range(4):
            for hf in range(2):
                r = 64 + 8*w + 4*hf
                a(f"    ds_read_b128 v[{r}:{r+3}], v48 offset:{2048*w + 1024*hf}")
        a("    s_waitcnt lgkmcnt(0)")
        for i in range(8):
            a(f"    v_add_f32 v{64+i}, v{64+i}, v{72+i}\n    v_add_f32 v{80+i}, v{80+i}, v{88+i}")
        for i in range(8):
            dst = 196 + 4*(i >> 1) + (i & 1)
            a(f"    v_add_f32 v{dst}, v{64+i}, v{80+i}")
        a(f"""    s_cmp_eq_u32 s97, 1
    s_cbranch_scc1 L_p3loc
    buffer_store_dwordx4 v[196:199], v51, s[36:39], s44 offen sc1
    buffer_store_dwordx4 v[200:203], v51, s[36:39], s44 offen offset:256 sc1
    buffer_store_dwordx4 v[204:207], v51, s[36:39], s45 offen sc1
    buffer_store_dwordx4 v[208:211], v51, s[36:39], s45 offen offset:256 sc1
    s_branch L_p3done
L_p3loc:
    buffer_store_dwordx4 v[196:199], v51, s[36:39], s44 offen
    buffer_store_dwordx4 v[200:203], v51, s[36:39], s44 offen offset:256
    buffer_store_dwordx4 v[204:207], v51, s[36:39], s45 offen
    buffer_store_dwordx4 v[208:211], v51, s[36:39], s45 offen offset:256
L_p3done:""")
        a.signal(F_PUB)
        a.stamp(6)
        a("L_vfin:")
        if "nofin" in self.exp: a("    s_branch L_vend")
        a(f"""    s_cmp_eq_u32 s3, 7
    s_cbranch_scc0 L_vend
    s_cmp_ge_u32 s2, 112
    s_cbranch_scc1 L_vend
    s_mul_i32 s62, s2, 2341
    s_lshr_b32 s62, s62, 16           ; b_f
    s_mul_i32 s63, s62, 28
    s_sub_u32 s63, s2, s63            ; nbk
    s_lshr_b32 s52, s63, 3
    s_lshl_b32 s52, s52, 7
    s_add_u32 s52, s52, {W_F2}
    v_lshlrev_b32 v4, 9, v1           ; k*4*128
    s_mul_i32 s53, s62, 448
    s_lshl_b32 s54, s63, 4
    s_add_u32 s53, s53, s54           ; b_f*448 + 16nbk
    s_mov_b32 s40, s4
    s_mov_b32 s41, s5
    s_mov_b32 s42, 3584
    s_mov_b32 s43, 0x20000
    s_lshl_b32 s48, s53, 1
    v_and_b32 v3, 7, v1
    v_lshlrev_b32 v2, 2, v3
    buffer_load_dword v30, v2, s[40:43], s48 offen      ; x: 2 bf16
    v_lshrrev_b32 v5, 3, v1
    v_mul_u32_u24 v6, 7168, v5
    v_lshl_add_u32 v6, v3, 3, v6      ; P2 voffset
    v_mul_u32_u24 v7, 3584, v5
    v_lshl_add_u32 v7, v3, 4, v7      ; P4 voffset
    s_mov_b32 exec_hi, 0x00ffffff""")
        l = a.poll_begin("pf")
        a(f"""    buffer_load_dwordx2 v[2:3], v4, s[36:39], s52 offen sc1
    s_waitcnt vmcnt(0)
    v_cmp_ne_u64 vcc, s[60:61], v[2:3]""")
        a.poll_end(l, 8, sleep=2)
        a(f"""    s_mov_b32 exec_hi, -1
    s_lshl_b32 s53, s53, 2
    s_add_u32 s53, s53, {W_P2}""")
        for k in range(7):
            a(f"    buffer_load_dwordx2 v[{16+2*k}:{17+2*k}], v6, s[36:39], s53 offen{self.gf}")
            if k < 6: a(f"    s_add_u32 s53, s53, {8*7168}")
        a(f"""    s_mul_i32 s52, s62, {64*3584}
    s_lshl_b32 s53, s63, 7
    s_add_u32 s52, s52, s53
    s_add_u32 s52, s52, {W_P4}
    s_mov_b32 s40, s22
    s_mov_b32 s41, s23
    s_waitcnt vmcnt(0)
    v_add_f32 v16, v16, v18
    v_add_f32 v17, v17, v19
    v_add_f32 v20, v20, v22
    v_add_f32 v21, v21, v23
    v_add_f32 v24, v24, v26
    v_add_f32 v25, v25, v27
    v_add_f32 v16, v16, v20
    v_add_f32 v17, v17, v21
    v_add_f32 v24, v24, v28
    v_add_f32 v25, v25, v29
    v_add_f32 v16, v16, v24
    v_add_f32 v17, v17, v25""")
        self.red8(16, 17, 18, 19)
        a(f"""    v_cvt_pk_bf16_f32 v20, v16, v17
    v_lshlrev_b32 v16, 16, v20
    v_and_b32 v17, 0xffff0000, v20
    v_mul_f32 v20, {fbits(-LOG2E)}, v16
    v_mul_f32 v21, {fbits(-LOG2E)}, v17
    v_exp_f32 v20, v20
    v_exp_f32 v21, v21
    s_nop 0
    v_add_f32 v20, 1.0, v20
    v_add_f32 v21, 1.0, v21
    v_rcp_f32 v20, v20
    v_rcp_f32 v21, v21
    s_nop 0
    v_mul_f32 v16, v16, v20
    v_mul_f32 v17, v17, v21
    v_cvt_pk_bf16_f32 v20, v16, v17
    v_lshlrev_b32 v32, 16, v20
    v_and_b32 v33, 0xffff0000, v20      ; g
    v_lshlrev_b32 v34, 16, v30
    v_and_b32 v35, 0xffff0000, v30      ; x""")
        a.stamp(8)
        l = a.poll_begin("pz")
        a("    s_mov_b32 s53, s52")
        for k in range(8):
            a(f"    buffer_load_dwordx4 v[{64+4*k}:{67+4*k}], v7, s[36:39], s53 offen{self.tgf}")
            if k < 7: a(f"    s_add_u32 s53, s53, {8*3584}")
        a("    s_waitcnt vmcnt(0)")
        a.tagcheck([66 + 4*k for k in range(8)])
        a.poll_end(l, 13, sleep=0)
        a.stamp(9)
        for k in range(0, 8, 2):
            a(f"    v_add_f32 v{64+4*k}, v{64+4*k}, v{68+4*k}\n    v_add_f32 v{65+4*k}, v{65+4*k}, v{69+4*k}")
        a("""    v_add_f32 v64, v64, v72
    v_add_f32 v65, v65, v73
    v_add_f32 v80, v80, v88
    v_add_f32 v81, v81, v89
    v_add_f32 v16, v64, v80
    v_add_f32 v17, v65, v81""")
        self.red8(16, 17, 18, 19)
        a(f"""    v_cvt_pk_bf16_f32 v20, v16, v17
    v_lshlrev_b32 v16, 16, v20
    v_and_b32 v17, 0xffff0000, v20
    v_mul_f32 v16, v16, v32
    v_mul_f32 v17, v17, v33
    v_cvt_pk_bf16_f32 v20, v16, v17
    v_lshlrev_b32 v16, 16, v20
    v_and_b32 v17, 0xffff0000, v20
    v_add_f32 v16, v16, v34
    v_add_f32 v17, v17, v35
    v_cvt_pk_bf16_f32 v20, v16, v17
    v_lshlrev_b32 v2, 2, v1
    s_mov_b64 exec, 0xff
    buffer_store_dword v20, v2, s[40:43], s48 offen
    s_cmp_eq_u32 s2, 111
    s_cbranch_scc0 L_vend
    s_mov_b64 exec, 1
    v_mov_b32 v2, s60
    v_mov_b32 v3, s61
    v_mov_b32 v4, 0
    buffer_store_dwordx2 v[2:3], v4, s[36:39], 0 offen sc1""")
        a("L_vend:\n    s_mov_b64 exec, -1")
        if "dbgtime" in self.exp:
            a("    s_cmp_eq_u32 s3, 7\n    s_cbranch_scc0 L_nodt2")
            a.dbgtime(0)
            a("L_nodt2:")
        a.stamp(10)
        a.stamp_dump()
        a("    s_endpgm")

    def stage1(self):
        a = self
        a.masks()
        a(f"""    s_mul_i32 s52, s3, 1792
    s_add_u32 s52, s52, {LB + L_XN}
    v_lshlrev_b32 v6, 3, v1
    v_add_u32 v6, s52, v6
    v_bfe_u32 v2, v1, 3, 1
    v_lshlrev_b32 v2, 2, v2
    v_lshrrev_b32 v3, 4, v1
    v_add_u32 v2, v2, v3
    v_mul_u32_u24 v2, 448, v2
    s_mul_i32 s52, s63, 112
    s_lshl_b32 s53, s3, 2
    s_add_u32 s52, s52, s53
    s_add_u32 s52, s52, {LB + L_XN}
    v_add_u32 v7, s52, v2
    s_cmp_eq_u32 s3, 0
    s_cbranch_scc0 L_noep2
    s_waitcnt lgkmcnt(0)
    s_add_u32 s60, s60, 1
    s_addc_u32 s61, s61, 0
    v_mov_b32 v2, s60
    v_mov_b32 v3, s61
    ds_write_b64 v12, v[2:3] offset:{L_E}
    v_mov_b32 v20, s99
    v_mov_b32 v21, 0
    v_mov_b32 v22, s60
    v_mov_b32 v23, s61
    s_lshl_b32 s52, s28, 12
    s_lshl_b32 s53, s29, 7
    s_add_u32 s52, s52, s53
    s_add_u32 s52, s52, {W_XT}
    v_mov_b32 v24, 0
    s_mov_b64 exec, 1
    @XTST@
    s_mov_b64 exec, -1
    s_waitcnt lgkmcnt(0)""")
        a.signal(F_ERDY)
        a("L_noep2:")
        a(f"""    s_lshl_b32 s52, s29, 12
    s_lshl_b32 s53, s3, 10
    s_add_u32 s52, s52, s53
    s_add_u32 s52, s52, {25*4096}
    v_lshlrev_b32 v2, 4, v1""")
        for i in range(7):
            a(f"    s_and_b32 s52, s52, 0x1ffff\n    v_add_u32 v{96+i}, s52, v2\n    s_add_u32 s52, s52, 4096")
        a(f"""    s_lshl_b32 s52, s3, 11
    s_add_u32 s52, s52, {LB + L_S1}
    v_add_u32 v103, s52, v2""")
        a("    s_cmp_eq_u32 s3, 0\n    s_cbranch_scc1 L_xw0\n    s_waitcnt vmcnt(0)\n    s_branch L_xw1\nL_xw0:\n    s_waitcnt vmcnt(1)\nL_xw1:")
        a.stamp(1)
        for d in range(4):
            a(f"    v_lshlrev_b32 v{20+2*d}, 16, v{16+d}\n    v_and_b32 v{21+2*d}, 0xffff0000, v{16+d}")
        a("""    v_add_f32 v2, v20, v21
    v_add_f32 v3, v22, v23
    v_add_f32 v4, v24, v25
    v_add_f32 v5, v26, v27
    v_add_f32 v2, v2, v3
    v_add_f32 v4, v4, v5
    v_add_f32 v2, v2, v4""")
        a.reduce64("add_f32", [2], [3])
        a(f"""    v_mul_f32 v2, {fbits(1.0/448)}, v2      ; mean (f32)
    v_mov_b32 v4, 0
    v_mov_b32 v5, 0
    s_mov_b32 exec_hi, 0x00ffffff""")
        for i in range(8):
            a(f"    v_sub_f32 v{28+i}, v{20+i}, v2")
        for i in range(0, 8, 2):
            a(f"    v_fmac_f32 v4, v{28+i}, v{28+i}\n    v_fmac_f32 v5, v{29+i}, v{29+i}")
        a("    s_mov_b32 exec_hi, -1\n    v_add_f32 v4, v4, v5")
        a.reduce64("add_f32", [4], [3])
        a(f"""    v_mul_f32 v4, {fbits(1.0/448)}, v4      ; var
    v_cvt_pk_bf16_f32 v3, v2, v4
    v_lshlrev_b32 v2, 16, v3          ; m_bf
    v_and_b32 v4, 0xffff0000, v3      ; v_bf
    v_add_f32 v4, {fbits(1e-5)}, v4
    v_cvt_pk_bf16_f32 v4, v4, v4
    v_and_b32 v4, 0xffff0000, v4
    v_sqrt_f32 v4, v4""")
        for i in range(8):
            a(f"    v_sub_f32 v{20+i}, v{20+i}, v2")
        a(f"""    v_cvt_pk_bf16_f32 v4, v4, v4
    v_and_b32 v4, 0xffff0000, v4      ; s
    v_rcp_f32 v5, v4""")
        for d in range(4):
            a(f"    v_cvt_pk_bf16_f32 v{16+d}, v{20+2*d}, v{21+2*d}")
        for d in range(4):
            a(f"    v_lshlrev_b32 v{20+2*d}, 16, v{16+d}\n    v_and_b32 v{21+2*d}, 0xffff0000, v{16+d}")
        for i in range(8): a(f"    v_mul_f32 v{28+i}, v{20+i}, v5")
        for i in range(8): a(f"    v_fma_f32 v{20+i}, -v{28+i}, v4, v{20+i}")
        for i in range(8): a(f"    v_fmac_f32 v{28+i}, v{20+i}, v5")
        for g in range(4):
            a(f"    v_cvt_pk_bf16_f32 v{40+2*g}, v{28+g}, v{28+g}\n    v_cvt_pk_bf16_f32 v{41+2*g}, v{32+g}, v{32+g}")
        a("    s_mov_b32 exec_hi, 0x00ffffff")
        for g in range(4):
            a(f"    ds_write_b64 v6, v[{40+2*g}:{41+2*g}] offset:{448*g}")
        a("    s_mov_b32 exec_hi, -1\n    s_waitcnt lgkmcnt(0)")
        a.signal(F_XN)
        a.stamp(2)
        a.wait_flag(F_XN, 4, 21, sleep=0)
        for pr in range(2):
            for i in range(7):
                a(f"    ds_read_b32 v{48+7*pr+i}, v7 offset:{pr*3584 + 16*i}")
        a.wait_flag(F_T1LAND, 4, 22, sleep=0)
        a.stamp(3)
        for i in range(7):
            a(f"    ds_read_b128 v[{64+4*i}:{67+4*i}], v{96+i}")
        a("    s_waitcnt lgkmcnt(0)")
        a.signal(F_T1DONE)
        a.selgemv(7, lambda pr, q: 48 + 7*pr + q, lambda q: 64 + 4*q, [40, 44])
        a(f"""    s_nop 7
    ds_write_b128 v103, v[40:43]
    ds_write_b128 v103, v[44:47] offset:1024
    s_waitcnt lgkmcnt(0)""")
        a.signal(F_S1)
        a.stamp(4)
        a(f"""    s_cmp_eq_u32 s3, 1
    s_cbranch_scc1 L_w1
    s_cmp_eq_u32 s3, 2
    s_cbranch_scc1 L_w2
    s_cmp_eq_u32 s3, 3
    s_cbranch_scc1 L_scores
    s_cmp_ge_u32 s98, @NOPUB@
    s_cbranch_scc1 L_w0v
    v_lshlrev_b32 v2, 4, v1
    v_add_u32 v2, {LB + L_S1}, v2
    v_lshrrev_b32 v4, 5, v1
    v_lshlrev_b32 v4, 9, v4
    v_and_b32 v3, 15, v1
    v_lshl_add_u32 v4, v3, 5, v4
    v_bfe_u32 v3, v1, 4, 1
    v_lshl_add_u32 v4, v3, 4, v4
    s_lshl_b32 s54, s98, 11
    s_add_u32 s54, s54, {W_P1}""")
        a.wait_flag(F_S1, 4, 23, sleep=0)
        for w in range(4):
            for pr in range(2):
                r = 64 + 8*w + 4*pr
                a(f"    ds_read_b128 v[{r}:{r+3}], v2 offset:{2048*w + 1024*pr}")
        a("    s_waitcnt lgkmcnt(0)")
        for i in range(8):
            a(f"    v_add_f32 v{64+i}, v{64+i}, v{72+i}\n    v_add_f32 v{80+i}, v{80+i}, v{88+i}")
        for i in range(8):
            a(f"    v_add_f32 v{64+i}, v{64+i}, v{80+i}")
        a(f"""    s_lshl_b32 s55, s98, 7
    s_add_u32 s55, s55, {W_F1}
    v_mov_b32 v2, s60
    v_mov_b32 v3, s61
    v_mov_b32 v5, 0
    buffer_store_dwordx4 v[64:67], v4, s[36:39], s54 offen{self.sf}
    buffer_store_dwordx4 v[68:71], v4, s[36:39], s54 offen offset:1024{self.sf}
    s_waitcnt vmcnt(0)
    s_mov_b64 exec, 1
    buffer_store_dwordx2 v[2:3], v5, s[36:39], s55 offen sc1
    s_mov_b64 exec, -1""")
        a.stamp(5)
        a("L_w0v:")
        a("    s_branch L_scores")

    def verdict(self):
        a = self
        a(f"""    s_waitcnt vmcnt(0)
    s_mov_b64 exec, 0xff
    v_cmp_ne_u64 vcc, s[60:61], v[110:111]
    v_cmp_ne_u32 s[56:57], s99, v108
    s_mov_b64 exec, -1
    s_or_b64 vcc, vcc, s[56:57]
    s_cmp_eq_u64 vcc, 0
    s_cselect_b32 s97, 1, 0""")
        if "forceslow" in self.exp: a("    s_mov_b32 s97, 0")
        a(f"    v_mov_b32 v13, s97\n    ds_write_b32 v12, v13 offset:{L_VERD}\n    s_waitcnt lgkmcnt(0)")

    def w1(self):
        a = self
        a("; ---------------- W1\nL_w1:")
        if "now1" in self.exp: a("    s_branch L_scores")
        a.get_epoch()
        a(f"""    v_lshlrev_b32 v4, 7, v1
    s_lshl_b32 s54, s28, 11
    s_add_u32 s54, s54, {W_F1}
    v_lshrrev_b32 v5, 4, v1
    v_lshlrev_b32 v5, 13, v5
    v_and_b32 v3, 15, v1
    v_lshl_add_u32 v5, v3, 5, v5
    s_lshl_b32 s52, s28, 15
    s_lshl_b32 s53, s31, 9
    s_add_u32 s52, s52, s53
    s_add_u32 s52, s52, {W_P1}
    s_add_u32 s53, s52, 4096
    v_lshlrev_b32 v6, 4, v1
    v_add_u32 v6, {LB + L_Q}, v6""")
        a.wait_flag(F_KHALF, 4, 40, sleep=4)
        a("    s_mov_b64 exec, 0xffff")
        l = a.poll_begin("pq")
        a(f"""    buffer_load_dwordx2 v[2:3], v4, s[36:39], s54 offen sc1
    s_waitcnt vmcnt(0)
    v_cmp_ne_u64 vcc, s[60:61], v[2:3]""")
        a.poll_end(l, 2, sleep=8)
        a("    s_mov_b64 exec, -1")
        a.stamp(5)
        for rb in range(4):
            so = "s52" if rb < 2 else "s53"
            for hf in range(2):
                r = 16 + 8*rb + 4*hf
                a(f"    buffer_load_dwordx4 v[{r}:{r+3}], v5, s[36:39], {so} offen offset:{(rb&1)*2048 + hf*16}{self.gf}")
        a("    s_waitcnt vmcnt(0)")
        for i in range(8): a(f"    v_add_f32 v{16+i}, v{16+i}, v{24+i}\n    v_add_f32 v{32+i}, v{32+i}, v{40+i}")
        for i in range(8): a(f"    v_add_f32 v{16+i}, v{16+i}, v{32+i}")
        for i in range(4): a(f"    v_cvt_pk_bf16_f32 v{24+i}, v{16+2*i}, v{17+2*i}")
        a(f"""    ds_write_b128 v6, v[24:27]
    s_waitcnt lgkmcnt(0)""")
        a.signal(F_QRDY)
        a("    s_branch L_scores")

    def w2(self):
        a = self
        a("; ---------------- W2\nL_w2:")
        if "now2" in self.exp: a("    s_branch L_scores")
        a(f"""    s_cmp_ge_u32 s2, 224
    s_cbranch_scc1 L_scores""")
        a.get_epoch()
        a(f"""    s_lshr_b32 s52, s2, 2             ; fb32
    s_and_b32 s53, s2, 3              ; nb
    v_lshrrev_b32 v2, 2, v1
    v_mul_u32_u24 v2, 56, v2
    v_and_b32 v3, 3, v1
    v_add_u32 v2, v2, v3
    v_lshlrev_b32 v4, 7, v2
    s_lshr_b32 s54, s52, 2            ; cbk
    s_lshl_b32 s55, s54, 2
    s_add_u32 s55, s55, 128
    s_lshl_b32 s48, s55, 7
    s_add_u32 s48, s48, {W_F1}
    v_lshrrev_b32 v5, 4, v1
    v_lshlrev_b32 v5, 9, v5
    v_and_b32 v3, 15, v1
    v_lshl_add_u32 v5, v3, 3, v5
    s_lshl_b32 s55, s55, 11
    s_and_b32 s56, s52, 3
    s_lshl_b32 s56, s56, 7
    s_add_u32 s55, s55, s56
    s_add_u32 s44, s55, {W_P1}
    s_add_u32 s45, s44, 4096
    s_add_u32 s46, s44, {56*2048}
    s_add_u32 s47, s46, 4096
    v_lshrrev_b32 v6, 4, v1
    v_lshlrev_b32 v6, 7, v6
    v_and_b32 v3, 1, v1
    v_lshl_add_u32 v6, v3, 6, v6
    v_bfe_u32 v3, v1, 1, 3
    v_lshl_add_u32 v6, v3, 2, v6
    v_add_u32 v6, {LB + L_H}, v6
    v_bfe_u32 v7, v1, 3, 1
    v_lshlrev_b32 v7, 7, v7
    v_lshrrev_b32 v3, 4, v1
    v_lshl_add_u32 v7, v3, 5, v7
    v_add_u32 v7, {LB + L_H}, v7
    v_lshlrev_b32 v15, 4, v1
    v_add_u32 v15, {LB + L_OW}, v15
    ; P2 address
    v_lshrrev_b32 v48, 5, v1
    v_mul_u32_u24 v48, 1792, v48
    v_and_b32 v3, 15, v1
    v_lshl_add_u32 v48, v3, 5, v48
    v_bfe_u32 v49, v1, 4, 1
    v_lshl_add_u32 v48, v49, 4, v48
    s_cmp_eq_u32 s53, 3
    s_cselect_b32 s54, 8, 16
    v_cmp_le_u32 vcc, s54, v3
    v_mov_b32 v49, {OOB}
    s_mul_i32 s49, s52, 7168
    s_lshl_b32 s55, s53, 9
    s_add_u32 s49, s49, s55
    s_add_u32 s49, s49, {W_P2}
    s_add_u32 s50, s49, 3584
    v_cndmask_b32 v48, v48, v49, vcc""")
        a.wait_flag(F_KHALF, 4, 41, sleep=4)
        for q in range(8):
            a(f"    ds_read_b128 v[{64+4*q}:{67+4*q}], v15 offset:{1024*q}")
        a("    s_mov_b64 exec, 0xff")
        l = a.poll_begin("pm")
        a(f"""    buffer_load_dwordx2 v[2:3], v4, s[36:39], s48 offen sc1
    s_waitcnt vmcnt(0)
    v_cmp_ne_u64 vcc, s[60:61], v[2:3]""")
        a.poll_end(l, 3, sleep=8)
        a("    s_mov_b64 exec, -1")
        a.stamp(5)
        for m in range(2):
            for rb in range(4):
                so = ["s44", "s45", "s46", "s47"][2*m + (rb >> 1)]
                r = 16 + 8*m + 2*rb
                a(f"    buffer_load_dwordx2 v[{r}:{r+1}], v5, s[36:39], {so} offen offset:{(rb&1)*2048}{self.gf}")
        a("    s_waitcnt vmcnt(0)")
        for m in range(2):
            b0 = 16 + 8*m
            for e in range(2):
                a(f"    v_add_f32 v{b0+e}, v{b0+e}, v{b0+2+e}\n    v_add_f32 v{b0+4+e}, v{b0+4+e}, v{b0+6+e}")
            for e in range(2):
                a(f"    v_add_f32 v{b0+e}, v{b0+e}, v{b0+4+e}")
        a(f"""    v_cvt_pk_bf16_f32 v2, v16, v17
    v_cvt_pk_bf16_f32 v3, v24, v25
    v_lshlrev_b32 v16, 16, v2
    v_and_b32 v17, 0xffff0000, v2
    v_lshlrev_b32 v24, 16, v3
    v_and_b32 v25, 0xffff0000, v3
    v_cmp_lt_f32 vcc, 0, v16
    v_cmp_lt_f32 s[54:55], 0, v17
    s_nop 1
    v_cndmask_b32 v2, 0, 1.0, vcc
    v_cndmask_b32 v3, 0, 1.0, s[54:55]
    v_mul_f32 v16, v16, v2
    v_mul_f32 v17, v17, v3
    v_mul_f32 v16, v16, v24
    v_mul_f32 v17, v17, v25
    v_cvt_pk_bf16_f32 v16, v16, v16
    v_cvt_pk_bf16_f32 v17, v17, v17
    ds_write_b32 v6, v16
    ds_write_b32 v6, v17 offset:32
    s_waitcnt lgkmcnt(0)
    ds_read_b128 v[16:19], v7
    ds_read_b128 v[20:23], v7 offset:16
    ds_read_b128 v[24:27], v7 offset:256
    ds_read_b128 v[28:31], v7 offset:272
    s_waitcnt lgkmcnt(0)""")
        a.selgemv(8, lambda pr, q: 16 + 8*pr + q, lambda q: 64 + 4*q, [40, 44])
        a(f"""    s_nop 7
    buffer_store_dwordx4 v[40:43], v48, s[36:39], s49 offen{self.sf}
    buffer_store_dwordx4 v[44:47], v48, s[36:39], s50 offen{self.sf}""")
        a("    s_branch L_scores")

    def scores(self):
        a = self
        a("; ---------------- scores\nL_scores:")
        if "vonly" in self.exp:
            a.stamp_dump(); a("    s_endpgm")
        a(f"""    v_and_b32 v2, 1, v1
    v_lshlrev_b32 v2, 9, v2
    v_lshrrev_b32 v3, 4, v1
    v_lshl_add_u32 v2, v3, 4, v2
    v_add_u32 v24, {LB + L_Q}, v2
    v_bfe_u32 v2, v1, 2, 2            ; jh
    v_and_b32 v3, 3, v1
    v_lshl_add_u32 v4, v2, 4, v3
    s_lshl_b32 s52, s3, 2
    v_add_u32 v4, s52, v4
    v_lshlrev_b32 v4, 9, v4
    v_lshrrev_b32 v5, 4, v1
    v_xor_b32 v5, v5, v3
    v_lshl_add_u32 v4, v5, 4, v4""")
        for m in range(4):
            a(f"    v_xor_b32 v5, {m}, v2\n    v_lshl_add_u32 v{16+m}, v5, 6, v4\n    v_add_u32 v{20+m}, 0x10000, v{16+m}")
        a(f"""    v_lshrrev_b32 v6, 2, v1
    s_and_b32 s52, s29, 15
    v_subrev_u32 v6, s52, v6
    v_and_b32 v6, 15, v6
    v_lshlrev_b32 v6, 2, v6
    v_and_b32 v7, 3, v1
    v_lshl_add_u32 v6, v7, 6, v6
    s_lshl_b32 s52, s3, 9
    s_add_u32 s52, s52, {LB + L_P}
    v_add_u32 v25, s52, v6
    s_lshl_b32 s52, s3, 3
    v_add_u32 v26, s52, v12
    s_mov_b32 s48, 0xffff0000
    s_mov_b32 s49, 0
    s_mov_b32 s50, 0
    s_mov_b32 s51, 0xffff
    s_mov_b32 s54, 0
    s_mov_b32 s55, 0xffff0000""")
        a.wait_flag(F_QRDY, 1, 4)
        a.stamp(6)
        for ks in range(8):
            a(f"    ds_read_b128 v[{64+4*ks}:{67+4*ks}], v24 offset:{64*ks}")
        a.wait_flag(F_KLAND, 4, 5)
        a.stamp(7)
        def kread(t, buf):
            for ks in range(8):
                m = ks & 3; hi = ks >> 2
                base = (16 if t < 2 else 20) + m
                off = (t & 1)*32768 + hi*256
                a(f"    ds_read_b128 v[{buf+4*ks}:{buf+4*ks+3}], v{base} offset:{off}")
        bufs = [96, 128]
        kread(0, bufs[0])
        for t in range(4):
            if t < 3:
                kread(t+1, bufs[(t+1) & 1])
                a("    s_waitcnt lgkmcnt(8)")
            else:
                a("    s_waitcnt lgkmcnt(0)")
            for ks in range(8):
                a.mfma(40 + 4*t, 64 + 4*ks, bufs[t & 1] + 4*ks, "0" if ks == 0 else None)
        a(f"""    s_nop 7
    v_cndmask_b32 v2, v40, v44, s[48:49]
    v_cndmask_b32 v3, v41, v45, s[48:49]
    v_cndmask_b32 v2, v2, v48, s[50:51]
    v_cndmask_b32 v3, v3, v49, s[50:51]
    v_cndmask_b32 v2, v2, v52, s[54:55]
    v_cndmask_b32 v3, v3, v53, s[54:55]
    v_cvt_pk_bf16_f32 v4, v2, v3
    v_lshlrev_b32 v2, 16, v4
    v_and_b32 v3, 0xffff0000, v4""")
        if self.dump:
            a(f"""    v_lshrrev_b32 v4, 2, v1
    v_lshlrev_b32 v4, 4, v4
    v_and_b32 v5, 3, v1
    v_add_u32 v4, v4, v5
    s_lshl_b32 s52, s3, 2
    v_add_u32 v4, s52, v4
    v_lshlrev_b32 v4, 2, v4
    s_lshl_b32 s52, s2, 11
    s_add_u32 s52, s52, {W_DUMP}
    buffer_store_dword v2, v4, s[36:39], s52 offen
    buffer_store_dword v3, v4, s[36:39], s52 offen offset:1024""")
        a("    v_mov_b32 v4, v2\n    v_mov_b32 v5, v3")
        a.reduce64("max_f32", [4, 5], [6, 7])
        a(f"""    s_mov_b64 exec, 1
    ds_write_b64 v26, v[4:5] offset:{L_SMMAX}
    s_waitcnt lgkmcnt(0)
    ds_add_u32 v12, v14 offset:{F_MAX}
    s_mov_b64 exec, -1""")
        a.wait_flag(F_MAX, 4, 6, sleep=0)
        a(f"""    ds_read_b128 v[16:19], v12 offset:{L_SMMAX}
    ds_read_b128 v[20:23], v12 offset:{L_SMMAX+16}
    s_waitcnt lgkmcnt(0)
    v_max3_f32 v4, v16, v18, v20
    v_max3_f32 v5, v17, v19, v21
    v_max_f32 v4, v4, v22             ; M0
    v_max_f32 v5, v5, v23             ; M1
    v_sub_f32 v2, v2, v4
    v_sub_f32 v3, v3, v5
    v_mul_f32 v2, {fbits(CEXP)}, v2
    v_mul_f32 v3, {fbits(CEXP)}, v3
    v_exp_f32 v2, v2
    v_exp_f32 v3, v3
    s_nop 0
    v_cvt_pk_bf16_f32 v16, v2, v2
    v_cvt_pk_bf16_f32 v17, v3, v3
    ds_write_b32 v25, v16
    ds_write_b32 v25, v17 offset:256""")
        a.reduce64("add_f32", [2, 3], [6, 7])
        a(f"""    s_mov_b64 exec, 1
    ds_write_b64 v26, v[2:3] offset:{L_SMSUM}
    s_waitcnt lgkmcnt(0)
    ds_add_rtn_u32 v13, v12, v14 offset:{F_PSUM}
    s_waitcnt lgkmcnt(0)
    s_mov_b64 exec, -1
    v_readfirstlane_b32 s58, v13
    s_cmp_eq_u32 s58, 3
    s_cbranch_scc0 L_noml""")
        a.get_epoch()
        a(f"""    ds_read_b128 v[16:19], v12 offset:{L_SMSUM}
    ds_read_b128 v[20:23], v12 offset:{L_SMSUM+16}
    v_cmp_eq_u32 vcc, 1, v1
    v_lshlrev_b32 v6, 4, v1
    s_lshl_b32 s52, s32, 8
    s_lshl_b32 s53, s30, 5
    s_add_u32 s52, s52, s53
    s_add_u32 s52, s52, {W_ML}
    s_waitcnt lgkmcnt(0)
    v_add_f32 v16, v16, v18
    v_add_f32 v17, v17, v19
    v_add_f32 v20, v20, v22
    v_add_f32 v21, v21, v23
    v_add_f32 v16, v16, v20           ; l0
    v_add_f32 v17, v17, v21           ; l1
    v_mov_b32 v18, s60
    v_mov_b32 v19, s61
    v_cndmask_b32 v17, v16, v17, vcc
    v_cndmask_b32 v16, v4, v5, vcc
    s_mov_b64 exec, 3
    buffer_store_dwordx4 v[16:19], v6, s[36:39], s52 offen sc1
    s_mov_b64 exec, -1
L_noml:""")
        a(f"""    s_cmp_eq_u32 s3, 2
    s_cbranch_scc0 L_nof2
    s_cmp_ge_u32 s2, 224
    s_cbranch_scc1 L_nof2
    s_lshl_b32 s56, s2, 7
    s_add_u32 s56, s56, {W_F2}
    v_mov_b32 v4, s60
    v_mov_b32 v5, s61
    v_mov_b32 v6, 0
    s_waitcnt vmcnt(0)
    s_mov_b64 exec, 1
    buffer_store_dwordx2 v[4:5], v6, s[36:39], s56 offen sc1
    s_mov_b64 exec, -1
L_nof2:""")
        a.stamp(8)

    def tail_compute(self):
        a = self
        a.get_epoch()
        a(f"""    s_cmp_eq_u32 s3, 0
    s_cbranch_scc0 L_norecheck
    v_lshlrev_b32 v104, 7, v1
    s_lshl_b32 s52, s28, 12
    s_lshl_b32 s53, s31, 10
    s_add_u32 s52, s52, s53
    s_add_u32 s52, s52, {W_XT}
    s_mov_b64 exec, 0xff
    buffer_load_dwordx4 v[108:111], v104, s[36:39], s52 offen sc1
    s_mov_b64 exec, -1""")
        self.verdict()
        a("L_norecheck:")
        if self.stamps:
            a(f"""    s_cmp_eq_u32 s3, 0
    s_cbranch_scc0 L_nodbgv
    v_mov_b32 v2, s99
    v_mov_b32 v3, s97
    s_lshl_b32 s52, s2, 3
    s_add_u32 s52, s52, {W_DUMP + 0x90000}
    v_mov_b32 v4, 0
    s_mov_b64 exec, 1
    buffer_store_dwordx2 v[2:3], v4, s[36:39], s52 offen
    s_mov_b64 exec, -1
L_nodbgv:""")
        a(f"""    s_mov_b32 s44, s12
    s_mov_b32 s45, s13
    s_mov_b32 s46, 3670016
    s_mov_b32 s47, 0x20000
    v_lshrrev_b32 v2, 4, v1
    v_mul_u32_u24 v2, 896, v2
    v_and_b32 v3, 15, v1
    v_lshl_add_u32 v5, v3, 4, v2
    s_cmp_eq_u32 s3, 3
    s_cselect_b32 s54, 8, 16
    v_cmp_le_u32 vcc, s54, v3
    v_mov_b32 v6, {OOB}
    s_lshl_b32 s52, s28, 9
    s_lshl_b32 s53, s30, 5
    s_add_u32 s52, s52, s53
    s_mul_i32 s52, s52, 896
    s_lshl_b32 s53, s3, 8
    s_add_u32 s52, s52, s53
    v_cndmask_b32 v46, v5, v6, vcc
    v_add_u32 v47, 7168, v46""")
        for i in range(4):
            a(f"""    s_add_u32 s53, s31, {i}
    s_and_b32 s53, s53, 3
    s_mul_i32 s{40+i}, s53, 14336
    s_cmp_ge_u32 s53, 2
    s_cselect_b32 s53, 200704, 0
    s_add_u32 s{40+i}, s{40+i}, s53
    s_add_u32 s{40+i}, s{40+i}, s52""")
        a(f"""    ; o gather: lane (ph=l>>5, gi=l&31): producer p = k + 4ph
    v_lshrrev_b32 v2, 5, v1
    v_mul_u32_u24 v2, {4*REC}, v2
    v_and_b32 v3, 31, v1
    v_lshl_add_u32 v48, v3, 4, v2
    v_bfe_u32 v3, v1, 3, 1
    v_lshrrev_b32 v45, 5, v1
    v_lshlrev_b32 v45, 7, v45         ; ph*4*32
    v_lshl_add_u32 v45, v3, 4, v45
    s_lshl_b32 s34, s32, 8
    s_add_u32 s34, s34, {W_ML}
    s_mul_i32 s48, s32, {64*REC}
    s_mul_i32 s53, s30, {8*REC}
    s_add_u32 s48, s48, s53
    s_add_u32 s48, s48, {W_P3}
    v_bfe_u32 v2, v1, 4, 1            ; s
    v_lshlrev_b32 v2, 7, v2           ; (2s)*64
    v_and_b32 v3, 15, v1
    s_lshl_b32 s53, s31, 2
    v_subrev_u32 v3, s53, v3
    v_and_b32 v3, 15, v3
    v_lshl_add_u32 v2, v3, 2, v2
    s_lshl_b32 s53, s3, 8
    s_add_u32 s53, s53, {LB + L_OD}
    v_add_u32 v49, s53, v2
    v_lshrrev_b32 v3, 4, v1
    v_lshlrev_b32 v3, 6, v3
    v_add_u32 v50, s53, v3
    ; P4 store
    v_and_b32 v2, 15, v1
    v_lshlrev_b32 v2, 6, v2
    v_bfe_u32 v3, v1, 4, 1
    v_lshl_add_u32 v2, v3, 5, v2
    v_lshrrev_b32 v3, 5, v1
    v_lshl_add_u32 v51, v3, 4, v2
    v_and_b32 v3, 15, v1
    s_cmp_eq_u32 s3, 3
    s_cselect_b32 s54, 8, 16
    v_cmp_le_u32 vcc, s54, v3
    s_lshl_b32 s49, s31, 6
    s_lshl_b32 s53, s28, 3
    s_add_u32 s49, s49, s53
    s_add_u32 s49, s49, s30
    s_mul_i32 s49, s49, 3584
    s_lshl_b32 s53, s3, 10
    s_add_u32 s49, s49, s53
    s_add_u32 s49, s49, {W_P4}
    v_cndmask_b32 v51, v51, v6, vcc
    v_mov_b32 v54, s60
    v_mov_b32 v55, s61
    v_cmp_le_u32 s[50:51], 32, v1""")
        a.stamp(9)
        a("    s_barrier                         ; B1")
        a.stamp(10)
        for k in range(4):
            a(f"    buffer_load_dwordx4 v[{128+4*k}:{131+4*k}], v45, s[36:39], s34 offen offset:{32*k} sc1")
        for n in range(16):
            vo = "v46" if (n & 3) < 2 else "v47"
            if "nowo" in self.exp:
                a(f"    buffer_load_dword v{64+4*n}, v12, s[36:39], 0 offen")
                continue
            a(f"    buffer_load_dwordx4 v[{64+4*n}:{67+4*n}], {vo}, s[44:47], s{40 + (n >> 2)} offen offset:{3584*(n & 1)}{self.woflags}")
        a.stamp(11)
        a("    s_waitcnt vmcnt(16)")
        a.tagcheck([130, 134, 138, 142])
        lok = a.L("mlok")
        a(f"    s_cbranch_vccz {lok}")
        l = a.poll_begin("pml")
        for k in range(4):
            a(f"    buffer_load_dwordx4 v[{128+4*k}:{131+4*k}], v45, s[36:39], s34 offen offset:{32*k} sc1")
        a("    s_waitcnt vmcnt(0)")
        a.tagcheck([130, 134, 138, 142])
        a.poll_end(l, 10, sleep=2)
        a(f"{lok}:")
        if "tailst" in self.exp: a.stamp(1)
        a("""    v_max_f32 v144, v128, v132
    v_max_f32 v145, v136, v140
    v_max_f32 v144, v144, v145""")
        a.xrows("max_f32", [144], [145], which=("32",))
        for k in range(4):
            a(f"    v_sub_f32 v{146+k}, v{128+4*k}, v144")
        for k in range(4):
            a(f"    v_mul_f32 v{146+k}, {fbits(CEXP)}, v{146+k}")
        for k in range(4):
            a(f"    v_exp_f32 v{146+k}, v{146+k}")
        a("""    s_nop 0
    v_mul_f32 v150, v146, v129
    v_fmac_f32 v150, v147, v133
    v_fmac_f32 v150, v148, v137
    v_fmac_f32 v150, v149, v141""")
        a.xrows("add_f32", [150], [151], which=("32",))
        a("""    v_rcp_f32 v151, v150
    s_nop 0
    v_fma_f32 v152, -v150, v151, 1.0
    v_fmac_f32 v151, v152, v151""")
        for k in range(4):
            a(f"    v_mul_f32 v{146+k}, v{146+k}, v151")
        a.wait_flag(F_PUB, 1, 11, sleep=0)
        if "tailst" in self.exp:
            a.stamp(2)
            a("    s_waitcnt vmcnt(0)")
            a.stamp(3)
        l = a.poll_begin("po")
        for k in range(4):
            a(f"    buffer_load_dwordx4 v[{16+4*k}:{19+4*k}], v48, s[36:39], s48 offen offset:{REC*k}{self.tgf}")
        a("    s_waitcnt vmcnt(0)")
        a.tagcheck([18, 22, 26, 30])
        a.poll_end(l, 12, sleep=self.osleep)
        if "tailst" in self.exp: a("    s_lshl_b32 s78, s59, 0\n    s_mul_i32 s78, s78, 100\n    s_add_u32 s78, s78, s70")
        a.stamp(12)
        a(f"""    v_mul_f32 v16, v16, v146
    v_mul_f32 v17, v17, v146
    v_mul_f32 v24, v24, v148
    v_mul_f32 v25, v25, v148
    v_fmac_f32 v16, v20, v147
    v_fmac_f32 v17, v21, v147
    v_fmac_f32 v24, v28, v149
    v_fmac_f32 v25, v29, v149
    v_add_f32 v16, v16, v24
    v_add_f32 v17, v17, v25""")
        a.xrows("add_f32", [16, 17], [18, 19], which=("32",))
        a(f"""    v_cvt_pk_bf16_f32 v16, v16, v16
    v_cvt_pk_bf16_f32 v17, v17, v17
    s_mov_b32 exec_hi, 0
    ds_write_b32 v49, v16
    ds_write_b32 v49, v17 offset:64
    s_mov_b32 exec_hi, -1
    s_waitcnt lgkmcnt(0)
    ds_read_b128 v[16:19], v50
    ds_read_b128 v[20:23], v50 offset:16
    ds_read_b128 v[24:27], v50 offset:32
    ds_read_b128 v[28:31], v50 offset:48
    s_waitcnt lgkmcnt(0)""")
        a.selgemv(16, lambda pr, q: 16 + q, lambda q: 64 + 4*q, [40])
        a(f"""    s_nop 7
    v_cndmask_b32 v52, v40, v42, s[50:51]
    v_cndmask_b32 v53, v41, v43, s[50:51]
    buffer_store_dwordx4 v[52:55], v51, s[36:39], s49 offen{self.tsf}""")
        a.stamp(13)
        if "dbgtime" in self.exp:
            a("    s_cmp_eq_u32 s3, 0\n    s_cbranch_scc0 L_nodt3")
            a.dbgtime(3)
            a("L_nodt3:")
        a.stamp_dump()
        a("    s_endpgm")

    def red8(self, v0, v1, t0, t1):
        a = self
        a(f"    s_nop 1\n    v_add_f32_dpp v{v0}, v{v0}, v{v0} row_ror:8 row_mask:0xf bank_mask:0xf\n    v_add_f32_dpp v{v1}, v{v1}, v{v1} row_ror:8 row_mask:0xf bank_mask:0xf")
        a.xrows("add_f32", [v0, v1], [t0, t1])

def generate(**kw):
    return Gen(**kw).build()

if __name__ == "__main__":
    import argparse
    ap = argparse.ArgumentParser()
    ap.add_argument("-o", default="recurrent_scan__sliding_block_cached__glu_gated_reglu__decode.s")
    ap.add_argument("--stamps", action="store_true")
    ap.add_argument("--dump", action="store_true")
    ap.add_argument("--thr", type=int, default=5)
    ap.add_argument("--khalf", type=int, default=20)
    ap.add_argument("--wsoff", type=lambda x: int(x, 0), default=0)
    ap.add_argument("--noprefetch", action="store_true")
    ap.add_argument("--exp", default="")
    ap.add_argument("--woflags", default=" nt")
    args = ap.parse_args()
    txt = generate(thr=args.thr, stamps=args.stamps, dump=args.dump, prefetch=not args.noprefetch,
                   exp=[e for e in args.exp.split(',') if e], woflags=args.woflags, khalf=args.khalf, wsoff=args.wsoff)
    open(args.o, "w").write(txt)
    print("wrote", args.o, len(txt))
```

```python
import sys, struct
sys.path.insert(0, "gen")
from asmlib import Asm

NAME = "recurrent_scan__sliding_block_cached__glu_gated_reglu__decode_kernel"

LB = 131072
F_KLAND, F_QRDY, F_MAX, F_PSUM, F_OW, F_XN, F_T1LAND, F_ERDY = 0, 4, 8, 12, 16, 20, 24, 28
L_E = 32
F_T1DONE, F_S1, F_KHALF, F_PUB = 40, 44, 48, 52
L_VERD = 56
F_VRDY = 60
L_SMMAX = 64
L_SMSUM = 96
L_Q = 256
L_P = 1280
L_H = 3328
L_OD = 3840
L_XN = 4864
L_OW = 12032
L_S1 = 20224
LDS_TOTAL = LB + L_S1 + 8192
W_EPOCH = 0
W_F1 = 0x1000
W_F2 = 0x2000
W_XT = 0x3000
W_ML = 0x4000
W_F1G = 0x6000
W_P5 = 0x8000
W_P1 = 0x30000
W_P2 = 0xB0000
W_P3 = 0x120000
W_P4 = 0x220000
W_STAMP = 0x380000
W_DUMP = 0x3A0000
WS_SIZE = 0x440000
REC = 512

LOG2E = 1.4426950408889634
CEXP = 0.0625 * LOG2E
def fbits(x): return "0x%08x" % struct.unpack("<I", struct.pack("<f", x))[0]
OOB = "0x7ffffff0"

class Gen:
    def __init__(self, thr=5, stamps=False, dump=False, timeout=1 << 16, prefetch=True, exp=(), woflags=" nt", khalf=20, burst=5):
        self.a = Asm()
        self.thr = thr; self.stamps = stamps; self.dump = dump; self.timeout = timeout
        self.prefetch = prefetch; self.exp = set(exp); self.woflags = woflags; self.khalf = khalf; self.burst = burst
        self.uid = 0
    def L(self, base):
        self.uid += 1
        return f"L_{base}_{self.uid}"
    def __call__(self, s): self.a(s)
    def stamp(self, i):
        if self.stamps: self(f"    s_memrealtime s[{68+2*i}:{69+2*i}]")
    def stamp_dump(self):
        if not self.stamps: return
        self(f"""    s_waitcnt lgkmcnt(0) vmcnt(0)
    s_lshl_b32 s52, s2, 3
    s_add_u32 s52, s52, s3
    s_lshl_b32 s52, s52, 6
    s_add_u32 s52, s52, {W_STAMP}
    s_mov_b64 exec, 1
    v_mov_b32 v2, s52""")
        for q in range(4):
            regs = [68 + 2*(4*q + r) if 4*q + r < 14 else 68 for r in range(4)]
            self(f"    v_mov_b32 v4, s{regs[0]}\n    v_mov_b32 v5, s{regs[1]}\n    v_mov_b32 v6, s{regs[2]}\n    v_mov_b32 v7, s{regs[3]}")
            self(f"    buffer_store_dwordx4 v[4:7], v2, s[36:39], 0 offen offset:{16*q}\n    s_nop 1")
    def signal(self, flag):
        self(f"""    s_mov_b64 exec, 1
    ds_add_u32 v12, v14 offset:{flag}
    s_mov_b64 exec, -1""")
    def wait_flag(self, flag, target, code, sleep=1):
        l = self.L("wf"); d = self.L("wfd")
        sl = f"    s_sleep {sleep}\n" if sleep else ""
        self(f"""    s_mov_b32 s59, 0
{l}:
    ds_read_b32 v13, v12 offset:{flag}
    s_waitcnt lgkmcnt(0)
    v_readfirstlane_b32 s58, v13
    s_cmp_ge_u32 s58, {target}
    s_cbranch_scc1 {d}
{sl}    s_add_u32 s59, s59, 1
    s_cmp_lt_u32 s59, {self.timeout}
    s_cbranch_scc1 {l}
    s_mov_b32 s57, {code}
    s_branch L_abort
{d}:""")
    def masks(self):
        self("""    v_and_b32 v2, 1, v1
    v_lshlrev_b32 v2, 4, v2
    v_mov_b32 v3, 0xffff
    v_lshlrev_b32 v2, v2, v3
    v_bfe_u32 v3, v1, 1, 2            ; (l>>1)&3
    v_cmp_eq_u32 vcc, 0, v3
    v_cmp_eq_u32 s[64:65], 1, v3
    v_cmp_eq_u32 s[66:67], 2, v3
    v_cmp_eq_u32 s[56:57], 3, v3
    s_nop 1
    v_cndmask_b32 v8, 0, v2, vcc
    v_cndmask_b32 v9, 0, v2, s[64:65]
    v_cndmask_b32 v10, 0, v2, s[66:67]
    v_cndmask_b32 v11, 0, v2, s[56:57]""")
    def sel(self, A, P):
        for r in range(4): self(f"    v_and_b32 v{A+r}, v{P}, v{8+r}")
    def mfma(self, D, A, B, C=None):
        c = f"v[{D}:{D+3}]" if C is None else C
        self(f"    v_mfma_f32_16x16x32_bf16 v[{D}:{D+3}], v[{A}:{A+3}], v[{B}:{B+3}], {c}")
    def selgemv(self, nq, Preg, Breg, accs, A0=32, A1=36):
        seq = [(q, pr) for q in range(nq) for pr in range(len(accs))]
        Ab = [A0, A1]; first = set()
        self.sel(Ab[0], Preg(seq[0][1], seq[0][0]))
        for n, (q, pr) in enumerate(seq):
            if n + 1 < len(seq):
                q2, pr2 = seq[n+1]
                self.sel(Ab[(n+1) & 1], Preg(pr2, q2))
            else:
                self("    s_nop 1")
            C = None
            if pr not in first:
                first.add(pr); C = "0"
            self.mfma(accs[pr], Ab[n & 1], Breg(q), C)
    def reduce64(self, op, regs, tmps):
        n = len(regs)
        pad = "    s_nop 1" if n == 1 else ("    s_nop 0" if n == 2 else None)
        for s in (8, 4, 2, 1):
            if pad: self(pad)
            for v in regs:
                self(f"    v_{op}_dpp v{v}, v{v}, v{v} row_ror:{s} row_mask:0xf bank_mask:0xf")
        self.xrows(op, regs, tmps)
    def xrows(self, op, regs, tmps, which=("16", "32")):
        for perm in which:
            for v, t in zip(regs, tmps): self(f"    v_mov_b32 v{t}, v{v}")
            self("    s_nop 1" if len(regs) < 3 else "    s_nop 0")
            for v, t in zip(regs, tmps): self(f"    v_permlane{perm}_swap_b32 v{v}, v{t}")
            self("    s_nop 1")
            for v, t in zip(regs, tmps): self(f"    v_{op} v{v}, v{v}, v{t}")
    def get_epoch(self):
        self.wait_flag(F_ERDY, 1, 20)
        self(f"""    ds_read_b64 v[2:3], v12 offset:{L_E}
    s_waitcnt lgkmcnt(0)
    v_readfirstlane_b32 s60, v2
    v_readfirstlane_b32 s61, v3""")
    def get_verdict(self):
        self.wait_flag(F_VRDY, 1, 25)
        self(f"""    ds_read_b32 v13, v12 offset:{L_VERD}
    s_waitcnt lgkmcnt(0)
    v_readfirstlane_b32 s97, v13""")
    def stores(self, lst):
        lo = self.L("loc"); dn = self.L("std")
        self(f"    s_cmp_eq_u32 s97, 1\n    s_cbranch_scc1 {lo}")
        for t in lst: self("    " + (t + " sc1" if t.startswith("buffer_store") else t))
        self(f"    s_branch {dn}\n{lo}:")
        for t in lst: self("    " + t)
        self(f"{dn}:")
    def poll_begin(self, name):
        l = self.L(name)
        self(f"    s_mov_b32 s59, 0\n{l}:")
        return l
    def poll_end(self, l, code, sleep=2):
        d = self.L("pd")
        sl = f"    s_sleep {sleep}\n" if sleep else ""
        self(f"""    s_cbranch_vccz {d}
{sl}    s_add_u32 s59, s59, 1
    s_cmp_lt_u32 s59, {self.timeout}
    s_cbranch_scc1 {l}
    s_mov_b32 s57, {code}
    s_branch L_abort
{d}:""")
    def tagcheck(self, pairs):
        self(f"    v_cmp_ne_u64 vcc, s[60:61], v[{pairs[0]}:{pairs[0]+1}]")
        for p in pairs[1:]:
            self(f"    v_cmp_ne_u64 s[56:57], s[60:61], v[{p}:{p+1}]\n    s_or_b64 vcc, vcc, s[56:57]")
    def red8(self, v0, v1, t0, t1):
        self(f"    s_nop 1\n    v_add_f32_dpp v{v0}, v{v0}, v{v0} row_ror:8 row_mask:0xf bank_mask:0xf\n    v_add_f32_dpp v{v1}, v{v1}, v{v1} row_ror:8 row_mask:0xf bank_mask:0xf")
        self.xrows("add_f32", [v0, v1], [t0, t1])

    def build(self):
        a = self
        hdr = open("recurrent_scan__sliding_block_cached__glu_gated_reglu__decode.s.ref").read().split("\n")
        for l in hdr:
            if l.startswith("; Override") or l.startswith("; grid=") or l.startswith("; @launch"): continue
            if l.startswith(";"): a(l)
            else: break
        a(f"; @launch grid=(256,1,1) block=(512,1,1) lds={LDS_TOTAL}")
        a('.amdgcn_target "amdgcn-amd-amdhsa--gfx950"')
        a(f".text\n.globl {NAME}\n.p2align 8\n.type {NAME},@function\n{NAME}:")
        a(f"""    s_cmp_ge_u32 s2, 256
    s_cbranch_scc1 L_end
    s_load_dwordx16 s[4:19], s[0:1], 0
    s_load_dwordx8 s[20:27], s[0:1], 64""")
        if self.prefetch:
            a(f"""    s_getpc_b64 s[52:53]
    s_lshr_b32 s54, s2, 3
    s_and_b32 s54, s54, 3
    s_lshl_b32 s54, s54, 12
    v_lshlrev_b32 v2, 3, v0
    v_add_u32 v2, s54, v2
    global_load_dwordx2 v[236:237], v2, s[52:53]""")
        a.stamp(0)
        a(f"""    v_and_b32 v1, 63, v0
    v_lshrrev_b32 v2, 6, v0
    v_mov_b32 v12, {LB}
    v_readfirstlane_b32 s3, v2
    v_mov_b32 v14, 1
    s_and_b32 s28, s2, 7              ; x = kvh
    s_lshr_b32 s29, s2, 3             ; r
    s_and_b32 s30, s29, 7             ; c
    s_lshr_b32 s31, s29, 3            ; b
    s_lshl_b32 s32, s31, 3
    s_add_u32 s32, s32, s28           ; grp
    s_and_b32 s63, s29, 3             ; rb
    s_bfe_u32 s52, s29, 0x10002       ; fbk = (r>>2)&1
    s_lshl_b32 s53, s28, 1
    s_add_u32 s53, s53, s52           ; 2x + fbk
    s_add_u32 s54, s28, 6             ; 12 + (x-6)
    s_cmp_lt_u32 s28, 6
    s_cselect_b32 s53, s53, s54       ; FB
    s_cselect_b32 s55, 0, s52
    s_lshl_b32 s53, s53, 8
    s_bfe_u32 s54, s29, 0x10003       ; m = (r>>3)&1
    s_add_u32 s98, s54, 1
    s_cmp_lg_u32 s55, 0
    s_cselect_b32 s98, 3, s98
    s_lshl_b32 s33, s28, 10
    s_lshr_b32 s54, s29, 2
    s_lshl_b32 s54, s54, 8
    s_add_u32 s33, s33, s54
    s_cmp_lt_u32 s29, 16
    s_cselect_b32 s33, s33, s53
    s_cselect_b32 s98, 0, s98         ; matrix
    s_mov_b32 s62, 3584
    s_cselect_b32 s62, 8192, s62
@OLDTILE@
    s_cmp_lt_u32 s3, 4
    s_cbranch_scc1 L_cw""")
        self.loader()
        self.compute()
        a("L_abort:")
        a(f"""    s_mov_b32 s40, s24
    s_mov_b32 s41, s25
    s_mov_b32 s42, 256
    s_mov_b32 s43, 0x20000
    s_mov_b64 exec, 1
    v_mov_b32 v2, s57
    v_mov_b32 v3, s2
    v_mov_b32 v4, 0
    buffer_store_dwordx2 v[2:3], v4, s[40:43], 0 offen
L_end:
    s_endpgm
L_codeend:
    .fill (16896 - (L_codeend - {NAME}))/4, 4, 0xbf810000
.section .rodata,"a"
.p2align 6
.amdhsa_kernel {NAME}
  .amdhsa_next_free_vgpr 240
  .amdhsa_next_free_sgpr 100
  .amdhsa_accum_offset 240
  .amdhsa_group_segment_fixed_size 0
  .amdhsa_kernarg_size 96
  .amdhsa_user_sgpr_count 2
  .amdhsa_user_sgpr_kernarg_segment_ptr 1
  .amdhsa_system_sgpr_workgroup_id_x 1
.end_amdhsa_kernel""")
        old = """    s_cmp_lt_u32 s2, 128
    s_mov_b32 s62, 3584
    s_cselect_b32 s62, 8192, s62
    s_cselect_b32 s53, 0, 128
    s_cselect_b32 s98, 0, 1
    s_cmp_lt_u32 s2, 184
    s_cselect_b32 s53, s53, 184
    s_cselect_b32 s98, s98, 2
    s_cmp_lt_u32 s2, 240
    s_cselect_b32 s98, s98, 3
    s_sub_u32 s53, s2, s53
    s_and_b32 s63, s53, 3
    s_lshr_b32 s33, s53, 2
    s_lshl_b32 s33, s33, 8"""
        mix = """    s_cmp_lt_u32 s29, 16
    s_cbranch_scc0 L_mixd
    s_add_u32 s52, s28, s29
    s_and_b32 s52, s52, 7
    s_lshl_b32 s33, s52, 10
    s_lshr_b32 s54, s29, 2
    s_lshl_b32 s54, s54, 8
    s_add_u32 s33, s33, s54
L_mixd:"""
        return self.a.text().replace("@OLDTILE@", old if "oldtile" in self.exp else (mix if "mixtile" in self.exp else ""))

    def ws_srd(self):
        self(f"""    s_mov_b32 s36, s26
    s_mov_b32 s37, s27
    s_mov_b32 s38, {WS_SIZE}
    s_mov_b32 s39, 0x20000""")

    def loader(self):
        a = self; THR = self.thr
        a(f"""    s_setprio 3
    s_sub_u32 s35, s3, 4              ; w
    v_lshrrev_b32 v2, 4, v1           ; g
    v_and_b32 v3, 15, v1              ; j
    v_mul_lo_u32 v5, v2, s62
    v_lshl_add_u32 v5, v3, 4, v5      ; T1 voffset
    s_mul_i32 s48, s63, 112
    s_lshl_b32 s52, s35, 2
    s_add_u32 s48, s48, s52
    s_mul_i32 s48, s48, s62
    s_add_u32 s48, s48, s33
    s_cmp_eq_u32 s98, 3
    s_cselect_b32 s48, {OOB}, s48     ; T1 soffset
    s_cselect_b32 s49, 0, s62
    s_lshl_b32 s49, s49, 4            ; T1 step
    s_lshl_b32 s34, s29, 12           ; rotK
    s_lshl_b32 s52, s35, 10
    s_add_u32 s34, s34, s52           ; kpos0
    v_mul_u32_u24 v6, 896, v2
    v_lshl_add_u32 v6, v3, 4, v6
    s_and_b32 s53, s29, 3             ; nb
    s_cmp_eq_u32 s53, 3
    s_cselect_b32 s54, 8, 16
    v_cmp_le_u32 vcc, s54, v3
    v_mov_b32 v7, {OOB}
    s_lshl_b32 s52, s28, 3
    s_lshl_b32 s55, s28, 2
    s_add_u32 s55, s55, 24
    s_cmp_lt_u32 s28, 6
    s_cselect_b32 s52, s52, s55
    s_cselect_b32 s58, 32, 16
    v_cndmask_b32 v6, v6, v7, vcc
    s_lshr_b32 s55, s29, 2
    s_add_u32 s52, s52, s55           ; fb32
    s_mul_i32 s50, s52, 28672
    s_lshl_b32 s56, s53, 8
    s_add_u32 s50, s50, s56
    s_mul_i32 s56, s35, 3584
    s_add_u32 s50, s50, s56
    s_cmp_ge_u32 s29, s58
    s_cselect_b32 s50, {OOB}, s50
    s_lshl_b32 s51, s35, 10
    s_add_u32 s51, s51, {LB + L_OW}
    ; K
    s_lshl_b32 s33, s32, 22
    s_lshl_b32 s52, s30, 17
    s_add_u32 s33, s33, s52
    s_add_u32 s33, s33, 3145728
    v_lshrrev_b32 v3, 5, v1
    s_and_b32 s52, s35, 1
    s_lshl_b32 s52, s52, 1
    v_add_u32 v4, s52, v3
    v_and_b32 v7, 31, v1
    v_xor_b32 v7, v7, v4
    v_lshlrev_b32 v7, 4, v7
    v_lshl_add_u32 v2, v3, 9, v7
    s_add_u32 s52, s34, {25*4096}
    s_waitcnt lgkmcnt(0)
    s_cmp_eq_u32 s98, 0
    s_cselect_b32 s40, s10, s16
    s_cselect_b32 s41, s11, s17
    s_mov_b32 s42, 1605632
    s_cselect_b32 s42, 3670016, s42
    s_cmp_eq_u32 s98, 2
    s_cselect_b32 s40, s18, s40
    s_cselect_b32 s41, s19, s41
    s_mov_b32 s43, 0x20000""")
        for i in range(7):
            a(f"""    s_and_b32 s52, s52, 0x1ffff
    s_mov_b32 m0, s52
    s_add_u32 s52, s52, 4096
    buffer_load_dwordx4 v5, s[40:43], s48 offen nt lds
    s_add_u32 s48, s48, s49""")
        a(f"""    s_mov_b32 s44, s20
    s_mov_b32 s45, s21
    s_mov_b32 s46, 1605632
    s_mov_b32 s47, 0x20000
    s_mov_b32 m0, s51
    s_add_u32 s51, s51, 4096
    buffer_load_dwordx4 v6, s[44:47], s50 offen nt lds
    s_mov_b32 m0, s51
    s_add_u32 s50, s50, 14336
    buffer_load_dwordx4 v6, s[44:47], s50 offen nt lds
    s_mov_b32 s40, s6
    s_mov_b32 s41, s7
    s_mov_b32 s42, 0x8000000
    s_mov_b32 s43, 0x20000
    s_mov_b32 s52, s34""")
        a.stamp(7)
        if "series" in self.exp: a("    s_mov_b32 s92, 0\n    s_memrealtime s[94:95]\n    v_mov_b32 v230, 0\n    v_mov_b32 v231, 0")
        def kloop(n, thr):
            if n <= 0: return
            l = a.L("k")
            a(f"    s_mov_b32 s54, {n}\n{l}:")
            if "series" in self.exp:
                a("    s_waitcnt lgkmcnt(0)\n    v_cmp_eq_u32 vcc, s92, v1\n    v_mov_b32 v228, s94\n    s_add_u32 s92, s92, 1\n    v_cndmask_b32 v230, v230, v228, vcc")
            a(f"""    s_and_b32 s52, s52, 0x1ffff
    s_lshr_b32 s55, s52, 7
    s_and_b32 s55, s55, 0xc0
    v_xor_b32 v3, s55, v2
    s_mov_b32 m0, s52
    s_add_u32 s56, s52, s33""")
            if thr is not None: a(f"    s_waitcnt vmcnt({thr})")
            if "series" in self.exp: a("    s_memrealtime s[94:95]")
            a(f"""    buffer_load_dwordx4 v3, s[40:43], s56 offen nt lds
    s_add_u32 s52, s52, 4096
    s_sub_u32 s54, s54, 1
    s_cmp_lg_u32 s54, 0
    s_cbranch_scc1 {l}""")
        n0 = self.burst
        kloop(n0, None)
        self.ws_srd()
        a("    s_barrier")
        a(f"    s_waitcnt vmcnt({n0 + 2})")
        a.signal(F_T1LAND)
        kloop(self.khalf - n0, THR)
        a.signal(F_KHALF)
        kloop(25 - self.khalf, THR)
        if "nocomp" not in self.exp: a.wait_flag(F_T1DONE, 4, 30)
        kloop(7, THR)
        a.stamp(1)
        a(f"""    s_mov_b32 s44, s8
    s_mov_b32 s45, s9
    s_mov_b32 s46, 0x8000000
    s_mov_b32 s47, 0x20000
    v_lshrrev_b32 v3, 4, v1
    v_and_b32 v4, 15, v1
    v_lshlrev_b32 v4, 4, v4
    v_lshl_add_u32 v6, v3, 9, v4      ; V voffset
    s_and_b32 s52, s29, 15
    s_lshl_b32 s52, s52, 13
    s_lshl_b32 s53, s35, 11
    s_add_u32 s52, s52, s53""")
        VB = 64; m = 0
        for n in range(16):
            a("    s_and_b32 s52, s52, 0x1ffff\n    s_add_u32 s56, s52, s33")
            for hf in range(2):
                a(f"    s_waitcnt vmcnt({THR})")
                if m == THR:
                    a.signal(F_KLAND); a.stamp(2)
                r = VB + 8*n + 4*hf
                if "series" in self.exp:
                    a(f"    s_waitcnt lgkmcnt(0)\n    v_writelane_b32 v231, s94, {m}\n    s_memrealtime s[94:95]")
                a(f"    buffer_load_dwordx4 v[{r}:{r+3}], v6, s[44:47], s56 offen offset:{256*hf} nt")
                m += 1
            if n < 15: a("    s_add_u32 s52, s52, 8192")
        a.stamp(3)
        if "series" in self.exp:
            a(f"""    s_lshl_b32 s52, s2, 2
    s_add_u32 s52, s52, s35
    s_lshl_b32 s52, s52, 9
    s_add_u32 s52, s52, {W_DUMP}
    v_lshlrev_b32 v229, 2, v1
    buffer_store_dword v230, v229, s[36:39], s52 offen
    buffer_store_dword v231, v229, s[36:39], s52 offen offset:256""")
        if "nocomp" in self.exp or "vonly" in self.exp:
            a("    s_waitcnt vmcnt(0)"); a.stamp(4); a.stamp_dump(); a("    s_endpgm")
        a.masks()
        a(f"""    v_bfe_u32 v2, v1, 3, 1
    v_lshlrev_b32 v2, 8, v2
    v_lshrrev_b32 v3, 4, v1
    v_lshl_add_u32 v2, v3, 6, v2
    s_lshl_b32 s52, s35, 9
    s_add_u32 s52, s52, {LB + L_P}
    v_add_u32 v2, s52, v2             ; P address
    v_lshlrev_b32 v48, 4, v1
    s_lshl_b32 s52, s35, 11
    s_add_u32 s52, s52, {LB + L_OW}
    v_add_u32 v49, s52, v48
    v_add_u32 v48, {LB + L_OW}, v48
    v_bfe_u32 v5, v1, 2, 2
    v_mul_u32_u24 v5, {8*REC}, v5
    v_lshrrev_b32 v6, 5, v1
    v_lshl_add_u32 v5, v6, 7, v5
    v_and_b32 v6, 3, v1
    v_lshl_add_u32 v5, v6, 5, v5
    v_bfe_u32 v6, v1, 4, 1
    v_lshl_add_u32 v51, v6, 4, v5
    s_mul_i32 s44, s32, {64*REC}
    s_mul_i32 s45, s30, {REC}
    s_add_u32 s44, s44, s45
    s_add_u32 s44, s44, {W_P3}
    s_add_u32 s45, s44, {32*REC}
    s_barrier                         ; B1""")
        a.stamp(4)
        for i in range(4):
            a(f"    ds_read_b128 v[{16+4*i}:{19+4*i}], v2 offset:{16*i}")
        a(f"    ds_read_b64 v[4:5], v12 offset:{L_E}\n    ds_read_b32 v6, v12 offset:{L_VERD}")
        a("    s_waitcnt lgkmcnt(0)\n    v_readfirstlane_b32 s97, v6")
        for q in range(4):
            a(f"    v_mov_b32 v{198+4*q}, v4\n    v_mov_b32 v{199+4*q}, v5")
        a("    v_readfirstlane_b32 s60, v4\n    v_readfirstlane_b32 s61, v5")
        Ab = [32, 36]
        a.sel(Ab[0], 16)
        for n in range(16):
            if n < 15: a.sel(Ab[(n+1) & 1], 16 + n + 1)
            a(f"    s_waitcnt vmcnt({30 - 2*n})")
            c = "0" if n == 0 else None
            a.mfma(40, Ab[n & 1], VB + 8*n, c)
            a.mfma(44, Ab[n & 1], VB + 8*n + 4, c)
        a.stamp(5)
        a(f"""    s_nop 7
    ds_write_b128 v49, v[40:43]
    ds_write_b128 v49, v[44:47] offset:1024
    s_waitcnt lgkmcnt(0)
    s_mov_b64 exec, 1
    ds_add_rtn_u32 v13, v12, v14 offset:{F_OW}
    s_mov_b64 exec, -1
    s_waitcnt lgkmcnt(0)
    v_readfirstlane_b32 s58, v13
    s_cmp_eq_u32 s58, 3
    s_cbranch_scc0 L_vfin""")
        for w in range(4):
            for hf in range(2):
                r = 64 + 8*w + 4*hf
                a(f"    ds_read_b128 v[{r}:{r+3}], v48 offset:{2048*w + 1024*hf}")
        a("    s_waitcnt lgkmcnt(0)")
        for i in range(8):
            a(f"    v_add_f32 v{64+i}, v{64+i}, v{72+i}\n    v_add_f32 v{80+i}, v{80+i}, v{88+i}")
        for i in range(8):
            dst = 196 + 4*(i >> 1) + (i & 1)
            a(f"    v_add_f32 v{dst}, v{64+i}, v{80+i}")
        a.stores(["buffer_store_dwordx4 v[196:199], v51, s[36:39], s44 offen",
                  "buffer_store_dwordx4 v[200:203], v51, s[36:39], s44 offen offset:256",
                  "buffer_store_dwordx4 v[204:207], v51, s[36:39], s45 offen",
                  "buffer_store_dwordx4 v[208:211], v51, s[36:39], s45 offen offset:256"])
        a.signal(F_PUB)
        a.stamp(6)
        a("L_vfin:")
        a(f"""    s_cmp_eq_u32 s3, 6
    s_cbranch_scc0 L_nom3
    s_cmp_ge_u32 s29, 28
    s_cbranch_scc1 L_vend
    s_mul_i32 s52, s29, 37
    s_lshr_b32 s52, s52, 8            ; b' = r/7
    s_mul_i32 s53, s52, 7
    s_sub_u32 s53, s29, s53           ; nbk64
    s_lshr_b32 s54, s53, 1            ; nb
    v_lshlrev_b32 v4, 6, v1
    s_lshl_b32 s55, s28, 5
    s_add_u32 s55, s55, s54
    s_lshl_b32 s55, s55, 4
    s_add_u32 s55, s55, {W_F2}
    s_cmp_lt_u32 s28, 6
    s_cselect_b32 s48, 0xff, 0xf
    s_mov_b32 s49, 0
    v_lshrrev_b32 v5, 4, v1
    v_mul_u32_u24 v5, 7168, v5
    v_and_b32 v3, 15, v1
    v_lshl_add_u32 v5, v3, 4, v5
    s_mul_i32 s50, s52, 448
    s_lshl_b32 s51, s53, 6
    s_add_u32 s50, s50, s51           ; b'*448 + 64nbk64
    s_mul_i32 s51, s28, {8*7168}
    s_lshl_b32 s56, s50, 2
    s_add_u32 s51, s51, s56
    s_add_u32 s51, s51, {W_P2}
    s_add_u32 s52, s51, {4*7168}
    s_mov_b64 exec, s[48:49]""")
        l = a.poll_begin("pf")
        a(f"""    buffer_load_dwordx2 v[2:3], v4, s[36:39], s55 offen sc1
    s_waitcnt vmcnt(0)
    v_cmp_ne_u64 vcc, s[60:61], v[2:3]""")
        a.poll_end(l, 9, sleep=1)
        a(f"""    s_mov_b64 exec, -1
    v_mov_b32 v20, 0
    v_mov_b32 v21, 0
    v_mov_b32 v22, 0
    v_mov_b32 v23, 0
    buffer_load_dwordx4 v[16:19], v5, s[36:39], s51 offen sc1
    s_cmp_lt_u32 s28, 6
    s_cbranch_scc0 L_m3h
    buffer_load_dwordx4 v[20:23], v5, s[36:39], s52 offen sc1
L_m3h:
    v_and_b32 v3, 15, v1
    v_lshlrev_b32 v224, 5, v3
    v_bfe_u32 v3, v1, 4, 1
    v_lshl_add_u32 v224, v3, 4, v224
    s_lshl_b32 s96, s50, 3
    s_mul_i32 s56, s28, {4*3584}
    s_add_u32 s96, s96, s56
    s_add_u32 s96, s96, {W_P5}
    v_cmp_eq_u32 s[54:55], 1, v3
    s_waitcnt vmcnt(0)
    v_add_f32 v16, v16, v20
    v_add_f32 v17, v17, v21
    v_add_f32 v18, v18, v22
    v_add_f32 v19, v19, v23""")
        a.xrows("add_f32", [16, 17, 18, 19], [20, 21, 22, 23])
        a(f"""    v_cndmask_b32 v220, v16, v18, s[54:55]
    v_cndmask_b32 v221, v17, v19, s[54:55]
    v_mov_b32 v222, s60
    v_mov_b32 v223, s61
    s_mov_b32 exec_hi, 0
    buffer_store_dwordx4 v[220:223], v224, s[36:39], s96 offen sc1
    s_mov_b32 exec_hi, -1
    s_branch L_vend
L_nom3:""")
        a(f"""    s_cmp_eq_u32 s3, 7
    s_cbranch_scc0 L_vend
    s_cmp_ge_u32 s2, 112
    s_cbranch_scc1 L_vend
    s_mul_i32 s62, s2, 2341
    s_lshr_b32 s62, s62, 16           ; b_f
    s_mul_i32 s63, s62, 28
    s_sub_u32 s63, s2, s63            ; nbk
    s_mul_i32 s53, s62, 448
    s_lshl_b32 s54, s63, 4
    s_add_u32 s53, s53, s54           ; b_f*448 + 16nbk
    s_mov_b32 s40, s4
    s_mov_b32 s41, s5
    s_mov_b32 s42, 3584
    s_mov_b32 s43, 0x20000
    s_lshl_b32 s48, s53, 1
    v_and_b32 v3, 7, v1
    v_lshlrev_b32 v2, 2, v3
    buffer_load_dword v30, v2, s[40:43], s48 offen      ; x: 2 bf16
    v_lshrrev_b32 v5, 3, v1
    v_mul_u32_u24 v6, {4*3584}, v5
    v_lshl_add_u32 v6, v3, 4, v6
    v_mul_u32_u24 v7, 3584, v5
    v_lshl_add_u32 v7, v3, 4, v7      ; P4 voffset
    s_lshl_b32 s53, s53, 3
    s_add_u32 s53, s53, {W_P5}
    s_mul_i32 s52, s62, {64*3584}
    s_lshl_b32 s54, s63, 7
    s_add_u32 s52, s52, s54
    s_add_u32 s52, s52, {W_P4}
    s_mov_b32 s40, s22
    s_mov_b32 s41, s23""")
        l = a.poll_begin("pg")
        a(f"""    buffer_load_dwordx4 v[16:19], v6, s[36:39], s53 offen sc1
    s_waitcnt vmcnt(0)
    v_cmp_ne_u64 vcc, s[60:61], v[18:19]""")
        a.poll_end(l, 8, sleep=2)
        a.red8(16, 17, 18, 19)
        a(f"""    v_cvt_pk_bf16_f32 v20, v16, v17
    v_lshlrev_b32 v16, 16, v20
    v_and_b32 v17, 0xffff0000, v20
    v_mul_f32 v20, {fbits(-LOG2E)}, v16
    v_mul_f32 v21, {fbits(-LOG2E)}, v17
    v_exp_f32 v20, v20
    v_exp_f32 v21, v21
    s_nop 0
    v_add_f32 v20, 1.0, v20
    v_add_f32 v21, 1.0, v21
    v_rcp_f32 v20, v20
    v_rcp_f32 v21, v21
    s_nop 0
    v_mul_f32 v16, v16, v20
    v_mul_f32 v17, v17, v21
    v_cvt_pk_bf16_f32 v20, v16, v17
    v_lshlrev_b32 v32, 16, v20
    v_and_b32 v33, 0xffff0000, v20      ; g
    v_lshlrev_b32 v34, 16, v30
    v_and_b32 v35, 0xffff0000, v30      ; x""")
        a.stamp(8)
        a.wait_flag(F_OW, 4, 15, sleep=1)
        a(f"""    v_mul_u32_u24 v24, 3584, v1
    v_mov_b32 v98, s60
    v_mov_b32 v99, s61
    v_mov_b32 v102, s60
    v_mov_b32 v103, s61
    v_mov_b32 v106, s60
    v_mov_b32 v107, s61""")
        l = a.poll_begin("pz")
        a("    s_mov_b32 s53, s52")
        for k in range(8):
            a(f"    buffer_load_dwordx4 v[{64+4*k}:{67+4*k}], v7, s[36:39], s53 offen sc1")
            if k < 7: a(f"    s_add_u32 s53, s53, {8*3584}")
        a(f"""    s_cmp_eq_u32 s2, 111
    s_cbranch_scc0 L_noall
    s_mov_b32 s53, {W_P4}
    buffer_load_dwordx4 v[96:99], v24, s[36:39], s53 offen sc1
    s_mov_b32 s53, {W_P4 + 64*3584}
    buffer_load_dwordx4 v[100:103], v24, s[36:39], s53 offen sc1
    s_mov_b32 s53, {W_P4 + 128*3584}
    buffer_load_dwordx4 v[104:107], v24, s[36:39], s53 offen sc1
L_noall:""")
        a("    s_waitcnt vmcnt(0)")
        a.tagcheck([66 + 4*k for k in range(8)] + [98, 102, 106])
        a.poll_end(l, 13, sleep=1)
        a.stamp(9)
        for k in range(0, 8, 2):
            a(f"    v_add_f32 v{64+4*k}, v{64+4*k}, v{68+4*k}\n    v_add_f32 v{65+4*k}, v{65+4*k}, v{69+4*k}")
        a("""    v_add_f32 v64, v64, v72
    v_add_f32 v65, v65, v73
    v_add_f32 v80, v80, v88
    v_add_f32 v81, v81, v89
    v_add_f32 v16, v64, v80
    v_add_f32 v17, v65, v81""")
        a.red8(16, 17, 18, 19)
        a(f"""    v_cvt_pk_bf16_f32 v20, v16, v17
    v_lshlrev_b32 v16, 16, v20
    v_and_b32 v17, 0xffff0000, v20
    v_mul_f32 v16, v16, v32
    v_mul_f32 v17, v17, v33
    v_cvt_pk_bf16_f32 v20, v16, v17
    v_lshlrev_b32 v16, 16, v20
    v_and_b32 v17, 0xffff0000, v20
    v_add_f32 v16, v16, v34
    v_add_f32 v17, v17, v35
    v_cvt_pk_bf16_f32 v20, v16, v17
    v_lshlrev_b32 v2, 2, v1
    s_mov_b64 exec, 0xff
    buffer_store_dword v20, v2, s[40:43], s48 offen
    s_cmp_eq_u32 s2, 111
    s_cbranch_scc0 L_vend
    s_mov_b64 exec, 1
    v_mov_b32 v2, s60
    v_mov_b32 v3, s61
    v_mov_b32 v4, 0
    buffer_store_dwordx2 v[2:3], v4, s[36:39], 0 offen sc1""")
        a("L_vend:\n    s_mov_b64 exec, -1")
        a.stamp(10)
        a.stamp_dump()
        a("    s_endpgm")

    def compute(self):
        a = self
        a("; ---------------- compute waves\nL_cw:")
        a(f"""    v_lshlrev_b32 v3, 2, v1
    v_add_u32 v3, v12, v3
    v_mov_b32 v4, 0
    ds_write_b32 v3, v4
    v_lshlrev_b32 v4, 4, v1
    s_mul_i32 s52, s3, 896
    v_add_u32 v4, s52, v4
    v_mov_b32 v5, {OOB}
    v_cmp_le_u32 vcc, 56, v1
    s_getreg_b32 s99, hwreg(HW_REG_XCC_ID)
    s_waitcnt lgkmcnt(0)
    s_mov_b32 s40, s4
    s_mov_b32 s41, s5
    s_mov_b32 s42, 3584
    s_mov_b32 s43, 0x20000
    v_cndmask_b32 v4, v4, v5, vcc
    buffer_load_dwordx4 v[16:19], v4, s[40:43], 0 offen
    s_cmp_eq_u32 s3, 0
    s_cbranch_scc0 L_noep
    s_load_dwordx2 s[60:61], s[26:27], {W_EPOCH}
L_noep:""")
        self.ws_srd()
        a("    s_barrier                         ; B0")
        if "nocomp" in self.exp: a("    s_endpgm")
        self.stage1()
        self.w1()
        self.w2()
        self.scores()
        self.tail_compute()

    def verdict(self):
        a = self
        a(f"""    v_lshlrev_b32 v104, 4, v1
    s_lshl_b32 s52, s28, 9
    s_add_u32 s52, s52, {W_XT}
    s_mov_b32 exec_hi, 0""")
        l = a.poll_begin("px")
        a(f"""    buffer_load_dwordx4 v[108:111], v104, s[36:39], s52 offen sc1
    s_waitcnt vmcnt(0)
    v_cmp_ne_u64 vcc, s[60:61], v[110:111]""")
        a.poll_end(l, 24, sleep=4)
        a(f"""    v_cmp_ne_u32 vcc, s99, v108
    s_mov_b32 exec_hi, -1
    s_cmp_eq_u64 vcc, 0
    s_cselect_b32 s97, 1, 0""")
        if "forceslow" in self.exp: a("    s_mov_b32 s97, 0")
        a(f"""    v_mov_b32 v13, s97
    ds_write_b32 v12, v13 offset:{L_VERD}
    s_waitcnt lgkmcnt(0)""")
        a.signal(F_VRDY)

    def stage1(self):
        a = self
        a("; ---------------- stage 1")
        a.masks()
        a(f"""    s_mul_i32 s52, s3, 1792
    s_add_u32 s52, s52, {LB + L_XN}
    v_lshlrev_b32 v6, 3, v1
    v_add_u32 v6, s52, v6
    v_bfe_u32 v2, v1, 3, 1
    v_lshlrev_b32 v2, 2, v2
    v_lshrrev_b32 v3, 4, v1
    v_add_u32 v2, v2, v3
    v_mul_u32_u24 v2, 448, v2
    s_mul_i32 s52, s63, 112
    s_lshl_b32 s53, s3, 2
    s_add_u32 s52, s52, s53
    s_add_u32 s52, s52, {LB + L_XN}
    v_add_u32 v7, s52, v2
    s_cmp_eq_u32 s3, 0
    s_cbranch_scc0 L_noep2
    s_waitcnt lgkmcnt(0)
    s_add_u32 s60, s60, 1
    s_addc_u32 s61, s61, 0
    v_mov_b32 v2, s60
    v_mov_b32 v3, s61
    ds_write_b64 v12, v[2:3] offset:{L_E}
    v_mov_b32 v20, s99
    v_mov_b32 v21, 0
    v_mov_b32 v22, s60
    v_mov_b32 v23, s61
    s_lshl_b32 s52, s28, 9
    s_lshl_b32 s53, s29, 4
    s_add_u32 s52, s52, s53
    s_add_u32 s52, s52, {W_XT}
    v_mov_b32 v24, 0
    s_mov_b64 exec, 1
    buffer_store_dwordx4 v[20:23], v24, s[36:39], s52 offen sc1
    s_mov_b64 exec, -1
    s_waitcnt lgkmcnt(0)""")
        a.signal(F_ERDY)
        a("L_noep2:")
        a(f"""    s_lshl_b32 s52, s29, 12
    s_lshl_b32 s53, s3, 10
    s_add_u32 s52, s52, s53
    s_add_u32 s52, s52, {25*4096}
    v_lshlrev_b32 v2, 4, v1""")
        for i in range(7):
            a(f"    s_and_b32 s52, s52, 0x1ffff\n    v_add_u32 v{96+i}, s52, v2\n    s_add_u32 s52, s52, 4096")
        a(f"""    s_lshl_b32 s52, s3, 11
    s_add_u32 s52, s52, {LB + L_S1}
    v_add_u32 v103, s52, v2
    s_cmp_eq_u32 s3, 0
    s_cbranch_scc1 L_xw0
    s_waitcnt vmcnt(0)
    s_branch L_xw1
L_xw0:
    s_waitcnt vmcnt(1)
L_xw1:""")
        a.stamp(1)
        for d in range(4):
            a(f"    v_lshlrev_b32 v{20+2*d}, 16, v{16+d}\n    v_and_b32 v{21+2*d}, 0xffff0000, v{16+d}")
        a("""    v_add_f32 v2, v20, v21
    v_add_f32 v3, v22, v23
    v_add_f32 v4, v24, v25
    v_add_f32 v5, v26, v27
    v_add_f32 v2, v2, v3
    v_add_f32 v4, v4, v5
    v_add_f32 v2, v2, v4""")
        a.reduce64("add_f32", [2], [3])
        a(f"""    v_mul_f32 v2, {fbits(1.0/448)}, v2      ; mean (f32)
    v_mov_b32 v4, 0
    v_mov_b32 v5, 0
    s_mov_b32 exec_hi, 0x00ffffff""")
        for i in range(8):
            a(f"    v_sub_f32 v{28+i}, v{20+i}, v2")
        for i in range(0, 8, 2):
            a(f"    v_fmac_f32 v4, v{28+i}, v{28+i}\n    v_fmac_f32 v5, v{29+i}, v{29+i}")
        a("    s_mov_b32 exec_hi, -1\n    v_add_f32 v4, v4, v5")
        a.reduce64("add_f32", [4], [3])
        a(f"""    v_mul_f32 v4, {fbits(1.0/448)}, v4      ; var
    v_cvt_pk_bf16_f32 v3, v2, v4
    v_lshlrev_b32 v2, 16, v3          ; m_bf
    v_and_b32 v4, 0xffff0000, v3      ; v_bf
    v_add_f32 v4, {fbits(1e-5)}, v4
    v_cvt_pk_bf16_f32 v4, v4, v4
    v_and_b32 v4, 0xffff0000, v4
    v_sqrt_f32 v4, v4""")
        for i in range(8):
            a(f"    v_sub_f32 v{20+i}, v{20+i}, v2")
        a(f"""    v_cvt_pk_bf16_f32 v4, v4, v4
    v_and_b32 v4, 0xffff0000, v4      ; s
    v_rcp_f32 v5, v4""")
        for d in range(4):
            a(f"    v_cvt_pk_bf16_f32 v{16+d}, v{20+2*d}, v{21+2*d}")
        for d in range(4):
            a(f"    v_lshlrev_b32 v{20+2*d}, 16, v{16+d}\n    v_and_b32 v{21+2*d}, 0xffff0000, v{16+d}")
        for i in range(8): a(f"    v_mul_f32 v{28+i}, v{20+i}, v5")
        for i in range(8): a(f"    v_fma_f32 v{20+i}, -v{28+i}, v4, v{20+i}")
        for i in range(8): a(f"    v_fmac_f32 v{28+i}, v{20+i}, v5")
        for g in range(4):
            a(f"    v_cvt_pk_bf16_f32 v{40+2*g}, v{28+g}, v{28+g}\n    v_cvt_pk_bf16_f32 v{41+2*g}, v{32+g}, v{32+g}")
        a("    s_mov_b32 exec_hi, 0x00ffffff")
        for g in range(4):
            a(f"    ds_write_b64 v6, v[{40+2*g}:{41+2*g}] offset:{448*g}")
        a("    s_mov_b32 exec_hi, -1\n    s_waitcnt lgkmcnt(0)")
        a.signal(F_XN)
        a.stamp(2)
        a.wait_flag(F_XN, 4, 21, sleep=0)
        for pr in range(2):
            for i in range(7):
                a(f"    ds_read_b32 v{48+7*pr+i}, v7 offset:{pr*3584 + 16*i}")
        a.wait_flag(F_T1LAND, 4, 22, sleep=0)
        a.stamp(3)
        for i in range(7):
            a(f"    ds_read_b128 v[{64+4*i}:{67+4*i}], v{96+i}")
        a("    s_waitcnt lgkmcnt(0)")
        a.signal(F_T1DONE)
        a.selgemv(7, lambda pr, q: 48 + 7*pr + q, lambda q: 64 + 4*q, [40, 44])
        a(f"""    s_nop 7
    ds_write_b128 v103, v[40:43]
    ds_write_b128 v103, v[44:47] offset:1024
    s_waitcnt lgkmcnt(0)""")
        a.signal(F_S1)
        a.stamp(4)
        a(f"""    s_cmp_eq_u32 s3, 1
    s_cbranch_scc1 L_w1
    s_cmp_eq_u32 s3, 2
    s_cbranch_scc1 L_w2
    s_cmp_eq_u32 s3, 3
    s_cbranch_scc1 L_scores
    s_cmp_eq_u32 s98, 3
    s_cbranch_scc1 L_w0v
    v_lshlrev_b32 v2, 4, v1
    v_add_u32 v2, {LB + L_S1}, v2
    v_lshrrev_b32 v4, 5, v1
    v_lshlrev_b32 v4, 9, v4
    v_and_b32 v3, 15, v1
    v_lshl_add_u32 v4, v3, 5, v4
    v_bfe_u32 v3, v1, 4, 1
    v_lshl_add_u32 v4, v3, 4, v4
    s_lshl_b32 s54, s28, 5
    s_add_u32 s54, s54, s29           ; x*32 + r
    s_lshl_b32 s55, s54, 4
    s_add_u32 s55, s55, {W_F1}
    s_lshl_b32 s54, s54, 11
    s_add_u32 s54, s54, {W_P1}""")
        a.wait_flag(F_S1, 4, 23, sleep=0)
        for w in range(4):
            for pr in range(2):
                r = 64 + 8*w + 4*pr
                a(f"    ds_read_b128 v[{r}:{r+3}], v2 offset:{2048*w + 1024*pr}")
        a("    v_mov_b32 v2, s60\n    v_mov_b32 v3, s61\n    v_mov_b32 v5, 0")
        a("    s_waitcnt lgkmcnt(0)")
        for i in range(8):
            a(f"    v_add_f32 v{64+i}, v{64+i}, v{72+i}\n    v_add_f32 v{80+i}, v{80+i}, v{88+i}")
        for i in range(8):
            a(f"    v_add_f32 v{64+i}, v{64+i}, v{80+i}")
        a(f"""    buffer_store_dwordx4 v[64:67], v4, s[36:39], s54 offen
    buffer_store_dwordx4 v[68:71], v4, s[36:39], s54 offen offset:1024
    s_waitcnt vmcnt(0)
    s_mov_b64 exec, 1
    buffer_store_dwordx2 v[2:3], v5, s[36:39], s55 offen
    s_mov_b64 exec, -1
    s_mov_b32 s34, s54
    s_mov_b32 s35, s55""")
        a.stamp(5)
        self.verdict()
        a(f"""    s_cmp_eq_u32 s97, 1
    s_cbranch_scc1 L_scores
    s_add_u32 s35, s35, {W_F1G - W_F1}
    v_mov_b32 v2, s60
    v_mov_b32 v3, s61
    buffer_store_dwordx4 v[64:67], v4, s[36:39], s34 offen sc1
    buffer_store_dwordx4 v[68:71], v4, s[36:39], s34 offen offset:1024 sc1
    s_waitcnt vmcnt(0)
    s_mov_b64 exec, 1
    buffer_store_dwordx2 v[2:3], v5, s[36:39], s35 offen sc1
    s_mov_b64 exec, -1
    s_branch L_scores
L_w0v:""")
        self.verdict()
        a("    s_branch L_scores")

    def w1(self):
        a = self
        a("; ---------------- W1\nL_w1:")
        if "now1" in self.exp: a("    s_branch L_scores")
        a.get_epoch()
        a.get_verdict()
        a(f"""    v_lshlrev_b32 v4, 4, v1
    s_lshl_b32 s54, s28, 9
    s_add_u32 s54, s54, {W_F1}
    s_cmp_eq_u32 s97, 1
    s_cselect_b32 s53, 0, {W_F1G - W_F1}
    s_add_u32 s54, s54, s53
    v_lshrrev_b32 v5, 4, v1
    v_lshlrev_b32 v5, 13, v5
    v_and_b32 v3, 15, v1
    v_lshl_add_u32 v5, v3, 5, v5
    s_lshl_b32 s52, s28, 16
    s_lshl_b32 s53, s31, 9
    s_add_u32 s52, s52, s53
    s_add_u32 s52, s52, {W_P1}
    s_add_u32 s53, s52, 4096
    v_lshlrev_b32 v6, 4, v1
    v_add_u32 v6, {LB + L_Q}, v6""")
        a.wait_flag(F_KHALF, 4, 40, sleep=4)
        a("    s_mov_b64 exec, 0xffff")
        l = a.poll_begin("pq")
        a(f"""    buffer_load_dwordx2 v[2:3], v4, s[36:39], s54 offen sc1
    s_waitcnt vmcnt(0)
    v_cmp_ne_u64 vcc, s[60:61], v[2:3]""")
        a.poll_end(l, 2, sleep=4)
        a("    s_mov_b64 exec, -1")
        a.stamp(5)
        for rb in range(4):
            so = "s52" if rb < 2 else "s53"
            for hf in range(2):
                r = 16 + 8*rb + 4*hf
                a(f"    buffer_load_dwordx4 v[{r}:{r+3}], v5, s[36:39], {so} offen offset:{(rb&1)*2048 + hf*16} sc1")
        a("    s_waitcnt vmcnt(0)")
        for i in range(8): a(f"    v_add_f32 v{16+i}, v{16+i}, v{24+i}\n    v_add_f32 v{32+i}, v{32+i}, v{40+i}")
        for i in range(8): a(f"    v_add_f32 v{16+i}, v{16+i}, v{32+i}")
        for i in range(4): a(f"    v_cvt_pk_bf16_f32 v{24+i}, v{16+2*i}, v{17+2*i}")
        a(f"""    ds_write_b128 v6, v[24:27]
    s_waitcnt lgkmcnt(0)""")
        a.signal(F_QRDY)
        a("    s_branch L_scores")

    def w2(self):
        a = self
        a("; ---------------- W2\nL_w2:")
        if "now2" in self.exp: a("    s_branch L_scores")
        a(f"""    s_cmp_lt_u32 s28, 6
    s_cselect_b32 s58, 32, 16
    s_cmp_ge_u32 s29, s58
    s_cbranch_scc1 L_scores""")
        a.get_epoch()
        a.get_verdict()
        a(f"""    s_lshr_b32 s52, s29, 2
    s_and_b32 s53, s29, 3             ; nb
    s_lshr_b32 s54, s52, 2            ; fbk
    v_lshrrev_b32 v2, 2, v1
    v_lshlrev_b32 v2, 3, v2
    v_and_b32 v3, 3, v1
    v_add_u32 v2, v2, v3
    v_lshlrev_b32 v4, 4, v2
    s_lshl_b32 s55, s28, 5
    s_lshl_b32 s56, s54, 2
    s_add_u32 s55, s55, s56
    s_add_u32 s55, s55, 16            ; x*32 + 16 + 4fbk
    s_lshl_b32 s48, s55, 4
    s_add_u32 s48, s48, {W_F1}
    s_cmp_eq_u32 s97, 1
    s_cselect_b32 s56, 0, {W_F1G - W_F1}
    s_add_u32 s48, s48, s56
    v_lshrrev_b32 v5, 4, v1
    v_lshlrev_b32 v5, 9, v5
    v_and_b32 v3, 15, v1
    v_lshl_add_u32 v5, v3, 3, v5
    s_lshl_b32 s55, s55, 11
    s_and_b32 s56, s52, 3
    s_lshl_b32 s56, s56, 7
    s_add_u32 s55, s55, s56
    s_add_u32 s44, s55, {W_P1}
    s_add_u32 s45, s44, 4096
    s_add_u32 s46, s44, {8*2048}
    s_add_u32 s47, s46, 4096
    v_lshrrev_b32 v6, 4, v1
    v_lshlrev_b32 v6, 7, v6
    v_and_b32 v3, 1, v1
    v_lshl_add_u32 v6, v3, 6, v6
    v_bfe_u32 v3, v1, 1, 3
    v_lshl_add_u32 v6, v3, 2, v6
    v_add_u32 v6, {LB + L_H}, v6
    v_bfe_u32 v7, v1, 3, 1
    v_lshlrev_b32 v7, 7, v7
    v_lshrrev_b32 v3, 4, v1
    v_lshl_add_u32 v7, v3, 5, v7
    v_add_u32 v7, {LB + L_H}, v7
    v_lshlrev_b32 v15, 4, v1
    v_add_u32 v15, {LB + L_OW}, v15
    v_lshrrev_b32 v48, 5, v1
    v_mul_u32_u24 v48, 1792, v48
    v_and_b32 v3, 15, v1
    v_lshl_add_u32 v48, v3, 5, v48
    v_bfe_u32 v49, v1, 4, 1
    v_lshl_add_u32 v48, v49, 4, v48
    s_cmp_eq_u32 s53, 3
    s_cselect_b32 s54, 8, 16
    v_cmp_le_u32 vcc, s54, v3
    v_mov_b32 v49, {OOB}
    s_lshl_b32 s49, s28, 3
    s_add_u32 s49, s49, s52
    s_mul_i32 s49, s49, 7168
    s_lshl_b32 s55, s53, 9
    s_add_u32 s49, s49, s55
    s_add_u32 s49, s49, {W_P2}
    s_add_u32 s50, s49, 3584
    v_cndmask_b32 v48, v48, v49, vcc
    s_lshl_b32 s51, s28, 5
    s_add_u32 s51, s51, s29
    s_lshl_b32 s51, s51, 4
    s_add_u32 s51, s51, {W_F2}""")
        a.wait_flag(F_KHALF, 4, 41, sleep=4)
        for q in range(8):
            a(f"    ds_read_b128 v[{64+4*q}:{67+4*q}], v15 offset:{1024*q}")
        a("    s_mov_b64 exec, 0xff")
        l = a.poll_begin("pm")
        a(f"""    buffer_load_dwordx2 v[2:3], v4, s[36:39], s48 offen sc1
    s_waitcnt vmcnt(0)
    v_cmp_ne_u64 vcc, s[60:61], v[2:3]""")
        a.poll_end(l, 3, sleep=4)
        a("    s_mov_b64 exec, -1")
        a.stamp(5)
        for m in range(2):
            for rb in range(4):
                so = ["s44", "s45", "s46", "s47"][2*m + (rb >> 1)]
                r = 16 + 8*m + 2*rb
                a(f"    buffer_load_dwordx2 v[{r}:{r+1}], v5, s[36:39], {so} offen offset:{(rb&1)*2048} sc1")
        a("    s_waitcnt vmcnt(0)")
        for m in range(2):
            b0 = 16 + 8*m
            for e in range(2):
                a(f"    v_add_f32 v{b0+e}, v{b0+e}, v{b0+2+e}\n    v_add_f32 v{b0+4+e}, v{b0+4+e}, v{b0+6+e}")
            for e in range(2):
                a(f"    v_add_f32 v{b0+e}, v{b0+e}, v{b0+4+e}")
        a(f"""    v_cvt_pk_bf16_f32 v2, v16, v17
    v_cvt_pk_bf16_f32 v3, v24, v25
    v_lshlrev_b32 v16, 16, v2
    v_and_b32 v17, 0xffff0000, v2
    v_lshlrev_b32 v24, 16, v3
    v_and_b32 v25, 0xffff0000, v3
    v_cmp_lt_f32 vcc, 0, v16
    v_cmp_lt_f32 s[54:55], 0, v17
    s_nop 1
    v_cndmask_b32 v2, 0, 1.0, vcc
    v_cndmask_b32 v3, 0, 1.0, s[54:55]
    v_mul_f32 v16, v16, v2
    v_mul_f32 v17, v17, v3
    v_mul_f32 v16, v16, v24
    v_mul_f32 v17, v17, v25
    v_cvt_pk_bf16_f32 v16, v16, v16
    v_cvt_pk_bf16_f32 v17, v17, v17
    ds_write_b32 v6, v16
    ds_write_b32 v6, v17 offset:32
    s_waitcnt lgkmcnt(0)
    ds_read_b128 v[16:19], v7
    ds_read_b128 v[20:23], v7 offset:16
    ds_read_b128 v[24:27], v7 offset:256
    ds_read_b128 v[28:31], v7 offset:272
    v_mov_b32 v4, s60
    v_mov_b32 v5, s61
    v_mov_b32 v6, 0
    s_waitcnt lgkmcnt(0)""")
        a.selgemv(8, lambda pr, q: 16 + 8*pr + q, lambda q: 64 + 4*q, [40, 44])
        a("    s_nop 7")
        a.stores(["buffer_store_dwordx4 v[40:43], v48, s[36:39], s49 offen",
                  "buffer_store_dwordx4 v[44:47], v48, s[36:39], s50 offen",
                  "s_waitcnt vmcnt(0)", "s_mov_b64 exec, 1",
                  "buffer_store_dwordx2 v[4:5], v6, s[36:39], s51 offen",
                  "s_mov_b64 exec, -1"])
        a("    s_branch L_scores")

    def scores(self):
        a = self
        a("; ---------------- scores\nL_scores:")
        if "vonly" in self.exp:
            a.stamp_dump(); a("    s_endpgm")
        a(f"""    v_and_b32 v2, 1, v1
    v_lshlrev_b32 v2, 9, v2
    v_lshrrev_b32 v3, 4, v1
    v_lshl_add_u32 v2, v3, 4, v2
    v_add_u32 v24, {LB + L_Q}, v2
    v_bfe_u32 v2, v1, 2, 2            ; jh
    v_and_b32 v3, 3, v1
    v_lshl_add_u32 v4, v2, 4, v3
    s_lshl_b32 s52, s3, 2
    v_add_u32 v4, s52, v4
    v_lshlrev_b32 v4, 9, v4
    v_lshrrev_b32 v5, 4, v1
    v_xor_b32 v5, v5, v3
    v_lshl_add_u32 v4, v5, 4, v4""")
        for m in range(4):
            a(f"    v_xor_b32 v5, {m}, v2\n    v_lshl_add_u32 v{16+m}, v5, 6, v4\n    v_add_u32 v{20+m}, 0x10000, v{16+m}")
        a(f"""    v_lshrrev_b32 v6, 2, v1
    s_and_b32 s52, s29, 15
    v_subrev_u32 v6, s52, v6
    v_and_b32 v6, 15, v6
    v_lshlrev_b32 v6, 2, v6
    v_and_b32 v7, 3, v1
    v_lshl_add_u32 v6, v7, 6, v6
    s_lshl_b32 s52, s3, 9
    s_add_u32 s52, s52, {LB + L_P}
    v_add_u32 v25, s52, v6
    s_lshl_b32 s52, s3, 3
    v_add_u32 v26, s52, v12
    s_mov_b32 s48, 0xffff0000
    s_mov_b32 s49, 0
    s_mov_b32 s50, 0
    s_mov_b32 s51, 0xffff
    s_mov_b32 s54, 0
    s_mov_b32 s55, 0xffff0000""")
        a.wait_flag(F_QRDY, 1, 4)
        a.stamp(6)
        for ks in range(8):
            a(f"    ds_read_b128 v[{64+4*ks}:{67+4*ks}], v24 offset:{64*ks}")
        a.wait_flag(F_KLAND, 4, 5)
        a.stamp(7)
        def kread(t, buf):
            for ks in range(8):
                m = ks & 3; hi = ks >> 2
                base = (16 if t < 2 else 20) + m
                off = (t & 1)*32768 + hi*256
                a(f"    ds_read_b128 v[{buf+4*ks}:{buf+4*ks+3}], v{base} offset:{off}")
        bufs = [96, 128]
        kread(0, bufs[0])
        for t in range(4):
            if t < 3:
                kread(t+1, bufs[(t+1) & 1])
                a("    s_waitcnt lgkmcnt(8)")
            else:
                a("    s_waitcnt lgkmcnt(0)")
            for ks in range(8):
                a.mfma(40 + 4*t, 64 + 4*ks, bufs[t & 1] + 4*ks, "0" if ks == 0 else None)
        a(f"""    s_nop 7
    v_cndmask_b32 v2, v40, v44, s[48:49]
    v_cndmask_b32 v3, v41, v45, s[48:49]
    v_cndmask_b32 v2, v2, v48, s[50:51]
    v_cndmask_b32 v3, v3, v49, s[50:51]
    v_cndmask_b32 v2, v2, v52, s[54:55]
    v_cndmask_b32 v3, v3, v53, s[54:55]
    v_cvt_pk_bf16_f32 v4, v2, v3
    v_lshlrev_b32 v2, 16, v4
    v_and_b32 v3, 0xffff0000, v4""")
        if self.dump:
            a(f"""    v_lshrrev_b32 v4, 2, v1
    v_lshlrev_b32 v4, 4, v4
    v_and_b32 v5, 3, v1
    v_add_u32 v4, v4, v5
    s_lshl_b32 s52, s3, 2
    v_add_u32 v4, s52, v4
    v_lshlrev_b32 v4, 2, v4
    s_lshl_b32 s52, s2, 11
    s_add_u32 s52, s52, {W_DUMP}
    buffer_store_dword v2, v4, s[36:39], s52 offen
    buffer_store_dword v3, v4, s[36:39], s52 offen offset:1024""")
        a("    v_mov_b32 v4, v2\n    v_mov_b32 v5, v3")
        a.reduce64("max_f32", [4, 5], [6, 7])
        a(f"""    s_mov_b64 exec, 1
    ds_write_b64 v26, v[4:5] offset:{L_SMMAX}
    s_waitcnt lgkmcnt(0)
    ds_add_u32 v12, v14 offset:{F_MAX}
    s_mov_b64 exec, -1""")
        a.wait_flag(F_MAX, 4, 6, sleep=0)
        a(f"""    ds_read_b128 v[16:19], v12 offset:{L_SMMAX}
    ds_read_b128 v[20:23], v12 offset:{L_SMMAX+16}
    s_waitcnt lgkmcnt(0)
    v_max3_f32 v4, v16, v18, v20
    v_max3_f32 v5, v17, v19, v21
    v_max_f32 v4, v4, v22             ; M0
    v_max_f32 v5, v5, v23             ; M1
    v_sub_f32 v2, v2, v4
    v_sub_f32 v3, v3, v5
    v_mul_f32 v2, {fbits(CEXP)}, v2
    v_mul_f32 v3, {fbits(CEXP)}, v3
    v_exp_f32 v2, v2
    v_exp_f32 v3, v3
    s_nop 0
    v_cvt_pk_bf16_f32 v16, v2, v2
    v_cvt_pk_bf16_f32 v17, v3, v3
    ds_write_b32 v25, v16
    ds_write_b32 v25, v17 offset:256""")
        a.reduce64("add_f32", [2, 3], [6, 7])
        a(f"""    s_mov_b64 exec, 1
    ds_write_b64 v26, v[2:3] offset:{L_SMSUM}
    s_waitcnt lgkmcnt(0)
    ds_add_rtn_u32 v13, v12, v14 offset:{F_PSUM}
    s_waitcnt lgkmcnt(0)
    s_mov_b64 exec, -1
    v_readfirstlane_b32 s58, v13
    s_cmp_eq_u32 s58, 3
    s_cbranch_scc0 L_noml""")
        a.get_epoch()
        a.get_verdict()
        a(f"""    ds_read_b128 v[16:19], v12 offset:{L_SMSUM}
    ds_read_b128 v[20:23], v12 offset:{L_SMSUM+16}
    v_cmp_eq_u32 vcc, 1, v1
    v_lshlrev_b32 v6, 4, v1
    s_lshl_b32 s52, s32, 8
    s_lshl_b32 s53, s30, 5
    s_add_u32 s52, s52, s53
    s_add_u32 s52, s52, {W_ML}
    s_waitcnt lgkmcnt(0)
    v_add_f32 v16, v16, v18
    v_add_f32 v17, v17, v19
    v_add_f32 v20, v20, v22
    v_add_f32 v21, v21, v23
    v_add_f32 v16, v16, v20           ; l0
    v_add_f32 v17, v17, v21           ; l1
    v_mov_b32 v18, s60
    v_mov_b32 v19, s61
    v_cndmask_b32 v17, v16, v17, vcc
    v_cndmask_b32 v16, v4, v5, vcc
    s_mov_b64 exec, 3""")
        a.stores(["buffer_store_dwordx4 v[16:19], v6, s[36:39], s52 offen"])
        a("    s_mov_b64 exec, -1\nL_noml:")
        a.stamp(8)

    def tail_compute(self):
        a = self
        a.get_epoch()
        a(f"""    s_mov_b32 s44, s12
    s_mov_b32 s45, s13
    s_mov_b32 s46, 3670016
    s_mov_b32 s47, 0x20000
    v_lshrrev_b32 v2, 4, v1
    v_mul_u32_u24 v2, 896, v2
    v_and_b32 v3, 15, v1
    v_lshl_add_u32 v5, v3, 4, v2
    s_cmp_eq_u32 s3, 3
    s_cselect_b32 s54, 8, 16
    v_cmp_le_u32 vcc, s54, v3
    v_mov_b32 v6, {OOB}
    s_lshl_b32 s52, s28, 9
    s_lshl_b32 s53, s30, 5
    s_add_u32 s52, s52, s53
    s_mul_i32 s52, s52, 896
    s_lshl_b32 s53, s3, 8
    s_add_u32 s52, s52, s53
    v_cndmask_b32 v46, v5, v6, vcc
    v_add_u32 v47, 7168, v46""")
        for i in range(4):
            a(f"""    s_add_u32 s53, s31, {i}
    s_and_b32 s53, s53, 3
    s_mul_i32 s{40+i}, s53, 14336
    s_cmp_ge_u32 s53, 2
    s_cselect_b32 s53, 200704, 0
    s_add_u32 s{40+i}, s{40+i}, s53
    s_add_u32 s{40+i}, s{40+i}, s52""")
        a(f"""    v_lshrrev_b32 v2, 5, v1
    v_mul_u32_u24 v2, {4*REC}, v2
    v_and_b32 v3, 31, v1
    v_lshl_add_u32 v48, v3, 4, v2
    v_bfe_u32 v3, v1, 3, 1
    v_lshrrev_b32 v45, 5, v1
    v_lshlrev_b32 v45, 7, v45
    v_lshl_add_u32 v45, v3, 4, v45
    s_lshl_b32 s34, s32, 8
    s_add_u32 s34, s34, {W_ML}
    s_mul_i32 s48, s32, {64*REC}
    s_mul_i32 s53, s30, {8*REC}
    s_add_u32 s48, s48, s53
    s_add_u32 s48, s48, {W_P3}
    v_bfe_u32 v2, v1, 4, 1            ; s
    v_lshlrev_b32 v2, 7, v2
    v_and_b32 v3, 15, v1              ; q
    s_lshl_b32 s53, s31, 2
    v_subrev_u32 v3, s53, v3
    v_and_b32 v3, 15, v3
    v_lshl_add_u32 v2, v3, 2, v2
    s_lshl_b32 s53, s3, 8
    s_add_u32 s53, s53, {LB + L_OD}
    v_add_u32 v49, s53, v2
    v_lshrrev_b32 v3, 4, v1
    v_lshlrev_b32 v3, 6, v3
    v_add_u32 v50, s53, v3
    v_and_b32 v2, 15, v1
    v_lshlrev_b32 v2, 6, v2
    v_bfe_u32 v3, v1, 4, 1
    v_lshl_add_u32 v2, v3, 5, v2
    v_lshrrev_b32 v3, 5, v1
    v_lshl_add_u32 v51, v3, 4, v2
    v_and_b32 v3, 15, v1
    s_cmp_eq_u32 s3, 3
    s_cselect_b32 s54, 8, 16
    v_cmp_le_u32 vcc, s54, v3
    s_lshl_b32 s49, s31, 6
    s_lshl_b32 s53, s28, 3
    s_add_u32 s49, s49, s53
    s_add_u32 s49, s49, s30
    s_mul_i32 s49, s49, 3584
    s_lshl_b32 s53, s3, 10
    s_add_u32 s49, s49, s53
    s_add_u32 s49, s49, {W_P4}
    v_cndmask_b32 v51, v51, v6, vcc
    v_mov_b32 v54, s60
    v_mov_b32 v55, s61
    v_cmp_le_u32 s[50:51], 32, v1""")
        a.stamp(9)
        a("    s_barrier                         ; B1")
        a.stamp(10)
        for k in range(4):
            a(f"    buffer_load_dwordx4 v[{128+4*k}:{131+4*k}], v45, s[36:39], s34 offen offset:{32*k} sc1")
        for n in range(16):
            vo = "v46" if (n & 3) < 2 else "v47"
            a(f"    buffer_load_dwordx4 v[{64+4*n}:{67+4*n}], {vo}, s[44:47], s{40 + (n >> 2)} offen offset:{3584*(n & 1)}{self.woflags}")
        a.stamp(11)
        a("    s_waitcnt vmcnt(16)")
        a.tagcheck([130, 134, 138, 142])
        lok = a.L("mlok")
        a(f"    s_cbranch_vccz {lok}")
        l = a.poll_begin("pml")
        for k in range(4):
            a(f"    buffer_load_dwordx4 v[{128+4*k}:{131+4*k}], v45, s[36:39], s34 offen offset:{32*k} sc1")
        a("    s_waitcnt vmcnt(0)")
        a.tagcheck([130, 134, 138, 142])
        a.poll_end(l, 10, sleep=2)
        a(f"{lok}:")
        a("""    v_max_f32 v144, v128, v132
    v_max_f32 v145, v136, v140
    v_max_f32 v144, v144, v145""")
        a.xrows("max_f32", [144], [145], which=("32",))
        for k in range(4): a(f"    v_sub_f32 v{146+k}, v{128+4*k}, v144")
        for k in range(4): a(f"    v_mul_f32 v{146+k}, {fbits(CEXP)}, v{146+k}")
        for k in range(4): a(f"    v_exp_f32 v{146+k}, v{146+k}")
        a("""    s_nop 0
    v_mul_f32 v150, v146, v129
    v_fmac_f32 v150, v147, v133
    v_fmac_f32 v150, v148, v137
    v_fmac_f32 v150, v149, v141""")
        a.xrows("add_f32", [150], [151], which=("32",))
        a("""    v_rcp_f32 v151, v150
    s_nop 0
    v_fma_f32 v152, -v150, v151, 1.0
    v_fmac_f32 v151, v152, v151""")
        for k in range(4): a(f"    v_mul_f32 v{146+k}, v{146+k}, v151")
        a.wait_flag(F_PUB, 1, 11, sleep=0)
        l = a.poll_begin("po")
        for k in range(4):
            a(f"    buffer_load_dwordx4 v[{16+4*k}:{19+4*k}], v48, s[36:39], s48 offen offset:{REC*k} sc1")
        a("    s_waitcnt vmcnt(0)")
        a.tagcheck([18, 22, 26, 30])
        a.poll_end(l, 12, sleep=0)
        a.stamp(12)
        a(f"""    v_mul_f32 v16, v16, v146
    v_mul_f32 v17, v17, v146
    v_mul_f32 v24, v24, v148
    v_mul_f32 v25, v25, v148
    v_fmac_f32 v16, v20, v147
    v_fmac_f32 v17, v21, v147
    v_fmac_f32 v24, v28, v149
    v_fmac_f32 v25, v29, v149
    v_add_f32 v16, v16, v24
    v_add_f32 v17, v17, v25""")
        a.xrows("add_f32", [16, 17], [18, 19], which=("32",))
        a(f"""    v_cvt_pk_bf16_f32 v16, v16, v16
    v_cvt_pk_bf16_f32 v17, v17, v17
    s_mov_b32 exec_hi, 0
    ds_write_b32 v49, v16
    ds_write_b32 v49, v17 offset:64
    s_mov_b32 exec_hi, -1
    s_waitcnt lgkmcnt(0)
    ds_read_b128 v[16:19], v50
    ds_read_b128 v[20:23], v50 offset:16
    ds_read_b128 v[24:27], v50 offset:32
    ds_read_b128 v[28:31], v50 offset:48
    s_waitcnt lgkmcnt(0)""")
        a.selgemv(16, lambda pr, q: 16 + q, lambda q: 64 + 4*q, [40])
        a(f"""    s_nop 7
    v_cndmask_b32 v52, v40, v42, s[50:51]
    v_cndmask_b32 v53, v41, v43, s[50:51]
    buffer_store_dwordx4 v[52:55], v51, s[36:39], s49 offen sc1""")
        a.stamp(13)
        a.stamp_dump()
        a("    s_endpgm")

def generate(**kw):
    return Gen(**kw).build()

if __name__ == "__main__":
    import argparse
    ap = argparse.ArgumentParser()
    ap.add_argument("-o", default="recurrent_scan__sliding_block_cached__glu_gated_reglu__decode.s")
    ap.add_argument("--stamps", action="store_true")
    ap.add_argument("--dump", action="store_true")
    ap.add_argument("--thr", type=int, default=5)
    ap.add_argument("--khalf", type=int, default=20)
    ap.add_argument("--burst", type=int, default=5)
    ap.add_argument("--noprefetch", action="store_true")
    ap.add_argument("--exp", default="")
    ap.add_argument("--woflags", default=" nt")
    args = ap.parse_args()
    txt = generate(thr=args.thr, stamps=args.stamps, dump=args.dump, prefetch=not args.noprefetch,
                   exp=[e for e in args.exp.split(',') if e], woflags=args.woflags, khalf=args.khalf, burst=args.burst)
    open(args.o, "w").write(txt)
    print("wrote", args.o, len(txt))
```

```python
import sys, struct
sys.path.insert(0, "gen")
from asmlib import Asm

NAME = "recurrent_scan__sliding_block_cached__glu_gated_reglu__decode_kernel"

LB = 131072
F_KLAND, F_QRDY, F_MAX, F_PSUM, F_OW, F_XN, F_T1LAND, F_ERDY = 0, 4, 8, 12, 16, 20, 24, 28
L_E = 32
F_T1DONE, F_S1, F_KHALF, F_PUB = 40, 44, 48, 52
L_VERD = 56
F_VRDY = 60
L_SMMAX = 64
L_SMSUM = 96
L_Q = 256
L_P = 1280
L_H = 3328
L_OD = 3840
L_XN = 4864
L_OW = 12032
L_S1 = 20224
LDS_TOTAL = LB + L_S1 + 8192
W_EPOCH = 0
W_F1 = 0x1000
W_F2 = 0x2000
W_XT = 0x3000
W_ML = 0x4000
W_F1G = 0x6000
W_P5 = 0x8000
W_P1 = 0x30000
W_P2 = 0xB0000
W_P3 = 0x120000
W_P4 = 0x220000
W_STAMP = 0x380000
W_DUMP = 0x3A0000
WS_SIZE = 0x440000
REC = 512

LOG2E = 1.4426950408889634
CEXP = 0.0625 * LOG2E
def fbits(x): return "0x%08x" % struct.unpack("<I", struct.pack("<f", x))[0]
OOB = "0x7ffffff0"

class Gen:
    def __init__(self, thr=5, stamps=False, dump=False, timeout=1 << 16, prefetch=True, exp=(), woflags=" nt", khalf=20, burst=5, thrv=None, thrv_from=8):
        self.thrv = thrv; self.thrv_from = thrv_from
        self.a = Asm()
        self.thr = thr; self.stamps = stamps; self.dump = dump; self.timeout = timeout
        self.prefetch = prefetch; self.exp = set(exp); self.woflags = woflags; self.khalf = khalf; self.burst = burst
        self.uid = 0
    def L(self, base):
        self.uid += 1
        return f"L_{base}_{self.uid}"
    def __call__(self, s): self.a(s)
    def stamp(self, i):
        if self.stamps: self(f"    s_memrealtime s[{68+2*i}:{69+2*i}]")
    def stamp_dump(self):
        if not self.stamps: return
        self(f"""    s_waitcnt lgkmcnt(0) vmcnt(0)
    s_lshl_b32 s52, s2, 3
    s_add_u32 s52, s52, s3
    s_lshl_b32 s52, s52, 6
    s_add_u32 s52, s52, {W_STAMP}
    s_mov_b64 exec, 1
    v_mov_b32 v2, s52""")
        for q in range(4):
            regs = [68 + 2*(4*q + r) if 4*q + r < 14 else 68 for r in range(4)]
            self(f"    v_mov_b32 v4, s{regs[0]}\n    v_mov_b32 v5, s{regs[1]}\n    v_mov_b32 v6, s{regs[2]}\n    v_mov_b32 v7, s{regs[3]}")
            self(f"    buffer_store_dwordx4 v[4:7], v2, s[36:39], 0 offen offset:{16*q}\n    s_nop 1")
    def signal(self, flag):
        self(f"""    s_mov_b64 exec, 1
    ds_add_u32 v12, v14 offset:{flag}
    s_mov_b64 exec, -1""")
    def wait_flag(self, flag, target, code, sleep=1):
        l = self.L("wf"); d = self.L("wfd")
        sl = f"    s_sleep {sleep}\n" if sleep else ""
        self(f"""    s_mov_b32 s59, 0
{l}:
    ds_read_b32 v13, v12 offset:{flag}
    s_waitcnt lgkmcnt(0)
    v_readfirstlane_b32 s58, v13
    s_cmp_ge_u32 s58, {target}
    s_cbranch_scc1 {d}
{sl}    s_add_u32 s59, s59, 1
    s_cmp_lt_u32 s59, {self.timeout}
    s_cbranch_scc1 {l}
    s_mov_b32 s57, {code}
    s_branch L_abort
{d}:""")
    def masks(self):
        self("""    v_and_b32 v2, 1, v1
    v_lshlrev_b32 v2, 4, v2
    v_mov_b32 v3, 0xffff
    v_lshlrev_b32 v2, v2, v3
    v_bfe_u32 v3, v1, 1, 2            ; (l>>1)&3
    v_cmp_eq_u32 vcc, 0, v3
    v_cmp_eq_u32 s[64:65], 1, v3
    v_cmp_eq_u32 s[66:67], 2, v3
    v_cmp_eq_u32 s[56:57], 3, v3
    s_nop 1
    v_cndmask_b32 v8, 0, v2, vcc
    v_cndmask_b32 v9, 0, v2, s[64:65]
    v_cndmask_b32 v10, 0, v2, s[66:67]
    v_cndmask_b32 v11, 0, v2, s[56:57]""")
    def sel(self, A, P):
        for r in range(4): self(f"    v_and_b32 v{A+r}, v{P}, v{8+r}")
    def mfma(self, D, A, B, C=None):
        c = f"v[{D}:{D+3}]" if C is None else C
        self(f"    v_mfma_f32_16x16x32_bf16 v[{D}:{D+3}], v[{A}:{A+3}], v[{B}:{B+3}], {c}")
    def selgemv(self, nq, Preg, Breg, accs, A0=32, A1=36):
        seq = [(q, pr) for q in range(nq) for pr in range(len(accs))]
        Ab = [A0, A1]; first = set()
        self.sel(Ab[0], Preg(seq[0][1], seq[0][0]))
        for n, (q, pr) in enumerate(seq):
            if n + 1 < len(seq):
                q2, pr2 = seq[n+1]
                self.sel(Ab[(n+1) & 1], Preg(pr2, q2))
            else:
                self("    s_nop 1")
            C = None
            if pr not in first:
                first.add(pr); C = "0"
            self.mfma(accs[pr], Ab[n & 1], Breg(q), C)
    def reduce64(self, op, regs, tmps):
        n = len(regs)
        pad = "    s_nop 1" if n == 1 else ("    s_nop 0" if n == 2 else None)
        for s in (8, 4, 2, 1):
            if pad: self(pad)
            for v in regs:
                self(f"    v_{op}_dpp v{v}, v{v}, v{v} row_ror:{s} row_mask:0xf bank_mask:0xf")
        self.xrows(op, regs, tmps)
    def xrows(self, op, regs, tmps, which=("16", "32")):
        for perm in which:
            for v, t in zip(regs, tmps): self(f"    v_mov_b32 v{t}, v{v}")
            self("    s_nop 1" if len(regs) < 3 else "    s_nop 0")
            for v, t in zip(regs, tmps): self(f"    v_permlane{perm}_swap_b32 v{v}, v{t}")
            self("    s_nop 1")
            for v, t in zip(regs, tmps): self(f"    v_{op} v{v}, v{v}, v{t}")
    def get_epoch(self):
        self.wait_flag(F_ERDY, 1, 20)
        self(f"""    ds_read_b64 v[2:3], v12 offset:{L_E}
    s_waitcnt lgkmcnt(0)
    v_readfirstlane_b32 s60, v2
    v_readfirstlane_b32 s61, v3""")
    def get_verdict(self):
        self.wait_flag(F_VRDY, 1, 25)
        self(f"""    ds_read_b32 v13, v12 offset:{L_VERD}
    s_waitcnt lgkmcnt(0)
    v_readfirstlane_b32 s97, v13""")
    def stores(self, lst):
        lo = self.L("loc"); dn = self.L("std")
        self(f"    s_cmp_eq_u32 s97, 1\n    s_cbranch_scc1 {lo}")
        for t in lst: self("    " + (t + " sc1" if t.startswith("buffer_store") else t))
        self(f"    s_branch {dn}\n{lo}:")
        for t in lst: self("    " + t)
        self(f"{dn}:")
    def poll_begin(self, name):
        l = self.L(name)
        self(f"    s_mov_b32 s59, 0\n{l}:")
        return l
    def poll_end(self, l, code, sleep=2):
        d = self.L("pd")
        sl = f"    s_sleep {sleep}\n" if sleep else ""
        self(f"""    s_cbranch_vccz {d}
{sl}    s_add_u32 s59, s59, 1
    s_cmp_lt_u32 s59, {self.timeout}
    s_cbranch_scc1 {l}
    s_mov_b32 s57, {code}
    s_branch L_abort
{d}:""")
    def tagcheck(self, pairs):
        self(f"    v_cmp_ne_u64 vcc, s[60:61], v[{pairs[0]}:{pairs[0]+1}]")
        for p in pairs[1:]:
            self(f"    v_cmp_ne_u64 s[56:57], s[60:61], v[{p}:{p+1}]\n    s_or_b64 vcc, vcc, s[56:57]")
    def red8(self, v0, v1, t0, t1):
        self(f"    s_nop 1\n    v_add_f32_dpp v{v0}, v{v0}, v{v0} row_ror:8 row_mask:0xf bank_mask:0xf\n    v_add_f32_dpp v{v1}, v{v1}, v{v1} row_ror:8 row_mask:0xf bank_mask:0xf")
        self.xrows("add_f32", [v0, v1], [t0, t1])

    def build(self):
        a = self
        hdr = open("recurrent_scan__sliding_block_cached__glu_gated_reglu__decode.s.ref").read().split("\n")
        for l in hdr:
            if l.startswith("; Override") or l.startswith("; grid=") or l.startswith("; @launch"): continue
            if l.startswith(";"): a(l)
            else: break
        a(f"; @launch grid=(256,1,1) block=(512,1,1) lds={LDS_TOTAL}")
        a('.amdgcn_target "amdgcn-amd-amdhsa--gfx950"')
        a(f".text\n.globl {NAME}\n.p2align 8\n.type {NAME},@function\n{NAME}:")
        a(f"""    s_cmp_ge_u32 s2, 256
    s_cbranch_scc1 L_end
    s_load_dwordx16 s[4:19], s[0:1], 0
    s_load_dwordx8 s[20:27], s[0:1], 64""")
        if self.prefetch:
            a(f"""    s_getpc_b64 s[52:53]
    s_lshr_b32 s54, s2, 3
    s_and_b32 s54, s54, 3
    s_lshl_b32 s54, s54, 12
    v_lshlrev_b32 v2, 3, v0
    v_add_u32 v2, s54, v2
    global_load_dwordx2 v[236:237], v2, s[52:53]""")
        a.stamp(0)
        a(f"""    v_and_b32 v1, 63, v0
    v_lshrrev_b32 v2, 6, v0
    v_mov_b32 v12, {LB}
    v_readfirstlane_b32 s3, v2
    v_mov_b32 v14, 1
    s_and_b32 s28, s2, 7              ; x = kvh
    s_lshr_b32 s29, s2, 3             ; r
    s_and_b32 s30, s29, 7             ; c
    s_lshr_b32 s31, s29, 3            ; b
    s_lshl_b32 s32, s31, 3
    s_add_u32 s32, s32, s28           ; grp
    s_and_b32 s63, s29, 3             ; rb
    s_bfe_u32 s52, s29, 0x10002       ; fbk = (r>>2)&1
    s_lshl_b32 s53, s28, 1
    s_add_u32 s53, s53, s52           ; 2x + fbk
    s_add_u32 s54, s28, 6             ; 12 + (x-6)
    s_cmp_lt_u32 s28, 6
    s_cselect_b32 s53, s53, s54       ; FB
    s_cselect_b32 s55, 0, s52
    s_lshl_b32 s53, s53, 8
    s_bfe_u32 s54, s29, 0x10003       ; m = (r>>3)&1
    s_add_u32 s98, s54, 1
    s_cmp_lg_u32 s55, 0
    s_cselect_b32 s98, 3, s98
    s_lshl_b32 s33, s28, 10
    s_lshr_b32 s54, s29, 2
    s_lshl_b32 s54, s54, 8
    s_add_u32 s33, s33, s54
    s_cmp_lt_u32 s29, 16
    s_cselect_b32 s33, s33, s53
    s_cselect_b32 s98, 0, s98         ; matrix
    s_mov_b32 s62, 3584
    s_cselect_b32 s62, 8192, s62
@OLDTILE@
    s_cmp_lt_u32 s3, 4
    s_cbranch_scc1 L_cw""")
        self.loader()
        self.compute()
        a("L_abort:")
        a(f"""    s_mov_b32 s40, s24
    s_mov_b32 s41, s25
    s_mov_b32 s42, 256
    s_mov_b32 s43, 0x20000
    s_mov_b64 exec, 1
    v_mov_b32 v2, s57
    v_mov_b32 v3, s2
    v_mov_b32 v4, 0
    buffer_store_dwordx2 v[2:3], v4, s[40:43], 0 offen
L_end:
    s_endpgm
L_codeend:
    .fill (16896 - (L_codeend - {NAME}))/4, 4, 0xbf810000
.section .rodata,"a"
.p2align 6
.amdhsa_kernel {NAME}
  .amdhsa_next_free_vgpr 240
  .amdhsa_next_free_sgpr 100
  .amdhsa_accum_offset 240
  .amdhsa_group_segment_fixed_size 0
  .amdhsa_kernarg_size 96
  .amdhsa_user_sgpr_count 2
  .amdhsa_user_sgpr_kernarg_segment_ptr 1
  .amdhsa_system_sgpr_workgroup_id_x 1
.end_amdhsa_kernel""")
        old = """    s_cmp_lt_u32 s2, 128
    s_mov_b32 s62, 3584
    s_cselect_b32 s62, 8192, s62
    s_cselect_b32 s53, 0, 128
    s_cselect_b32 s98, 0, 1
    s_cmp_lt_u32 s2, 184
    s_cselect_b32 s53, s53, 184
    s_cselect_b32 s98, s98, 2
    s_cmp_lt_u32 s2, 240
    s_cselect_b32 s98, s98, 3
    s_sub_u32 s53, s2, s53
    s_and_b32 s63, s53, 3
    s_lshr_b32 s33, s53, 2
    s_lshl_b32 s33, s33, 8"""
        mix = """    s_cmp_lt_u32 s29, 16
    s_cbranch_scc0 L_mixd
    s_add_u32 s52, s28, s29
    s_and_b32 s52, s52, 7
    s_lshl_b32 s33, s52, 10
    s_lshr_b32 s54, s29, 2
    s_lshl_b32 s54, s54, 8
    s_add_u32 s33, s33, s54
L_mixd:"""
        return self.a.text().replace("@OLDTILE@", old if "oldtile" in self.exp else (mix if "mixtile" in self.exp else ""))

    def ws_srd(self):
        self(f"""    s_mov_b32 s36, s26
    s_mov_b32 s37, s27
    s_mov_b32 s38, {WS_SIZE}
    s_mov_b32 s39, 0x20000""")

    def loader(self):
        a = self; THR = self.thr
        a(f"""    s_setprio 3
    s_sub_u32 s35, s3, 4              ; w
    v_lshrrev_b32 v2, 4, v1           ; g
    v_and_b32 v3, 15, v1              ; j
    v_mul_lo_u32 v5, v2, s62
    v_lshl_add_u32 v5, v3, 4, v5      ; T1 voffset
    s_mul_i32 s48, s63, 112
    s_lshl_b32 s52, s35, 2
    s_add_u32 s48, s48, s52
    s_mul_i32 s48, s48, s62
    s_add_u32 s48, s48, s33
    s_cmp_eq_u32 s98, 3
    s_cselect_b32 s48, {OOB}, s48     ; T1 soffset
    s_cselect_b32 s49, 0, s62
    s_lshl_b32 s49, s49, 4            ; T1 step
    s_lshl_b32 s34, s29, 12           ; rotK
    s_lshl_b32 s52, s35, 10
    s_add_u32 s34, s34, s52           ; kpos0
    v_mul_u32_u24 v6, 896, v2
    v_lshl_add_u32 v6, v3, 4, v6
    s_and_b32 s53, s29, 3             ; nb
    s_cmp_eq_u32 s53, 3
    s_cselect_b32 s54, 8, 16
    v_cmp_le_u32 vcc, s54, v3
    v_mov_b32 v7, {OOB}
    s_lshl_b32 s52, s28, 3
    s_lshl_b32 s55, s28, 2
    s_add_u32 s55, s55, 24
    s_cmp_lt_u32 s28, 6
    s_cselect_b32 s52, s52, s55
    s_cselect_b32 s58, 32, 16
    v_cndmask_b32 v6, v6, v7, vcc
    s_lshr_b32 s55, s29, 2
    s_add_u32 s52, s52, s55           ; fb32
    s_mul_i32 s50, s52, 28672
    s_lshl_b32 s56, s53, 8
    s_add_u32 s50, s50, s56
    s_mul_i32 s56, s35, 3584
    s_add_u32 s50, s50, s56
    s_cmp_ge_u32 s29, s58
    s_cselect_b32 s50, {OOB}, s50
    s_lshl_b32 s51, s35, 10
    s_add_u32 s51, s51, {LB + L_OW}
    ; K
    s_lshl_b32 s33, s32, 22
    s_lshl_b32 s52, s30, 17
    s_add_u32 s33, s33, s52
    s_add_u32 s33, s33, 3145728
    v_lshrrev_b32 v3, 5, v1
    s_and_b32 s52, s35, 1
    s_lshl_b32 s52, s52, 1
    v_add_u32 v4, s52, v3
    v_and_b32 v7, 31, v1
    v_xor_b32 v7, v7, v4
    v_lshlrev_b32 v7, 4, v7
    v_lshl_add_u32 v2, v3, 9, v7
    s_add_u32 s52, s34, {25*4096}
    s_waitcnt lgkmcnt(0)
    s_cmp_eq_u32 s98, 0
    s_cselect_b32 s40, s10, s16
    s_cselect_b32 s41, s11, s17
    s_mov_b32 s42, 1605632
    s_cselect_b32 s42, 3670016, s42
    s_cmp_eq_u32 s98, 2
    s_cselect_b32 s40, s18, s40
    s_cselect_b32 s41, s19, s41
    s_mov_b32 s43, 0x20000""")
        for i in range(7):
            a(f"""    s_and_b32 s52, s52, 0x1ffff
    s_mov_b32 m0, s52
    s_add_u32 s52, s52, 4096
    buffer_load_dwordx4 v5, s[40:43], s48 offen nt lds
    s_add_u32 s48, s48, s49""")
        a(f"""    s_mov_b32 s44, s20
    s_mov_b32 s45, s21
    s_mov_b32 s46, 1605632
    s_mov_b32 s47, 0x20000
    s_mov_b32 m0, s51
    s_add_u32 s51, s51, 4096
    buffer_load_dwordx4 v6, s[44:47], s50 offen nt lds
    s_mov_b32 m0, s51
    s_add_u32 s50, s50, 14336
    buffer_load_dwordx4 v6, s[44:47], s50 offen nt lds
    s_mov_b32 s40, s6
    s_mov_b32 s41, s7
    s_mov_b32 s42, 0x8000000
    s_mov_b32 s43, 0x20000
    s_mov_b32 s52, s34""")
        a.stamp(7)
        if "series" in self.exp: a("    s_mov_b32 s92, 0\n    s_memrealtime s[94:95]\n    v_mov_b32 v230, 0\n    v_mov_b32 v231, 0")
        def kloop(n, thr):
            if n <= 0: return
            l = a.L("k")
            a(f"    s_mov_b32 s54, {n}\n{l}:")
            if "series" in self.exp:
                a("    s_waitcnt lgkmcnt(0)\n    v_cmp_eq_u32 vcc, s92, v1\n    v_mov_b32 v228, s94\n    s_add_u32 s92, s92, 1\n    v_cndmask_b32 v230, v230, v228, vcc")
            a(f"""    s_and_b32 s52, s52, 0x1ffff
    s_lshr_b32 s55, s52, 7
    s_and_b32 s55, s55, 0xc0
    v_xor_b32 v3, s55, v2
    s_mov_b32 m0, s52
    s_add_u32 s56, s52, s33""")
            if thr is not None: a(f"    s_waitcnt vmcnt({thr})")
            if "series" in self.exp: a("    s_memrealtime s[94:95]")
            a(f"""    buffer_load_dwordx4 v3, s[40:43], s56 offen nt lds
    s_add_u32 s52, s52, 4096
    s_sub_u32 s54, s54, 1
    s_cmp_lg_u32 s54, 0
    s_cbranch_scc1 {l}""")
        n0 = self.burst
        kloop(n0, None)
        self.ws_srd()
        a("    s_barrier")
        a(f"    s_waitcnt vmcnt({n0 + 2})")
        a.signal(F_T1LAND)
        kloop(self.khalf - n0, THR)
        a.signal(F_KHALF)
        kloop(25 - self.khalf, THR)
        if "nocomp" not in self.exp: a.wait_flag(F_T1DONE, 4, 30)
        kloop(7, THR)
        a.stamp(1)
        a(f"""    s_mov_b32 s44, s8
    s_mov_b32 s45, s9
    s_mov_b32 s46, 0x8000000
    s_mov_b32 s47, 0x20000
    v_lshrrev_b32 v3, 4, v1
    v_and_b32 v4, 15, v1
    v_lshlrev_b32 v4, 4, v4
    v_lshl_add_u32 v6, v3, 9, v4      ; V voffset
    s_and_b32 s52, s29, 15
    s_lshl_b32 s52, s52, 13
    s_lshl_b32 s53, s35, 11
    s_add_u32 s52, s52, s53""")
        VB = 64; m = 0
        for n in range(16):
            a("    s_and_b32 s52, s52, 0x1ffff\n    s_add_u32 s56, s52, s33")
            for hf in range(2):
                t_ = THR if (self.thrv is None or m < self.thrv_from) else self.thrv
                a(f"    s_waitcnt vmcnt({t_})")
                if m == THR:
                    a.signal(F_KLAND); a.stamp(2)
                r = VB + 8*n + 4*hf
                if "series" in self.exp:
                    a(f"    s_waitcnt lgkmcnt(0)\n    v_writelane_b32 v231, s94, {m}\n    s_memrealtime s[94:95]")
                a(f"    buffer_load_dwordx4 v[{r}:{r+3}], v6, s[44:47], s56 offen offset:{256*hf} nt")
                m += 1
            if n < 15: a("    s_add_u32 s52, s52, 8192")
        a.stamp(3)
        if "series" in self.exp:
            a(f"""    s_lshl_b32 s52, s2, 2
    s_add_u32 s52, s52, s35
    s_lshl_b32 s52, s52, 9
    s_add_u32 s52, s52, {W_DUMP}
    v_lshlrev_b32 v229, 2, v1
    buffer_store_dword v230, v229, s[36:39], s52 offen
    buffer_store_dword v231, v229, s[36:39], s52 offen offset:256""")
        if "nocomp" in self.exp or "vonly" in self.exp:
            a("    s_waitcnt vmcnt(0)"); a.stamp(4); a.stamp_dump(); a("    s_endpgm")
        a.masks()
        a(f"""    v_bfe_u32 v2, v1, 3, 1
    v_lshlrev_b32 v2, 8, v2
    v_lshrrev_b32 v3, 4, v1
    v_lshl_add_u32 v2, v3, 6, v2
    s_lshl_b32 s52, s35, 9
    s_add_u32 s52, s52, {LB + L_P}
    v_add_u32 v2, s52, v2             ; P address
    v_lshlrev_b32 v48, 4, v1
    s_lshl_b32 s52, s35, 11
    s_add_u32 s52, s52, {LB + L_OW}
    v_add_u32 v49, s52, v48
    v_add_u32 v48, {LB + L_OW}, v48
    v_bfe_u32 v5, v1, 2, 2
    v_mul_u32_u24 v5, {8*REC}, v5
    v_lshrrev_b32 v6, 5, v1
    v_lshl_add_u32 v5, v6, 7, v5
    v_and_b32 v6, 3, v1
    v_lshl_add_u32 v5, v6, 5, v5
    v_bfe_u32 v6, v1, 4, 1
    v_lshl_add_u32 v51, v6, 4, v5
    s_mul_i32 s44, s32, {64*REC}
    s_mul_i32 s45, s30, {REC}
    s_add_u32 s44, s44, s45
    s_add_u32 s44, s44, {W_P3}
    s_add_u32 s45, s44, {32*REC}
    s_barrier                         ; B1""")
        a.stamp(4)
        for i in range(4):
            a(f"    ds_read_b128 v[{16+4*i}:{19+4*i}], v2 offset:{16*i}")
        a(f"    ds_read_b64 v[4:5], v12 offset:{L_E}\n    ds_read_b32 v6, v12 offset:{L_VERD}")
        a("    s_waitcnt lgkmcnt(0)\n    v_readfirstlane_b32 s97, v6")
        for q in range(4):
            a(f"    v_mov_b32 v{198+4*q}, v4\n    v_mov_b32 v{199+4*q}, v5")
        a("    v_readfirstlane_b32 s60, v4\n    v_readfirstlane_b32 s61, v5")
        Ab = [32, 36]
        a.sel(Ab[0], 16)
        for n in range(16):
            if n < 15: a.sel(Ab[(n+1) & 1], 16 + n + 1)
            a(f"    s_waitcnt vmcnt({30 - 2*n})")
            c = "0" if n == 0 else None
            a.mfma(40, Ab[n & 1], VB + 8*n, c)
            a.mfma(44, Ab[n & 1], VB + 8*n + 4, c)
        a.stamp(5)
        a(f"""    s_nop 7
    ds_write_b128 v49, v[40:43]
    ds_write_b128 v49, v[44:47] offset:1024
    s_waitcnt lgkmcnt(0)
    s_mov_b64 exec, 1
    ds_add_rtn_u32 v13, v12, v14 offset:{F_OW}
    s_mov_b64 exec, -1
    s_waitcnt lgkmcnt(0)
    v_readfirstlane_b32 s58, v13
    s_cmp_eq_u32 s58, 3
    s_cbranch_scc0 L_vfin""")
        for w in range(4):
            for hf in range(2):
                r = 64 + 8*w + 4*hf
                a(f"    ds_read_b128 v[{r}:{r+3}], v48 offset:{2048*w + 1024*hf}")
        a("    s_waitcnt lgkmcnt(0)")
        for i in range(8):
            a(f"    v_add_f32 v{64+i}, v{64+i}, v{72+i}\n    v_add_f32 v{80+i}, v{80+i}, v{88+i}")
        for i in range(8):
            dst = 196 + 4*(i >> 1) + (i & 1)
            a(f"    v_add_f32 v{dst}, v{64+i}, v{80+i}")
        a.stores(["buffer_store_dwordx4 v[196:199], v51, s[36:39], s44 offen",
                  "buffer_store_dwordx4 v[200:203], v51, s[36:39], s44 offen offset:256",
                  "buffer_store_dwordx4 v[204:207], v51, s[36:39], s45 offen",
                  "buffer_store_dwordx4 v[208:211], v51, s[36:39], s45 offen offset:256"])
        a.signal(F_PUB)
        a.stamp(6)
        a("L_vfin:")
        a(f"""    s_cmp_eq_u32 s3, 6
    s_cbranch_scc0 L_nom3
    s_cmp_ge_u32 s29, 28
    s_cbranch_scc1 L_vend
    s_mul_i32 s52, s29, 37
    s_lshr_b32 s52, s52, 8            ; b' = r/7
    s_mul_i32 s53, s52, 7
    s_sub_u32 s53, s29, s53           ; nbk64
    s_lshr_b32 s54, s53, 1            ; nb
    v_lshlrev_b32 v4, 6, v1
    s_lshl_b32 s55, s28, 5
    s_add_u32 s55, s55, s54
    s_lshl_b32 s55, s55, 4
    s_add_u32 s55, s55, {W_F2}
    s_cmp_lt_u32 s28, 6
    s_cselect_b32 s48, 0xff, 0xf
    s_mov_b32 s49, 0
    v_lshrrev_b32 v5, 4, v1
    v_mul_u32_u24 v5, 7168, v5
    v_and_b32 v3, 15, v1
    v_lshl_add_u32 v5, v3, 4, v5
    s_mul_i32 s50, s52, 448
    s_lshl_b32 s51, s53, 6
    s_add_u32 s50, s50, s51           ; b'*448 + 64nbk64
    s_mul_i32 s51, s28, {8*7168}
    s_lshl_b32 s56, s50, 2
    s_add_u32 s51, s51, s56
    s_add_u32 s51, s51, {W_P2}
    s_add_u32 s52, s51, {4*7168}
    s_mov_b64 exec, s[48:49]""")
        l = a.poll_begin("pf")
        a(f"""    buffer_load_dwordx2 v[2:3], v4, s[36:39], s55 offen sc1
    s_waitcnt vmcnt(0)
    v_cmp_ne_u64 vcc, s[60:61], v[2:3]""")
        a.poll_end(l, 9, sleep=1)
        a(f"""    s_mov_b64 exec, -1
    v_mov_b32 v20, 0
    v_mov_b32 v21, 0
    v_mov_b32 v22, 0
    v_mov_b32 v23, 0
    buffer_load_dwordx4 v[16:19], v5, s[36:39], s51 offen sc1
    s_cmp_lt_u32 s28, 6
    s_cbranch_scc0 L_m3h
    buffer_load_dwordx4 v[20:23], v5, s[36:39], s52 offen sc1
L_m3h:
    v_and_b32 v3, 15, v1
    v_lshlrev_b32 v224, 5, v3
    v_bfe_u32 v3, v1, 4, 1
    v_lshl_add_u32 v224, v3, 4, v224
    s_lshl_b32 s96, s50, 3
    s_mul_i32 s56, s28, {4*3584}
    s_add_u32 s96, s96, s56
    s_add_u32 s96, s96, {W_P5}
    v_cmp_eq_u32 s[54:55], 1, v3
    s_waitcnt vmcnt(0)
    v_add_f32 v16, v16, v20
    v_add_f32 v17, v17, v21
    v_add_f32 v18, v18, v22
    v_add_f32 v19, v19, v23""")
        a.xrows("add_f32", [16, 17, 18, 19], [20, 21, 22, 23])
        a(f"""    v_cndmask_b32 v220, v16, v18, s[54:55]
    v_cndmask_b32 v221, v17, v19, s[54:55]
    v_mov_b32 v222, s60
    v_mov_b32 v223, s61
    s_mov_b32 exec_hi, 0
    buffer_store_dwordx4 v[220:223], v224, s[36:39], s96 offen sc1
    s_mov_b32 exec_hi, -1
    s_branch L_vend
L_nom3:""")
        a(f"""    s_cmp_eq_u32 s3, 7
    s_cbranch_scc0 L_vend
    s_cmp_ge_u32 s2, 112
    s_cbranch_scc1 L_vend
    s_mul_i32 s62, s2, 2341
    s_lshr_b32 s62, s62, 16           ; b_f
    s_mul_i32 s63, s62, 28
    s_sub_u32 s63, s2, s63            ; nbk
    s_mul_i32 s53, s62, 448
    s_lshl_b32 s54, s63, 4
    s_add_u32 s53, s53, s54           ; b_f*448 + 16nbk
    s_mov_b32 s40, s4
    s_mov_b32 s41, s5
    s_mov_b32 s42, 3584
    s_mov_b32 s43, 0x20000
    s_lshl_b32 s48, s53, 1
    v_and_b32 v3, 7, v1
    v_lshlrev_b32 v2, 2, v3
    buffer_load_dword v30, v2, s[40:43], s48 offen      ; x: 2 bf16
    v_lshrrev_b32 v5, 3, v1
    v_mul_u32_u24 v6, {4*3584}, v5
    v_lshl_add_u32 v6, v3, 4, v6
    v_mul_u32_u24 v7, 3584, v5
    v_lshl_add_u32 v7, v3, 4, v7      ; P4 voffset
    s_lshl_b32 s53, s53, 3
    s_add_u32 s53, s53, {W_P5}
    s_mul_i32 s52, s62, {64*3584}
    s_lshl_b32 s54, s63, 7
    s_add_u32 s52, s52, s54
    s_add_u32 s52, s52, {W_P4}
    s_mov_b32 s40, s22
    s_mov_b32 s41, s23""")
        l = a.poll_begin("pg")
        a(f"""    buffer_load_dwordx4 v[16:19], v6, s[36:39], s53 offen sc1
    s_waitcnt vmcnt(0)
    v_cmp_ne_u64 vcc, s[60:61], v[18:19]""")
        a.poll_end(l, 8, sleep=2)
        a.red8(16, 17, 18, 19)
        a(f"""    v_cvt_pk_bf16_f32 v20, v16, v17
    v_lshlrev_b32 v16, 16, v20
    v_and_b32 v17, 0xffff0000, v20
    v_mul_f32 v20, {fbits(-LOG2E)}, v16
    v_mul_f32 v21, {fbits(-LOG2E)}, v17
    v_exp_f32 v20, v20
    v_exp_f32 v21, v21
    s_nop 0
    v_add_f32 v20, 1.0, v20
    v_add_f32 v21, 1.0, v21
    v_rcp_f32 v20, v20
    v_rcp_f32 v21, v21
    s_nop 0
    v_mul_f32 v16, v16, v20
    v_mul_f32 v17, v17, v21
    v_cvt_pk_bf16_f32 v20, v16, v17
    v_lshlrev_b32 v32, 16, v20
    v_and_b32 v33, 0xffff0000, v20      ; g
    v_lshlrev_b32 v34, 16, v30
    v_and_b32 v35, 0xffff0000, v30      ; x""")
        a.stamp(8)
        a.wait_flag(F_OW, 4, 15, sleep=1)
        a(f"""    v_mul_u32_u24 v24, 3584, v1
    v_mov_b32 v98, s60
    v_mov_b32 v99, s61
    v_mov_b32 v102, s60
    v_mov_b32 v103, s61
    v_mov_b32 v106, s60
    v_mov_b32 v107, s61""")
        l = a.poll_begin("pz")
        a("    s_mov_b32 s53, s52")
        for k in range(8):
            a(f"    buffer_load_dwordx4 v[{64+4*k}:{67+4*k}], v7, s[36:39], s53 offen sc1")
            if k < 7: a(f"    s_add_u32 s53, s53, {8*3584}")
        a(f"""    s_cmp_eq_u32 s2, 111
    s_cbranch_scc0 L_noall
    s_mov_b32 s53, {W_P4}
    buffer_load_dwordx4 v[96:99], v24, s[36:39], s53 offen sc1
    s_mov_b32 s53, {W_P4 + 64*3584}
    buffer_load_dwordx4 v[100:103], v24, s[36:39], s53 offen sc1
    s_mov_b32 s53, {W_P4 + 128*3584}
    buffer_load_dwordx4 v[104:107], v24, s[36:39], s53 offen sc1
L_noall:""")
        a("    s_waitcnt vmcnt(0)")
        a.tagcheck([66 + 4*k for k in range(8)] + [98, 102, 106])
        a.poll_end(l, 13, sleep=1)
        a.stamp(9)
        for k in range(0, 8, 2):
            a(f"    v_add_f32 v{64+4*k}, v{64+4*k}, v{68+4*k}\n    v_add_f32 v{65+4*k}, v{65+4*k}, v{69+4*k}")
        a("""    v_add_f32 v64, v64, v72
    v_add_f32 v65, v65, v73
    v_add_f32 v80, v80, v88
    v_add_f32 v81, v81, v89
    v_add_f32 v16, v64, v80
    v_add_f32 v17, v65, v81""")
        a.red8(16, 17, 18, 19)
        a(f"""    v_cvt_pk_bf16_f32 v20, v16, v17
    v_lshlrev_b32 v16, 16, v20
    v_and_b32 v17, 0xffff0000, v20
    v_mul_f32 v16, v16, v32
    v_mul_f32 v17, v17, v33
    v_cvt_pk_bf16_f32 v20, v16, v17
    v_lshlrev_b32 v16, 16, v20
    v_and_b32 v17, 0xffff0000, v20
    v_add_f32 v16, v16, v34
    v_add_f32 v17, v17, v35
    v_cvt_pk_bf16_f32 v20, v16, v17
    v_lshlrev_b32 v2, 2, v1
    s_mov_b64 exec, 0xff
    buffer_store_dword v20, v2, s[40:43], s48 offen
    s_cmp_eq_u32 s2, 111
    s_cbranch_scc0 L_vend
    s_mov_b64 exec, 1
    v_mov_b32 v2, s60
    v_mov_b32 v3, s61
    v_mov_b32 v4, 0
    buffer_store_dwordx2 v[2:3], v4, s[36:39], 0 offen sc1""")
        a("L_vend:\n    s_mov_b64 exec, -1")
        a.stamp(10)
        a.stamp_dump()
        a("    s_endpgm")

    def compute(self):
        a = self
        a("; ---------------- compute waves\nL_cw:")
        a(f"""    v_lshlrev_b32 v3, 2, v1
    v_add_u32 v3, v12, v3
    v_mov_b32 v4, 0
    ds_write_b32 v3, v4
    v_lshlrev_b32 v4, 4, v1
    s_mul_i32 s52, s3, 896
    v_add_u32 v4, s52, v4
    v_mov_b32 v5, {OOB}
    v_cmp_le_u32 vcc, 56, v1
    s_getreg_b32 s99, hwreg(HW_REG_XCC_ID)
    s_waitcnt lgkmcnt(0)
    s_mov_b32 s40, s4
    s_mov_b32 s41, s5
    s_mov_b32 s42, 3584
    s_mov_b32 s43, 0x20000
    v_cndmask_b32 v4, v4, v5, vcc
    buffer_load_dwordx4 v[16:19], v4, s[40:43], 0 offen
    s_cmp_eq_u32 s3, 0
    s_cbranch_scc0 L_noep
    s_load_dwordx2 s[60:61], s[26:27], {W_EPOCH}
L_noep:""")
        self.ws_srd()
        a("    s_barrier                         ; B0")
        if "nocomp" in self.exp: a("    s_endpgm")
        self.stage1()
        self.w1()
        self.w2()
        self.scores()
        self.tail_compute()

    def verdict(self):
        a = self
        a(f"""    v_lshlrev_b32 v104, 4, v1
    s_lshl_b32 s52, s28, 9
    s_add_u32 s52, s52, {W_XT}
    s_mov_b32 exec_hi, 0""")
        l = a.poll_begin("px")
        a(f"""    buffer_load_dwordx4 v[108:111], v104, s[36:39], s52 offen sc1
    s_waitcnt vmcnt(0)
    v_cmp_ne_u64 vcc, s[60:61], v[110:111]""")
        a.poll_end(l, 24, sleep=4)
        a(f"""    v_cmp_ne_u32 vcc, s99, v108
    s_mov_b32 exec_hi, -1
    s_cmp_eq_u64 vcc, 0
    s_cselect_b32 s97, 1, 0""")
        if "forceslow" in self.exp: a("    s_mov_b32 s97, 0")
        a(f"""    v_mov_b32 v13, s97
    ds_write_b32 v12, v13 offset:{L_VERD}
    s_waitcnt lgkmcnt(0)""")
        a.signal(F_VRDY)

    def stage1(self):
        a = self
        a("; ---------------- stage 1")
        a.masks()
        a(f"""    s_mul_i32 s52, s3, 1792
    s_add_u32 s52, s52, {LB + L_XN}
    v_lshlrev_b32 v6, 3, v1
    v_add_u32 v6, s52, v6
    v_bfe_u32 v2, v1, 3, 1
    v_lshlrev_b32 v2, 2, v2
    v_lshrrev_b32 v3, 4, v1
    v_add_u32 v2, v2, v3
    v_mul_u32_u24 v2, 448, v2
    s_mul_i32 s52, s63, 112
    s_lshl_b32 s53, s3, 2
    s_add_u32 s52, s52, s53
    s_add_u32 s52, s52, {LB + L_XN}
    v_add_u32 v7, s52, v2
    s_cmp_eq_u32 s3, 0
    s_cbranch_scc0 L_noep2
    s_waitcnt lgkmcnt(0)
    s_add_u32 s60, s60, 1
    s_addc_u32 s61, s61, 0
    v_mov_b32 v2, s60
    v_mov_b32 v3, s61
    ds_write_b64 v12, v[2:3] offset:{L_E}
    v_mov_b32 v20, s99
    v_mov_b32 v21, 0
    v_mov_b32 v22, s60
    v_mov_b32 v23, s61
    s_lshl_b32 s52, s28, 9
    s_lshl_b32 s53, s29, 4
    s_add_u32 s52, s52, s53
    s_add_u32 s52, s52, {W_XT}
    v_mov_b32 v24, 0
    s_mov_b64 exec, 1
    buffer_store_dwordx4 v[20:23], v24, s[36:39], s52 offen sc1
    s_mov_b64 exec, -1
    s_waitcnt lgkmcnt(0)""")
        a.signal(F_ERDY)
        a("L_noep2:")
        a(f"""    s_lshl_b32 s52, s29, 12
    s_lshl_b32 s53, s3, 10
    s_add_u32 s52, s52, s53
    s_add_u32 s52, s52, {25*4096}
    v_lshlrev_b32 v2, 4, v1""")
        for i in range(7):
            a(f"    s_and_b32 s52, s52, 0x1ffff\n    v_add_u32 v{96+i}, s52, v2\n    s_add_u32 s52, s52, 4096")
        a(f"""    s_lshl_b32 s52, s3, 11
    s_add_u32 s52, s52, {LB + L_S1}
    v_add_u32 v103, s52, v2
    s_cmp_eq_u32 s3, 0
    s_cbranch_scc1 L_xw0
    s_waitcnt vmcnt(0)
    s_branch L_xw1
L_xw0:
    s_waitcnt vmcnt(1)
L_xw1:""")
        a.stamp(1)
        for d in range(4):
            a(f"    v_lshlrev_b32 v{20+2*d}, 16, v{16+d}\n    v_and_b32 v{21+2*d}, 0xffff0000, v{16+d}")
        a("""    v_add_f32 v2, v20, v21
    v_add_f32 v3, v22, v23
    v_add_f32 v4, v24, v25
    v_add_f32 v5, v26, v27
    v_add_f32 v2, v2, v3
    v_add_f32 v4, v4, v5
    v_add_f32 v2, v2, v4""")
        a.reduce64("add_f32", [2], [3])
        a(f"""    v_mul_f32 v2, {fbits(1.0/448)}, v2      ; mean (f32)
    v_mov_b32 v4, 0
    v_mov_b32 v5, 0
    s_mov_b32 exec_hi, 0x00ffffff""")
        for i in range(8):
            a(f"    v_sub_f32 v{28+i}, v{20+i}, v2")
        for i in range(0, 8, 2):
            a(f"    v_fmac_f32 v4, v{28+i}, v{28+i}\n    v_fmac_f32 v5, v{29+i}, v{29+i}")
        a("    s_mov_b32 exec_hi, -1\n    v_add_f32 v4, v4, v5")
        a.reduce64("add_f32", [4], [3])
        a(f"""    v_mul_f32 v4, {fbits(1.0/448)}, v4      ; var
    v_cvt_pk_bf16_f32 v3, v2, v4
    v_lshlrev_b32 v2, 16, v3          ; m_bf
    v_and_b32 v4, 0xffff0000, v3      ; v_bf
    v_add_f32 v4, {fbits(1e-5)}, v4
    v_cvt_pk_bf16_f32 v4, v4, v4
    v_and_b32 v4, 0xffff0000, v4
    v_sqrt_f32 v4, v4""")
        for i in range(8):
            a(f"    v_sub_f32 v{20+i}, v{20+i}, v2")
        a(f"""    v_cvt_pk_bf16_f32 v4, v4, v4
    v_and_b32 v4, 0xffff0000, v4      ; s
    v_rcp_f32 v5, v4""")
        for d in range(4):
            a(f"    v_cvt_pk_bf16_f32 v{16+d}, v{20+2*d}, v{21+2*d}")
        for d in range(4):
            a(f"    v_lshlrev_b32 v{20+2*d}, 16, v{16+d}\n    v_and_b32 v{21+2*d}, 0xffff0000, v{16+d}")
        for i in range(8): a(f"    v_mul_f32 v{28+i}, v{20+i}, v5")
        for i in range(8): a(f"    v_fma_f32 v{20+i}, -v{28+i}, v4, v{20+i}")
        for i in range(8): a(f"    v_fmac_f32 v{28+i}, v{20+i}, v5")
        for g in range(4):
            a(f"    v_cvt_pk_bf16_f32 v{40+2*g}, v{28+g}, v{28+g}\n    v_cvt_pk_bf16_f32 v{41+2*g}, v{32+g}, v{32+g}")
        a("    s_mov_b32 exec_hi, 0x00ffffff")
        for g in range(4):
            a(f"    ds_write_b64 v6, v[{40+2*g}:{41+2*g}] offset:{448*g}")
        a("    s_mov_b32 exec_hi, -1\n    s_waitcnt lgkmcnt(0)")
        a.signal(F_XN)
        a.stamp(2)
        a.wait_flag(F_XN, 4, 21, sleep=0)
        for pr in range(2):
            for i in range(7):
                a(f"    ds_read_b32 v{48+7*pr+i}, v7 offset:{pr*3584 + 16*i}")
        a.wait_flag(F_T1LAND, 4, 22, sleep=0)
        a.stamp(3)
        for i in range(7):
            a(f"    ds_read_b128 v[{64+4*i}:{67+4*i}], v{96+i}")
        a("    s_waitcnt lgkmcnt(0)")
        a.signal(F_T1DONE)
        a.selgemv(7, lambda pr, q: 48 + 7*pr + q, lambda q: 64 + 4*q, [40, 44])
        a(f"""    s_nop 7
    ds_write_b128 v103, v[40:43]
    ds_write_b128 v103, v[44:47] offset:1024
    s_waitcnt lgkmcnt(0)""")
        a.signal(F_S1)
        a.stamp(4)
        a(f"""    s_cmp_eq_u32 s3, 1
    s_cbranch_scc1 L_w1
    s_cmp_eq_u32 s3, 2
    s_cbranch_scc1 L_w2
    s_cmp_eq_u32 s3, 3
    s_cbranch_scc1 L_scores
    s_cmp_eq_u32 s98, 3
    s_cbranch_scc1 L_w0v
    v_lshlrev_b32 v2, 4, v1
    v_add_u32 v2, {LB + L_S1}, v2
    v_lshrrev_b32 v4, 5, v1
    v_lshlrev_b32 v4, 9, v4
    v_and_b32 v3, 15, v1
    v_lshl_add_u32 v4, v3, 5, v4
    v_bfe_u32 v3, v1, 4, 1
    v_lshl_add_u32 v4, v3, 4, v4
    s_lshl_b32 s54, s28, 5
    s_add_u32 s54, s54, s29           ; x*32 + r
    s_lshl_b32 s55, s54, 4
    s_add_u32 s55, s55, {W_F1}
    s_lshl_b32 s54, s54, 11
    s_add_u32 s54, s54, {W_P1}""")
        a.wait_flag(F_S1, 4, 23, sleep=0)
        for w in range(4):
            for pr in range(2):
                r = 64 + 8*w + 4*pr
                a(f"    ds_read_b128 v[{r}:{r+3}], v2 offset:{2048*w + 1024*pr}")
        a("    v_mov_b32 v2, s60\n    v_mov_b32 v3, s61\n    v_mov_b32 v5, 0")
        a("    s_waitcnt lgkmcnt(0)")
        for i in range(8):
            a(f"    v_add_f32 v{64+i}, v{64+i}, v{72+i}\n    v_add_f32 v{80+i}, v{80+i}, v{88+i}")
        for i in range(8):
            a(f"    v_add_f32 v{64+i}, v{64+i}, v{80+i}")
        a(f"""    buffer_store_dwordx4 v[64:67], v4, s[36:39], s54 offen
    buffer_store_dwordx4 v[68:71], v4, s[36:39], s54 offen offset:1024
    s_waitcnt vmcnt(0)
    s_mov_b64 exec, 1
    buffer_store_dwordx2 v[2:3], v5, s[36:39], s55 offen
    s_mov_b64 exec, -1
    s_mov_b32 s34, s54
    s_mov_b32 s35, s55""")
        a.stamp(5)
        self.verdict()
        a(f"""    s_cmp_eq_u32 s97, 1
    s_cbranch_scc1 L_scores
    s_add_u32 s35, s35, {W_F1G - W_F1}
    v_mov_b32 v2, s60
    v_mov_b32 v3, s61
    buffer_store_dwordx4 v[64:67], v4, s[36:39], s34 offen sc1
    buffer_store_dwordx4 v[68:71], v4, s[36:39], s34 offen offset:1024 sc1
    s_waitcnt vmcnt(0)
    s_mov_b64 exec, 1
    buffer_store_dwordx2 v[2:3], v5, s[36:39], s35 offen sc1
    s_mov_b64 exec, -1
    s_branch L_scores
L_w0v:""")
        self.verdict()
        a("    s_branch L_scores")

    def w1(self):
        a = self
        a("; ---------------- W1\nL_w1:")
        if "now1" in self.exp: a("    s_branch L_scores")
        a.get_epoch()
        a.get_verdict()
        a(f"""    v_lshlrev_b32 v4, 4, v1
    s_lshl_b32 s54, s28, 9
    s_add_u32 s54, s54, {W_F1}
    s_cmp_eq_u32 s97, 1
    s_cselect_b32 s53, 0, {W_F1G - W_F1}
    s_add_u32 s54, s54, s53
    v_lshrrev_b32 v5, 4, v1
    v_lshlrev_b32 v5, 13, v5
    v_and_b32 v3, 15, v1
    v_lshl_add_u32 v5, v3, 5, v5
    s_lshl_b32 s52, s28, 16
    s_lshl_b32 s53, s31, 9
    s_add_u32 s52, s52, s53
    s_add_u32 s52, s52, {W_P1}
    s_add_u32 s53, s52, 4096
    v_lshlrev_b32 v6, 4, v1
    v_add_u32 v6, {LB + L_Q}, v6""")
        a.wait_flag(F_KHALF, 4, 40, sleep=4)
        a("    s_mov_b64 exec, 0xffff")
        l = a.poll_begin("pq")
        a(f"""    buffer_load_dwordx2 v[2:3], v4, s[36:39], s54 offen sc1
    s_waitcnt vmcnt(0)
    v_cmp_ne_u64 vcc, s[60:61], v[2:3]""")
        a.poll_end(l, 2, sleep=4)
        a("    s_mov_b64 exec, -1")
        a.stamp(5)
        for rb in range(4):
            so = "s52" if rb < 2 else "s53"
            for hf in range(2):
                r = 16 + 8*rb + 4*hf
                a(f"    buffer_load_dwordx4 v[{r}:{r+3}], v5, s[36:39], {so} offen offset:{(rb&1)*2048 + hf*16} sc1")
        a("    s_waitcnt vmcnt(0)")
        for i in range(8): a(f"    v_add_f32 v{16+i}, v{16+i}, v{24+i}\n    v_add_f32 v{32+i}, v{32+i}, v{40+i}")
        for i in range(8): a(f"    v_add_f32 v{16+i}, v{16+i}, v{32+i}")
        for i in range(4): a(f"    v_cvt_pk_bf16_f32 v{24+i}, v{16+2*i}, v{17+2*i}")
        a(f"""    ds_write_b128 v6, v[24:27]
    s_waitcnt lgkmcnt(0)""")
        a.signal(F_QRDY)
        a("    s_branch L_scores")

    def w2(self):
        a = self
        a("; ---------------- W2\nL_w2:")
        if "now2" in self.exp: a("    s_branch L_scores")
        a(f"""    s_cmp_lt_u32 s28, 6
    s_cselect_b32 s58, 32, 16
    s_cmp_ge_u32 s29, s58
    s_cbranch_scc1 L_scores""")
        a.get_epoch()
        a.get_verdict()
        a(f"""    s_lshr_b32 s52, s29, 2
    s_and_b32 s53, s29, 3             ; nb
    s_lshr_b32 s54, s52, 2            ; fbk
    v_lshrrev_b32 v2, 2, v1
    v_lshlrev_b32 v2, 3, v2
    v_and_b32 v3, 3, v1
    v_add_u32 v2, v2, v3
    v_lshlrev_b32 v4, 4, v2
    s_lshl_b32 s55, s28, 5
    s_lshl_b32 s56, s54, 2
    s_add_u32 s55, s55, s56
    s_add_u32 s55, s55, 16            ; x*32 + 16 + 4fbk
    s_lshl_b32 s48, s55, 4
    s_add_u32 s48, s48, {W_F1}
    s_cmp_eq_u32 s97, 1
    s_cselect_b32 s56, 0, {W_F1G - W_F1}
    s_add_u32 s48, s48, s56
    v_lshrrev_b32 v5, 4, v1
    v_lshlrev_b32 v5, 9, v5
    v_and_b32 v3, 15, v1
    v_lshl_add_u32 v5, v3, 3, v5
    s_lshl_b32 s55, s55, 11
    s_and_b32 s56, s52, 3
    s_lshl_b32 s56, s56, 7
    s_add_u32 s55, s55, s56
    s_add_u32 s44, s55, {W_P1}
    s_add_u32 s45, s44, 4096
    s_add_u32 s46, s44, {8*2048}
    s_add_u32 s47, s46, 4096
    v_lshrrev_b32 v6, 4, v1
    v_lshlrev_b32 v6, 7, v6
    v_and_b32 v3, 1, v1
    v_lshl_add_u32 v6, v3, 6, v6
    v_bfe_u32 v3, v1, 1, 3
    v_lshl_add_u32 v6, v3, 2, v6
    v_add_u32 v6, {LB + L_H}, v6
    v_bfe_u32 v7, v1, 3, 1
    v_lshlrev_b32 v7, 7, v7
    v_lshrrev_b32 v3, 4, v1
    v_lshl_add_u32 v7, v3, 5, v7
    v_add_u32 v7, {LB + L_H}, v7
    v_lshlrev_b32 v15, 4, v1
    v_add_u32 v15, {LB + L_OW}, v15
    v_lshrrev_b32 v48, 5, v1
    v_mul_u32_u24 v48, 1792, v48
    v_and_b32 v3, 15, v1
    v_lshl_add_u32 v48, v3, 5, v48
    v_bfe_u32 v49, v1, 4, 1
    v_lshl_add_u32 v48, v49, 4, v48
    s_cmp_eq_u32 s53, 3
    s_cselect_b32 s54, 8, 16
    v_cmp_le_u32 vcc, s54, v3
    v_mov_b32 v49, {OOB}
    s_lshl_b32 s49, s28, 3
    s_add_u32 s49, s49, s52
    s_mul_i32 s49, s49, 7168
    s_lshl_b32 s55, s53, 9
    s_add_u32 s49, s49, s55
    s_add_u32 s49, s49, {W_P2}
    s_add_u32 s50, s49, 3584
    v_cndmask_b32 v48, v48, v49, vcc
    s_lshl_b32 s51, s28, 5
    s_add_u32 s51, s51, s29
    s_lshl_b32 s51, s51, 4
    s_add_u32 s51, s51, {W_F2}""")
        a.wait_flag(F_KHALF, 4, 41, sleep=4)
        for q in range(8):
            a(f"    ds_read_b128 v[{64+4*q}:{67+4*q}], v15 offset:{1024*q}")
        a("    s_mov_b64 exec, 0xff")
        l = a.poll_begin("pm")
        a(f"""    buffer_load_dwordx2 v[2:3], v4, s[36:39], s48 offen sc1
    s_waitcnt vmcnt(0)
    v_cmp_ne_u64 vcc, s[60:61], v[2:3]""")
        a.poll_end(l, 3, sleep=4)
        a("    s_mov_b64 exec, -1")
        a.stamp(5)
        for m in range(2):
            for rb in range(4):
                so = ["s44", "s45", "s46", "s47"][2*m + (rb >> 1)]
                r = 16 + 8*m + 2*rb
                a(f"    buffer_load_dwordx2 v[{r}:{r+1}], v5, s[36:39], {so} offen offset:{(rb&1)*2048} sc1")
        a("    s_waitcnt vmcnt(0)")
        for m in range(2):
            b0 = 16 + 8*m
            for e in range(2):
                a(f"    v_add_f32 v{b0+e}, v{b0+e}, v{b0+2+e}\n    v_add_f32 v{b0+4+e}, v{b0+4+e}, v{b0+6+e}")
            for e in range(2):
                a(f"    v_add_f32 v{b0+e}, v{b0+e}, v{b0+4+e}")
        a(f"""    v_cvt_pk_bf16_f32 v2, v16, v17
    v_cvt_pk_bf16_f32 v3, v24, v25
    v_lshlrev_b32 v16, 16, v2
    v_and_b32 v17, 0xffff0000, v2
    v_lshlrev_b32 v24, 16, v3
    v_and_b32 v25, 0xffff0000, v3
    v_cmp_lt_f32 vcc, 0, v16
    v_cmp_lt_f32 s[54:55], 0, v17
    s_nop 1
    v_cndmask_b32 v2, 0, 1.0, vcc
    v_cndmask_b32 v3, 0, 1.0, s[54:55]
    v_mul_f32 v16, v16, v2
    v_mul_f32 v17, v17, v3
    v_mul_f32 v16, v16, v24
    v_mul_f32 v17, v17, v25
    v_cvt_pk_bf16_f32 v16, v16, v16
    v_cvt_pk_bf16_f32 v17, v17, v17
    ds_write_b32 v6, v16
    ds_write_b32 v6, v17 offset:32
    s_waitcnt lgkmcnt(0)
    ds_read_b128 v[16:19], v7
    ds_read_b128 v[20:23], v7 offset:16
    ds_read_b128 v[24:27], v7 offset:256
    ds_read_b128 v[28:31], v7 offset:272
    v_mov_b32 v4, s60
    v_mov_b32 v5, s61
    v_mov_b32 v6, 0
    s_waitcnt lgkmcnt(0)""")
        a.selgemv(8, lambda pr, q: 16 + 8*pr + q, lambda q: 64 + 4*q, [40, 44])
        a("    s_nop 7")
        a.stores(["buffer_store_dwordx4 v[40:43], v48, s[36:39], s49 offen",
                  "buffer_store_dwordx4 v[44:47], v48, s[36:39], s50 offen",
                  "s_waitcnt vmcnt(0)", "s_mov_b64 exec, 1",
                  "buffer_store_dwordx2 v[4:5], v6, s[36:39], s51 offen",
                  "s_mov_b64 exec, -1"])
        a("    s_branch L_scores")

    def scores(self):
        a = self
        a("; ---------------- scores\nL_scores:")
        if "vonly" in self.exp:
            a.stamp_dump(); a("    s_endpgm")
        a(f"""    v_and_b32 v2, 1, v1
    v_lshlrev_b32 v2, 9, v2
    v_lshrrev_b32 v3, 4, v1
    v_lshl_add_u32 v2, v3, 4, v2
    v_add_u32 v24, {LB + L_Q}, v2
    v_bfe_u32 v2, v1, 2, 2            ; jh
    v_and_b32 v3, 3, v1
    v_lshl_add_u32 v4, v2, 4, v3
    s_lshl_b32 s52, s3, 2
    v_add_u32 v4, s52, v4
    v_lshlrev_b32 v4, 9, v4
    v_lshrrev_b32 v5, 4, v1
    v_xor_b32 v5, v5, v3
    v_lshl_add_u32 v4, v5, 4, v4""")
        for m in range(4):
            a(f"    v_xor_b32 v5, {m}, v2\n    v_lshl_add_u32 v{16+m}, v5, 6, v4\n    v_add_u32 v{20+m}, 0x10000, v{16+m}")
        a(f"""    v_lshrrev_b32 v6, 2, v1
    s_and_b32 s52, s29, 15
    v_subrev_u32 v6, s52, v6
    v_and_b32 v6, 15, v6
    v_lshlrev_b32 v6, 2, v6
    v_and_b32 v7, 3, v1
    v_lshl_add_u32 v6, v7, 6, v6
    s_lshl_b32 s52, s3, 9
    s_add_u32 s52, s52, {LB + L_P}
    v_add_u32 v25, s52, v6
    s_lshl_b32 s52, s3, 3
    v_add_u32 v26, s52, v12
    s_mov_b32 s48, 0xffff0000
    s_mov_b32 s49, 0
    s_mov_b32 s50, 0
    s_mov_b32 s51, 0xffff
    s_mov_b32 s54, 0
    s_mov_b32 s55, 0xffff0000""")
        a.wait_flag(F_QRDY, 1, 4)
        a.stamp(6)
        for ks in range(8):
            a(f"    ds_read_b128 v[{64+4*ks}:{67+4*ks}], v24 offset:{64*ks}")
        a.wait_flag(F_KLAND, 4, 5)
        a.stamp(7)
        def kread(t, buf):
            for ks in range(8):
                m = ks & 3; hi = ks >> 2
                base = (16 if t < 2 else 20) + m
                off = (t & 1)*32768 + hi*256
                a(f"    ds_read_b128 v[{buf+4*ks}:{buf+4*ks+3}], v{base} offset:{off}")
        bufs = [96, 128]
        kread(0, bufs[0])
        for t in range(4):
            if t < 3:
                kread(t+1, bufs[(t+1) & 1])
                a("    s_waitcnt lgkmcnt(8)")
            else:
                a("    s_waitcnt lgkmcnt(0)")
            for ks in range(8):
                a.mfma(40 + 4*t, 64 + 4*ks, bufs[t & 1] + 4*ks, "0" if ks == 0 else None)
        a(f"""    s_nop 7
    v_cndmask_b32 v2, v40, v44, s[48:49]
    v_cndmask_b32 v3, v41, v45, s[48:49]
    v_cndmask_b32 v2, v2, v48, s[50:51]
    v_cndmask_b32 v3, v3, v49, s[50:51]
    v_cndmask_b32 v2, v2, v52, s[54:55]
    v_cndmask_b32 v3, v3, v53, s[54:55]
    v_cvt_pk_bf16_f32 v4, v2, v3
    v_lshlrev_b32 v2, 16, v4
    v_and_b32 v3, 0xffff0000, v4""")
        if self.dump:
            a(f"""    v_lshrrev_b32 v4, 2, v1
    v_lshlrev_b32 v4, 4, v4
    v_and_b32 v5, 3, v1
    v_add_u32 v4, v4, v5
    s_lshl_b32 s52, s3, 2
    v_add_u32 v4, s52, v4
    v_lshlrev_b32 v4, 2, v4
    s_lshl_b32 s52, s2, 11
    s_add_u32 s52, s52, {W_DUMP}
    buffer_store_dword v2, v4, s[36:39], s52 offen
    buffer_store_dword v3, v4, s[36:39], s52 offen offset:1024""")
        a("    v_mov_b32 v4, v2\n    v_mov_b32 v5, v3")
        a.reduce64("max_f32", [4, 5], [6, 7])
        a(f"""    s_mov_b64 exec, 1
    ds_write_b64 v26, v[4:5] offset:{L_SMMAX}
    s_waitcnt lgkmcnt(0)
    ds_add_u32 v12, v14 offset:{F_MAX}
    s_mov_b64 exec, -1""")
        a.wait_flag(F_MAX, 4, 6, sleep=0)
        a(f"""    ds_read_b128 v[16:19], v12 offset:{L_SMMAX}
    ds_read_b128 v[20:23], v12 offset:{L_SMMAX+16}
    s_waitcnt lgkmcnt(0)
    v_max3_f32 v4, v16, v18, v20
    v_max3_f32 v5, v17, v19, v21
    v_max_f32 v4, v4, v22             ; M0
    v_max_f32 v5, v5, v23             ; M1
    v_sub_f32 v2, v2, v4
    v_sub_f32 v3, v3, v5
    v_mul_f32 v2, {fbits(CEXP)}, v2
    v_mul_f32 v3, {fbits(CEXP)}, v3
    v_exp_f32 v2, v2
    v_exp_f32 v3, v3
    s_nop 0
    v_cvt_pk_bf16_f32 v16, v2, v2
    v_cvt_pk_bf16_f32 v17, v3, v3
    ds_write_b32 v25, v16
    ds_write_b32 v25, v17 offset:256""")
        a.reduce64("add_f32", [2, 3], [6, 7])
        a(f"""    s_mov_b64 exec, 1
    ds_write_b64 v26, v[2:3] offset:{L_SMSUM}
    s_waitcnt lgkmcnt(0)
    ds_add_rtn_u32 v13, v12, v14 offset:{F_PSUM}
    s_waitcnt lgkmcnt(0)
    s_mov_b64 exec, -1
    v_readfirstlane_b32 s58, v13
    s_cmp_eq_u32 s58, 3
    s_cbranch_scc0 L_noml""")
        a.get_epoch()
        a.get_verdict()
        a(f"""    ds_read_b128 v[16:19], v12 offset:{L_SMSUM}
    ds_read_b128 v[20:23], v12 offset:{L_SMSUM+16}
    v_cmp_eq_u32 vcc, 1, v1
    v_lshlrev_b32 v6, 4, v1
    s_lshl_b32 s52, s32, 8
    s_lshl_b32 s53, s30, 5
    s_add_u32 s52, s52, s53
    s_add_u32 s52, s52, {W_ML}
    s_waitcnt lgkmcnt(0)
    v_add_f32 v16, v16, v18
    v_add_f32 v17, v17, v19
    v_add_f32 v20, v20, v22
    v_add_f32 v21, v21, v23
    v_add_f32 v16, v16, v20           ; l0
    v_add_f32 v17, v17, v21           ; l1
    v_mov_b32 v18, s60
    v_mov_b32 v19, s61
    v_cndmask_b32 v17, v16, v17, vcc
    v_cndmask_b32 v16, v4, v5, vcc
    s_mov_b64 exec, 3""")
        a.stores(["buffer_store_dwordx4 v[16:19], v6, s[36:39], s52 offen"])
        a("    s_mov_b64 exec, -1\nL_noml:")
        a.stamp(8)

    def tail_compute(self):
        a = self
        a.get_epoch()
        a(f"""    s_mov_b32 s44, s12
    s_mov_b32 s45, s13
    s_mov_b32 s46, 3670016
    s_mov_b32 s47, 0x20000
    v_lshrrev_b32 v2, 4, v1
    v_mul_u32_u24 v2, 896, v2
    v_and_b32 v3, 15, v1
    v_lshl_add_u32 v5, v3, 4, v2
    s_cmp_eq_u32 s3, 3
    s_cselect_b32 s54, 8, 16
    v_cmp_le_u32 vcc, s54, v3
    v_mov_b32 v6, {OOB}
    s_lshl_b32 s52, s28, 9
    s_lshl_b32 s53, s30, 5
    s_add_u32 s52, s52, s53
    s_mul_i32 s52, s52, 896
    s_lshl_b32 s53, s3, 8
    s_add_u32 s52, s52, s53
    v_cndmask_b32 v46, v5, v6, vcc
    v_add_u32 v47, 7168, v46""")
        for i in range(4):
            a(f"""    s_add_u32 s53, s31, {i}
    s_and_b32 s53, s53, 3
    s_mul_i32 s{40+i}, s53, 14336
    s_cmp_ge_u32 s53, 2
    s_cselect_b32 s53, 200704, 0
    s_add_u32 s{40+i}, s{40+i}, s53
    s_add_u32 s{40+i}, s{40+i}, s52""")
        a(f"""    v_lshrrev_b32 v2, 5, v1
    v_mul_u32_u24 v2, {4*REC}, v2
    v_and_b32 v3, 31, v1
    v_lshl_add_u32 v48, v3, 4, v2
    v_bfe_u32 v3, v1, 3, 1
    v_lshrrev_b32 v45, 5, v1
    v_lshlrev_b32 v45, 7, v45
    v_lshl_add_u32 v45, v3, 4, v45
    s_lshl_b32 s34, s32, 8
    s_add_u32 s34, s34, {W_ML}
    s_mul_i32 s48, s32, {64*REC}
    s_mul_i32 s53, s30, {8*REC}
    s_add_u32 s48, s48, s53
    s_add_u32 s48, s48, {W_P3}
    v_bfe_u32 v2, v1, 4, 1            ; s
    v_lshlrev_b32 v2, 7, v2
    v_and_b32 v3, 15, v1              ; q
    s_lshl_b32 s53, s31, 2
    v_subrev_u32 v3, s53, v3
    v_and_b32 v3, 15, v3
    v_lshl_add_u32 v2, v3, 2, v2
    s_lshl_b32 s53, s3, 8
    s_add_u32 s53, s53, {LB + L_OD}
    v_add_u32 v49, s53, v2
    v_lshrrev_b32 v3, 4, v1
    v_lshlrev_b32 v3, 6, v3
    v_add_u32 v50, s53, v3
    v_and_b32 v2, 15, v1
    v_lshlrev_b32 v2, 6, v2
    v_bfe_u32 v3, v1, 4, 1
    v_lshl_add_u32 v2, v3, 5, v2
    v_lshrrev_b32 v3, 5, v1
    v_lshl_add_u32 v51, v3, 4, v2
    v_and_b32 v3, 15, v1
    s_cmp_eq_u32 s3, 3
    s_cselect_b32 s54, 8, 16
    v_cmp_le_u32 vcc, s54, v3
    s_lshl_b32 s49, s31, 6
    s_lshl_b32 s53, s28, 3
    s_add_u32 s49, s49, s53
    s_add_u32 s49, s49, s30
    s_mul_i32 s49, s49, 3584
    s_lshl_b32 s53, s3, 10
    s_add_u32 s49, s49, s53
    s_add_u32 s49, s49, {W_P4}
    v_cndmask_b32 v51, v51, v6, vcc
    v_mov_b32 v54, s60
    v_mov_b32 v55, s61
    v_cmp_le_u32 s[50:51], 32, v1""")
        a.stamp(9)
        a("    s_barrier                         ; B1")
        a.stamp(10)
        for k in range(4):
            a(f"    buffer_load_dwordx4 v[{128+4*k}:{131+4*k}], v45, s[36:39], s34 offen offset:{32*k} sc1")
        for n in range(16):
            vo = "v46" if (n & 3) < 2 else "v47"
            a(f"    buffer_load_dwordx4 v[{64+4*n}:{67+4*n}], {vo}, s[44:47], s{40 + (n >> 2)} offen offset:{3584*(n & 1)}{self.woflags}")
        a.stamp(11)
        a("    s_waitcnt vmcnt(16)")
        a.tagcheck([130, 134, 138, 142])
        lok = a.L("mlok")
        a(f"    s_cbranch_vccz {lok}")
        l = a.poll_begin("pml")
        for k in range(4):
            a(f"    buffer_load_dwordx4 v[{128+4*k}:{131+4*k}], v45, s[36:39], s34 offen offset:{32*k} sc1")
        a("    s_waitcnt vmcnt(0)")
        a.tagcheck([130, 134, 138, 142])
        a.poll_end(l, 10, sleep=2)
        a(f"{lok}:")
        a("""    v_max_f32 v144, v128, v132
    v_max_f32 v145, v136, v140
    v_max_f32 v144, v144, v145""")
        a.xrows("max_f32", [144], [145], which=("32",))
        for k in range(4): a(f"    v_sub_f32 v{146+k}, v{128+4*k}, v144")
        for k in range(4): a(f"    v_mul_f32 v{146+k}, {fbits(CEXP)}, v{146+k}")
        for k in range(4): a(f"    v_exp_f32 v{146+k}, v{146+k}")
        a("""    s_nop 0
    v_mul_f32 v150, v146, v129
    v_fmac_f32 v150, v147, v133
    v_fmac_f32 v150, v148, v137
    v_fmac_f32 v150, v149, v141""")
        a.xrows("add_f32", [150], [151], which=("32",))
        a("""    v_rcp_f32 v151, v150
    s_nop 0
    v_fma_f32 v152, -v150, v151, 1.0
    v_fmac_f32 v151, v152, v151""")
        for k in range(4): a(f"    v_mul_f32 v{146+k}, v{146+k}, v151")
        a.wait_flag(F_PUB, 1, 11, sleep=0)
        l = a.poll_begin("po")
        for k in range(4):
            a(f"    buffer_load_dwordx4 v[{16+4*k}:{19+4*k}], v48, s[36:39], s48 offen offset:{REC*k} sc1")
        a("    s_waitcnt vmcnt(0)")
        a.tagcheck([18, 22, 26, 30])
        a.poll_end(l, 12, sleep=0)
        a.stamp(12)
        a(f"""    v_mul_f32 v16, v16, v146
    v_mul_f32 v17, v17, v146
    v_mul_f32 v24, v24, v148
    v_mul_f32 v25, v25, v148
    v_fmac_f32 v16, v20, v147
    v_fmac_f32 v17, v21, v147
    v_fmac_f32 v24, v28, v149
    v_fmac_f32 v25, v29, v149
    v_add_f32 v16, v16, v24
    v_add_f32 v17, v17, v25""")
        a.xrows("add_f32", [16, 17], [18, 19], which=("32",))
        a(f"""    v_cvt_pk_bf16_f32 v16, v16, v16
    v_cvt_pk_bf16_f32 v17, v17, v17
    s_mov_b32 exec_hi, 0
    ds_write_b32 v49, v16
    ds_write_b32 v49, v17 offset:64
    s_mov_b32 exec_hi, -1
    s_waitcnt lgkmcnt(0)
    ds_read_b128 v[16:19], v50
    ds_read_b128 v[20:23], v50 offset:16
    ds_read_b128 v[24:27], v50 offset:32
    ds_read_b128 v[28:31], v50 offset:48
    s_waitcnt lgkmcnt(0)""")
        a.selgemv(16, lambda pr, q: 16 + q, lambda q: 64 + 4*q, [40])
        a(f"""    s_nop 7
    v_cndmask_b32 v52, v40, v42, s[50:51]
    v_cndmask_b32 v53, v41, v43, s[50:51]
    buffer_store_dwordx4 v[52:55], v51, s[36:39], s49 offen sc1""")
        a.stamp(13)
        a.stamp_dump()
        a("    s_endpgm")

def generate(**kw):
    return Gen(**kw).build()

if __name__ == "__main__":
    import argparse
    ap = argparse.ArgumentParser()
    ap.add_argument("-o", default="recurrent_scan__sliding_block_cached__glu_gated_reglu__decode.s")
    ap.add_argument("--stamps", action="store_true")
    ap.add_argument("--dump", action="store_true")
    ap.add_argument("--thr", type=int, default=5)
    ap.add_argument("--khalf", type=int, default=20)
    ap.add_argument("--burst", type=int, default=5)
    ap.add_argument("--thrv", type=int, default=None)
    ap.add_argument("--thrv_from", type=int, default=8)
    ap.add_argument("--noprefetch", action="store_true")
    ap.add_argument("--exp", default="")
    ap.add_argument("--woflags", default=" nt")
    args = ap.parse_args()
    txt = generate(thr=args.thr, stamps=args.stamps, dump=args.dump, prefetch=not args.noprefetch,
                   exp=[e for e in args.exp.split(',') if e], woflags=args.woflags, khalf=args.khalf, burst=args.burst, thrv=args.thrv, thrv_from=args.thrv_from)
    open(args.o, "w").write(txt)
    print("wrote", args.o, len(txt))
```

```python
import sys, struct
sys.path.insert(0, "gen")
from asmlib import Asm

NAME = "recurrent_scan__sliding_block_cached__glu_gated_reglu__decode_kernel"

LB = 131072
F_KLAND, F_QRDY, F_MAX, F_PSUM, F_OW, F_XN, F_T1LAND, F_ERDY = 0, 4, 8, 12, 16, 20, 24, 28
L_E = 32
F_T1DONE, F_S1, F_KHALF, F_PUB = 40, 44, 48, 52
L_VERD = 56
F_VRDY = 60
L_SMMAX = 64
L_SMSUM = 96
L_Q = 256
L_P = 1280
L_H = 3328
L_OD = 3840
L_XN = 4864
L_OW = 12032
L_S1 = 20224
LDS_TOTAL = LB + L_S1 + 8192
W_EPOCH = 0
W_F1 = 0x1000
W_F2 = 0x2000
W_XT = 0x3000
W_ML = 0x4000
W_F1G = 0x6000
W_P5 = 0x8000
W_P1 = 0x30000
W_P2 = 0xB0000
W_P3 = 0x120000
W_P4 = 0x220000
W_STAMP = 0x380000
W_DUMP = 0x3A0000
WS_SIZE = 0x440000
REC = 512

LOG2E = 1.4426950408889634
CEXP = 0.0625 * LOG2E
def fbits(x): return "0x%08x" % struct.unpack("<I", struct.pack("<f", x))[0]
OOB = "0x7ffffff0"

class Gen:
    def __init__(self, thr=5, stamps=False, dump=False, timeout=1 << 16, prefetch=True, exp=(), woflags=" nt", khalf=20, burst=5, thrv=None, thrv_from=8, burst2=4):
        self.burst2 = burst2
        self.thrv = thrv; self.thrv_from = thrv_from
        self.a = Asm()
        self.thr = thr; self.stamps = stamps; self.dump = dump; self.timeout = timeout
        self.prefetch = prefetch; self.exp = set(exp); self.woflags = woflags; self.khalf = khalf; self.burst = burst
        self.uid = 0
    def L(self, base):
        self.uid += 1
        return f"L_{base}_{self.uid}"
    def __call__(self, s): self.a(s)
    def stamp(self, i):
        if self.stamps: self(f"    s_memrealtime s[{68+2*i}:{69+2*i}]")
    def stamp_dump(self):
        if not self.stamps: return
        self(f"""    s_waitcnt lgkmcnt(0) vmcnt(0)
    s_lshl_b32 s52, s2, 3
    s_add_u32 s52, s52, s3
    s_lshl_b32 s52, s52, 6
    s_add_u32 s52, s52, {W_STAMP}
    s_mov_b64 exec, 1
    v_mov_b32 v2, s52""")
        for q in range(4):
            regs = [68 + 2*(4*q + r) if 4*q + r < 14 else 68 for r in range(4)]
            self(f"    v_mov_b32 v4, s{regs[0]}\n    v_mov_b32 v5, s{regs[1]}\n    v_mov_b32 v6, s{regs[2]}\n    v_mov_b32 v7, s{regs[3]}")
            self(f"    buffer_store_dwordx4 v[4:7], v2, s[36:39], 0 offen offset:{16*q}\n    s_nop 1")
    def signal(self, flag):
        self(f"""    s_mov_b64 exec, 1
    ds_add_u32 v12, v14 offset:{flag}
    s_mov_b64 exec, -1""")
    def wait_flag(self, flag, target, code, sleep=1):
        l = self.L("wf"); d = self.L("wfd")
        sl = f"    s_sleep {sleep}\n" if sleep else ""
        self(f"""    s_mov_b32 s59, 0
{l}:
    ds_read_b32 v13, v12 offset:{flag}
    s_waitcnt lgkmcnt(0)
    v_readfirstlane_b32 s58, v13
    s_cmp_ge_u32 s58, {target}
    s_cbranch_scc1 {d}
{sl}    s_add_u32 s59, s59, 1
    s_cmp_lt_u32 s59, {self.timeout}
    s_cbranch_scc1 {l}
    s_mov_b32 s57, {code}
    s_branch L_abort
{d}:""")
    def masks(self):
        self("""    v_and_b32 v2, 1, v1
    v_lshlrev_b32 v2, 4, v2
    v_mov_b32 v3, 0xffff
    v_lshlrev_b32 v2, v2, v3
    v_bfe_u32 v3, v1, 1, 2            ; (l>>1)&3
    v_cmp_eq_u32 vcc, 0, v3
    v_cmp_eq_u32 s[64:65], 1, v3
    v_cmp_eq_u32 s[66:67], 2, v3
    v_cmp_eq_u32 s[56:57], 3, v3
    s_nop 1
    v_cndmask_b32 v8, 0, v2, vcc
    v_cndmask_b32 v9, 0, v2, s[64:65]
    v_cndmask_b32 v10, 0, v2, s[66:67]
    v_cndmask_b32 v11, 0, v2, s[56:57]""")
    def sel(self, A, P):
        for r in range(4): self(f"    v_and_b32 v{A+r}, v{P}, v{8+r}")
    def mfma(self, D, A, B, C=None):
        c = f"v[{D}:{D+3}]" if C is None else C
        self(f"    v_mfma_f32_16x16x32_bf16 v[{D}:{D+3}], v[{A}:{A+3}], v[{B}:{B+3}], {c}")
    def selgemv(self, nq, Preg, Breg, accs, A0=32, A1=36):
        seq = [(q, pr) for q in range(nq) for pr in range(len(accs))]
        Ab = [A0, A1]; first = set()
        self.sel(Ab[0], Preg(seq[0][1], seq[0][0]))
        for n, (q, pr) in enumerate(seq):
            if n + 1 < len(seq):
                q2, pr2 = seq[n+1]
                self.sel(Ab[(n+1) & 1], Preg(pr2, q2))
            else:
                self("    s_nop 1")
            C = None
            if pr not in first:
                first.add(pr); C = "0"
            self.mfma(accs[pr], Ab[n & 1], Breg(q), C)
    def reduce64(self, op, regs, tmps):
        n = len(regs)
        pad = "    s_nop 1" if n == 1 else ("    s_nop 0" if n == 2 else None)
        for s in (8, 4, 2, 1):
            if pad: self(pad)
            for v in regs:
                self(f"    v_{op}_dpp v{v}, v{v}, v{v} row_ror:{s} row_mask:0xf bank_mask:0xf")
        self.xrows(op, regs, tmps)
    def xrows(self, op, regs, tmps, which=("16", "32")):
        for perm in which:
            for v, t in zip(regs, tmps): self(f"    v_mov_b32 v{t}, v{v}")
            self("    s_nop 1" if len(regs) < 3 else "    s_nop 0")
            for v, t in zip(regs, tmps): self(f"    v_permlane{perm}_swap_b32 v{v}, v{t}")
            self("    s_nop 1")
            for v, t in zip(regs, tmps): self(f"    v_{op} v{v}, v{v}, v{t}")
    def get_epoch(self):
        self.wait_flag(F_ERDY, 1, 20)
        self(f"""    ds_read_b64 v[2:3], v12 offset:{L_E}
    s_waitcnt lgkmcnt(0)
    v_readfirstlane_b32 s60, v2
    v_readfirstlane_b32 s61, v3""")
    def get_verdict(self):
        self.wait_flag(F_VRDY, 1, 25)
        self(f"""    ds_read_b32 v13, v12 offset:{L_VERD}
    s_waitcnt lgkmcnt(0)
    v_readfirstlane_b32 s97, v13""")
    def stores(self, lst):
        lo = self.L("loc"); dn = self.L("std")
        self(f"    s_cmp_eq_u32 s97, 1\n    s_cbranch_scc1 {lo}")
        for t in lst: self("    " + (t + " sc1" if t.startswith("buffer_store") else t))
        self(f"    s_branch {dn}\n{lo}:")
        for t in lst: self("    " + t)
        self(f"{dn}:")
    def poll_begin(self, name):
        l = self.L(name)
        self(f"    s_mov_b32 s59, 0\n{l}:")
        return l
    def poll_end(self, l, code, sleep=2):
        d = self.L("pd")
        sl = f"    s_sleep {sleep}\n" if sleep else ""
        self(f"""    s_cbranch_vccz {d}
{sl}    s_add_u32 s59, s59, 1
    s_cmp_lt_u32 s59, {self.timeout}
    s_cbranch_scc1 {l}
    s_mov_b32 s57, {code}
    s_branch L_abort
{d}:""")
    def tagcheck(self, pairs):
        self(f"    v_cmp_ne_u64 vcc, s[60:61], v[{pairs[0]}:{pairs[0]+1}]")
        for p in pairs[1:]:
            self(f"    v_cmp_ne_u64 s[56:57], s[60:61], v[{p}:{p+1}]\n    s_or_b64 vcc, vcc, s[56:57]")
    def red8(self, v0, v1, t0, t1):
        self(f"    s_nop 1\n    v_add_f32_dpp v{v0}, v{v0}, v{v0} row_ror:8 row_mask:0xf bank_mask:0xf\n    v_add_f32_dpp v{v1}, v{v1}, v{v1} row_ror:8 row_mask:0xf bank_mask:0xf")
        self.xrows("add_f32", [v0, v1], [t0, t1])

    def build(self):
        a = self
        hdr = open("recurrent_scan__sliding_block_cached__glu_gated_reglu__decode.s.ref").read().split("\n")
        for l in hdr:
            if l.startswith("; Override") or l.startswith("; grid=") or l.startswith("; @launch"): continue
            if l.startswith(";"): a(l)
            else: break
        a(f"; @launch grid=(256,1,1) block=(512,1,1) lds={LDS_TOTAL}")
        a('.amdgcn_target "amdgcn-amd-amdhsa--gfx950"')
        a(f".text\n.globl {NAME}\n.p2align 8\n.type {NAME},@function\n{NAME}:")
        a(f"""    s_cmp_ge_u32 s2, 256
    s_cbranch_scc1 L_end
    s_load_dwordx16 s[4:19], s[0:1], 0
    s_load_dwordx8 s[20:27], s[0:1], 64""")
        if self.prefetch:
            a(f"""    s_getpc_b64 s[52:53]
    s_lshr_b32 s54, s2, 3
    s_and_b32 s54, s54, 3
    s_lshl_b32 s54, s54, 12
    v_lshlrev_b32 v2, 3, v0
    v_add_u32 v2, s54, v2
    global_load_dwordx2 v[236:237], v2, s[52:53]""")
        a.stamp(0)
        a(f"""    v_and_b32 v1, 63, v0
    v_lshrrev_b32 v2, 6, v0
    v_mov_b32 v12, {LB}
    v_readfirstlane_b32 s3, v2
    v_mov_b32 v14, 1
    s_and_b32 s28, s2, 7              ; x = kvh
    s_lshr_b32 s29, s2, 3             ; r
    s_and_b32 s30, s29, 7             ; c
    s_lshr_b32 s31, s29, 3            ; b
    s_lshl_b32 s32, s31, 3
    s_add_u32 s32, s32, s28           ; grp
    s_and_b32 s63, s29, 3             ; rb
    s_bfe_u32 s52, s29, 0x10002       ; fbk = (r>>2)&1
    s_lshl_b32 s53, s28, 1
    s_add_u32 s53, s53, s52           ; 2x + fbk
    s_add_u32 s54, s28, 6             ; 12 + (x-6)
    s_cmp_lt_u32 s28, 6
    s_cselect_b32 s53, s53, s54       ; FB
    s_cselect_b32 s55, 0, s52
    s_lshl_b32 s53, s53, 8
    s_bfe_u32 s54, s29, 0x10003       ; m = (r>>3)&1
    s_add_u32 s98, s54, 1
    s_cmp_lg_u32 s55, 0
    s_cselect_b32 s98, 3, s98
    s_lshl_b32 s33, s28, 10
    s_lshr_b32 s54, s29, 2
    s_lshl_b32 s54, s54, 8
    s_add_u32 s33, s33, s54
    s_cmp_lt_u32 s29, 16
    s_cselect_b32 s33, s33, s53
    s_cselect_b32 s98, 0, s98         ; matrix
    s_mov_b32 s62, 3584
    s_cselect_b32 s62, 8192, s62
@OLDTILE@
    s_cmp_lt_u32 s3, 4
    s_cbranch_scc1 L_cw""")
        self.loader()
        self.compute()
        a("L_abort:")
        a(f"""    s_mov_b32 s40, s24
    s_mov_b32 s41, s25
    s_mov_b32 s42, 256
    s_mov_b32 s43, 0x20000
    s_mov_b64 exec, 1
    v_mov_b32 v2, s57
    v_mov_b32 v3, s2
    v_mov_b32 v4, 0
    buffer_store_dwordx2 v[2:3], v4, s[40:43], 0 offen
L_end:
    s_endpgm
L_codeend:
    .fill (16896 - (L_codeend - {NAME}))/4, 4, 0xbf810000
.section .rodata,"a"
.p2align 6
.amdhsa_kernel {NAME}
  .amdhsa_next_free_vgpr 240
  .amdhsa_next_free_sgpr 100
  .amdhsa_accum_offset 240
  .amdhsa_group_segment_fixed_size 0
  .amdhsa_kernarg_size 96
  .amdhsa_user_sgpr_count 2
  .amdhsa_user_sgpr_kernarg_segment_ptr 1
  .amdhsa_system_sgpr_workgroup_id_x 1
.end_amdhsa_kernel""")
        old = """    s_cmp_lt_u32 s2, 128
    s_mov_b32 s62, 3584
    s_cselect_b32 s62, 8192, s62
    s_cselect_b32 s53, 0, 128
    s_cselect_b32 s98, 0, 1
    s_cmp_lt_u32 s2, 184
    s_cselect_b32 s53, s53, 184
    s_cselect_b32 s98, s98, 2
    s_cmp_lt_u32 s2, 240
    s_cselect_b32 s98, s98, 3
    s_sub_u32 s53, s2, s53
    s_and_b32 s63, s53, 3
    s_lshr_b32 s33, s53, 2
    s_lshl_b32 s33, s33, 8"""
        mix = """    s_cmp_lt_u32 s29, 16
    s_cbranch_scc0 L_mixd
    s_add_u32 s52, s28, s29
    s_and_b32 s52, s52, 7
    s_lshl_b32 s33, s52, 10
    s_lshr_b32 s54, s29, 2
    s_lshl_b32 s54, s54, 8
    s_add_u32 s33, s33, s54
L_mixd:"""
        return self.a.text().replace("@OLDTILE@", old if "oldtile" in self.exp else (mix if "mixtile" in self.exp else ""))

    def ws_srd(self):
        self(f"""    s_mov_b32 s36, s26
    s_mov_b32 s37, s27
    s_mov_b32 s38, {WS_SIZE}
    s_mov_b32 s39, 0x20000""")

    def loader(self):
        a = self; THR = self.thr
        a(f"""    s_setprio 3
    s_sub_u32 s35, s3, 4              ; w
    s_lshl_b32 s34, s29, 12           ; rotK
    s_lshl_b32 s52, s35, 10
    s_add_u32 s34, s34, s52           ; kpos0
    s_lshl_b32 s51, s32, 22
    s_lshl_b32 s52, s30, 17
    s_add_u32 s51, s51, s52
    s_add_u32 s51, s51, 3145728
    v_lshrrev_b32 v3, 5, v1
    s_and_b32 s52, s35, 1
    s_lshl_b32 s52, s52, 1
    v_add_u32 v4, s52, v3
    v_and_b32 v7, 31, v1
    v_xor_b32 v7, v7, v4
    v_lshlrev_b32 v7, 4, v7
    v_lshl_add_u32 v2, v3, 9, v7
    s_mov_b32 s42, 0x8000000
    s_mov_b32 s43, 0x20000
    s_mov_b32 s52, s34
    s_waitcnt lgkmcnt(0)
    s_mov_b32 s40, s6
    s_mov_b32 s41, s7""")
        if "series" in self.exp: a("    s_mov_b32 s92, 0\n    s_memrealtime s[94:95]\n    v_mov_b32 v230, 0\n    v_mov_b32 v231, 0")
        def kloop(n, thr):
            if n <= 0: return
            l = a.L("k")
            a(f"    s_mov_b32 s54, {n}\n{l}:")
            if "series" in self.exp:
                a("    s_waitcnt lgkmcnt(0)\n    v_cmp_eq_u32 vcc, s92, v1\n    v_mov_b32 v228, s94\n    s_add_u32 s92, s92, 1\n    v_cndmask_b32 v230, v230, v228, vcc")
            a(f"""    s_and_b32 s52, s52, 0x1ffff
    s_lshr_b32 s55, s52, 7
    s_and_b32 s55, s55, 0xc0
    v_xor_b32 v3, s55, v2
    s_mov_b32 m0, s52
    s_add_u32 s56, s52, s51""")
            if thr is not None: a(f"    s_waitcnt vmcnt({thr})")
            if "series" in self.exp: a("    s_memrealtime s[94:95]")
            a(f"""    buffer_load_dwordx4 v3, s[40:43], s56 offen nt lds
    s_add_u32 s52, s52, 4096
    s_sub_u32 s54, s54, 1
    s_cmp_lg_u32 s54, 0
    s_cbranch_scc1 {l}""")
        n0 = self.burst
        kloop(n0, None)
        a.stamp(7)
        a(f"""    s_mov_b32 s53, s52
    v_lshrrev_b32 v3, 4, v1           ; g
    v_and_b32 v4, 15, v1              ; j
    v_mul_lo_u32 v5, v3, s62
    v_lshl_add_u32 v5, v4, 4, v5      ; T1 voffset
    s_mul_i32 s48, s63, 112
    s_lshl_b32 s52, s35, 2
    s_add_u32 s48, s48, s52
    s_mul_i32 s48, s48, s62
    s_add_u32 s48, s48, s33
    s_cmp_eq_u32 s98, 3
    s_cselect_b32 s48, {OOB}, s48     ; T1 soffset
    s_cselect_b32 s49, 0, s62
    s_lshl_b32 s49, s49, 4            ; T1 step
    s_cmp_eq_u32 s98, 0
    s_cselect_b32 s44, s10, s16
    s_cselect_b32 s45, s11, s17
    s_mov_b32 s46, 1605632
    s_cselect_b32 s46, 3670016, s46
    s_cmp_eq_u32 s98, 2
    s_cselect_b32 s44, s18, s44
    s_cselect_b32 s45, s19, s45
    s_mov_b32 s47, 0x20000
    s_add_u32 s52, s34, {25*4096}""")
        for i in range(7):
            a(f"""    s_and_b32 s52, s52, 0x1ffff
    s_mov_b32 m0, s52
    s_add_u32 s52, s52, 4096
    buffer_load_dwordx4 v5, s[44:47], s48 offen nt lds
    s_add_u32 s48, s48, s49""")
        a(f"""    v_mul_u32_u24 v6, 896, v3
    v_lshl_add_u32 v6, v4, 4, v6
    s_and_b32 s55, s29, 3             ; nb
    s_cmp_eq_u32 s55, 3
    s_cselect_b32 s54, 8, 16
    v_cmp_le_u32 vcc, s54, v4
    v_mov_b32 v7, {OOB}
    s_lshl_b32 s52, s28, 3
    s_lshl_b32 s56, s28, 2
    s_add_u32 s56, s56, 24
    s_cmp_lt_u32 s28, 6
    s_cselect_b32 s52, s52, s56
    s_cselect_b32 s58, 32, 16
    v_cndmask_b32 v6, v6, v7, vcc
    s_lshr_b32 s56, s29, 2
    s_add_u32 s52, s52, s56           ; fb32
    s_mul_i32 s50, s52, 28672
    s_lshl_b32 s56, s55, 8
    s_add_u32 s50, s50, s56
    s_mul_i32 s56, s35, 3584
    s_add_u32 s50, s50, s56
    s_cmp_ge_u32 s29, s58
    s_cselect_b32 s50, {OOB}, s50
    s_lshl_b32 s52, s35, 10
    s_add_u32 s52, s52, {LB + L_OW}
    s_mov_b32 s44, s20
    s_mov_b32 s45, s21
    s_mov_b32 s46, 1605632
    s_mov_b32 m0, s52
    s_add_u32 s52, s52, 4096
    buffer_load_dwordx4 v6, s[44:47], s50 offen nt lds
    s_mov_b32 m0, s52
    s_add_u32 s50, s50, 14336
    buffer_load_dwordx4 v6, s[44:47], s50 offen nt lds
    s_mov_b32 s52, s53""")
        self.ws_srd()
        n1 = self.burst2
        kloop(n1, None)
        a("    s_barrier")
        a(f"    s_waitcnt vmcnt({n1 + 2})")
        a.signal(F_T1LAND)
        n0 += n1
        kloop(self.khalf - n0, THR)
        a.signal(F_KHALF)
        kloop(25 - self.khalf, THR)
        if "nocomp" not in self.exp: a.wait_flag(F_T1DONE, 4, 30)
        kloop(7, THR)
        a.stamp(1)
        a(f"""    s_mov_b32 s44, s8
    s_mov_b32 s45, s9
    s_mov_b32 s46, 0x8000000
    s_mov_b32 s47, 0x20000
    v_lshrrev_b32 v3, 4, v1
    v_and_b32 v4, 15, v1
    v_lshlrev_b32 v4, 4, v4
    v_lshl_add_u32 v6, v3, 9, v4      ; V voffset
    s_and_b32 s52, s29, 15
    s_lshl_b32 s52, s52, 13
    s_lshl_b32 s53, s35, 11
    s_add_u32 s52, s52, s53""")
        VB = 64; m = 0
        for n in range(16):
            a("    s_and_b32 s52, s52, 0x1ffff\n    s_add_u32 s56, s52, s51")
            for hf in range(2):
                t_ = THR if (self.thrv is None or m < self.thrv_from) else self.thrv
                a(f"    s_waitcnt vmcnt({t_})")
                if m == THR:
                    a.signal(F_KLAND); a.stamp(2)
                r = VB + 8*n + 4*hf
                if "series" in self.exp:
                    a(f"    s_waitcnt lgkmcnt(0)\n    v_writelane_b32 v231, s94, {m}\n    s_memrealtime s[94:95]")
                a(f"    buffer_load_dwordx4 v[{r}:{r+3}], v6, s[44:47], s56 offen offset:{256*hf} nt")
                m += 1
            if n < 15: a("    s_add_u32 s52, s52, 8192")
        a.stamp(3)
        if "series" in self.exp:
            a(f"""    s_lshl_b32 s52, s2, 2
    s_add_u32 s52, s52, s35
    s_lshl_b32 s52, s52, 9
    s_add_u32 s52, s52, {W_DUMP}
    v_lshlrev_b32 v229, 2, v1
    buffer_store_dword v230, v229, s[36:39], s52 offen
    buffer_store_dword v231, v229, s[36:39], s52 offen offset:256""")
        if "nocomp" in self.exp or "vonly" in self.exp:
            a("    s_waitcnt vmcnt(0)"); a.stamp(4); a.stamp_dump(); a("    s_endpgm")
        a.masks()
        a(f"""    v_bfe_u32 v2, v1, 3, 1
    v_lshlrev_b32 v2, 8, v2
    v_lshrrev_b32 v3, 4, v1
    v_lshl_add_u32 v2, v3, 6, v2
    s_lshl_b32 s52, s35, 9
    s_add_u32 s52, s52, {LB + L_P}
    v_add_u32 v2, s52, v2             ; P address
    v_lshlrev_b32 v48, 4, v1
    s_lshl_b32 s52, s35, 11
    s_add_u32 s52, s52, {LB + L_OW}
    v_add_u32 v49, s52, v48
    v_add_u32 v48, {LB + L_OW}, v48
    v_bfe_u32 v5, v1, 2, 2
    v_mul_u32_u24 v5, {8*REC}, v5
    v_lshrrev_b32 v6, 5, v1
    v_lshl_add_u32 v5, v6, 7, v5
    v_and_b32 v6, 3, v1
    v_lshl_add_u32 v5, v6, 5, v5
    v_bfe_u32 v6, v1, 4, 1
    v_lshl_add_u32 v51, v6, 4, v5
    s_mul_i32 s44, s32, {64*REC}
    s_mul_i32 s45, s30, {REC}
    s_add_u32 s44, s44, s45
    s_add_u32 s44, s44, {W_P3}
    s_add_u32 s45, s44, {32*REC}
    s_barrier                         ; B1""")
        a.stamp(4)
        for i in range(4):
            a(f"    ds_read_b128 v[{16+4*i}:{19+4*i}], v2 offset:{16*i}")
        a(f"    ds_read_b64 v[4:5], v12 offset:{L_E}\n    ds_read_b32 v6, v12 offset:{L_VERD}")
        a("    s_waitcnt lgkmcnt(0)\n    v_readfirstlane_b32 s97, v6")
        for q in range(4):
            a(f"    v_mov_b32 v{198+4*q}, v4\n    v_mov_b32 v{199+4*q}, v5")
        a("    v_readfirstlane_b32 s60, v4\n    v_readfirstlane_b32 s61, v5")
        Ab = [32, 36]
        a.sel(Ab[0], 16)
        for n in range(16):
            if n < 15: a.sel(Ab[(n+1) & 1], 16 + n + 1)
            a(f"    s_waitcnt vmcnt({30 - 2*n})")
            c = "0" if n == 0 else None
            a.mfma(40, Ab[n & 1], VB + 8*n, c)
            a.mfma(44, Ab[n & 1], VB + 8*n + 4, c)
        a.stamp(5)
        a(f"""    s_nop 7
    ds_write_b128 v49, v[40:43]
    ds_write_b128 v49, v[44:47] offset:1024
    s_waitcnt lgkmcnt(0)
    s_mov_b64 exec, 1
    ds_add_rtn_u32 v13, v12, v14 offset:{F_OW}
    s_mov_b64 exec, -1
    s_waitcnt lgkmcnt(0)
    v_readfirstlane_b32 s58, v13
    s_cmp_eq_u32 s58, 3
    s_cbranch_scc0 L_vfin""")
        for w in range(4):
            for hf in range(2):
                r = 64 + 8*w + 4*hf
                a(f"    ds_read_b128 v[{r}:{r+3}], v48 offset:{2048*w + 1024*hf}")
        a("    s_waitcnt lgkmcnt(0)")
        for i in range(8):
            a(f"    v_add_f32 v{64+i}, v{64+i}, v{72+i}\n    v_add_f32 v{80+i}, v{80+i}, v{88+i}")
        for i in range(8):
            dst = 196 + 4*(i >> 1) + (i & 1)
            a(f"    v_add_f32 v{dst}, v{64+i}, v{80+i}")
        a.stores(["buffer_store_dwordx4 v[196:199], v51, s[36:39], s44 offen",
                  "buffer_store_dwordx4 v[200:203], v51, s[36:39], s44 offen offset:256",
                  "buffer_store_dwordx4 v[204:207], v51, s[36:39], s45 offen",
                  "buffer_store_dwordx4 v[208:211], v51, s[36:39], s45 offen offset:256"])
        a.signal(F_PUB)
        a.stamp(6)
        a("L_vfin:")
        a(f"""    s_cmp_eq_u32 s3, 6
    s_cbranch_scc0 L_nom3
    s_cmp_ge_u32 s29, 28
    s_cbranch_scc1 L_vend
    s_mul_i32 s52, s29, 37
    s_lshr_b32 s52, s52, 8            ; b' = r/7
    s_mul_i32 s53, s52, 7
    s_sub_u32 s53, s29, s53           ; nbk64
    s_lshr_b32 s54, s53, 1            ; nb
    v_lshlrev_b32 v4, 6, v1
    s_lshl_b32 s55, s28, 5
    s_add_u32 s55, s55, s54
    s_lshl_b32 s55, s55, 4
    s_add_u32 s55, s55, {W_F2}
    s_cmp_lt_u32 s28, 6
    s_cselect_b32 s48, 0xff, 0xf
    s_mov_b32 s49, 0
    v_lshrrev_b32 v5, 4, v1
    v_mul_u32_u24 v5, 7168, v5
    v_and_b32 v3, 15, v1
    v_lshl_add_u32 v5, v3, 4, v5
    s_mul_i32 s50, s52, 448
    s_lshl_b32 s51, s53, 6
    s_add_u32 s50, s50, s51           ; b'*448 + 64nbk64
    s_mul_i32 s51, s28, {8*7168}
    s_lshl_b32 s56, s50, 2
    s_add_u32 s51, s51, s56
    s_add_u32 s51, s51, {W_P2}
    s_add_u32 s52, s51, {4*7168}
    s_mov_b64 exec, s[48:49]""")
        l = a.poll_begin("pf")
        a(f"""    buffer_load_dwordx2 v[2:3], v4, s[36:39], s55 offen sc1
    s_waitcnt vmcnt(0)
    v_cmp_ne_u64 vcc, s[60:61], v[2:3]""")
        a.poll_end(l, 9, sleep=1)
        a(f"""    s_mov_b64 exec, -1
    v_mov_b32 v20, 0
    v_mov_b32 v21, 0
    v_mov_b32 v22, 0
    v_mov_b32 v23, 0
    buffer_load_dwordx4 v[16:19], v5, s[36:39], s51 offen sc1
    s_cmp_lt_u32 s28, 6
    s_cbranch_scc0 L_m3h
    buffer_load_dwordx4 v[20:23], v5, s[36:39], s52 offen sc1
L_m3h:
    v_and_b32 v3, 15, v1
    v_lshlrev_b32 v224, 5, v3
    v_bfe_u32 v3, v1, 4, 1
    v_lshl_add_u32 v224, v3, 4, v224
    s_lshl_b32 s96, s50, 3
    s_mul_i32 s56, s28, {4*3584}
    s_add_u32 s96, s96, s56
    s_add_u32 s96, s96, {W_P5}
    v_cmp_eq_u32 s[54:55], 1, v3
    s_waitcnt vmcnt(0)
    v_add_f32 v16, v16, v20
    v_add_f32 v17, v17, v21
    v_add_f32 v18, v18, v22
    v_add_f32 v19, v19, v23""")
        a.xrows("add_f32", [16, 17, 18, 19], [20, 21, 22, 23])
        a(f"""    v_cndmask_b32 v220, v16, v18, s[54:55]
    v_cndmask_b32 v221, v17, v19, s[54:55]
    v_mov_b32 v222, s60
    v_mov_b32 v223, s61
    s_mov_b32 exec_hi, 0
    buffer_store_dwordx4 v[220:223], v224, s[36:39], s96 offen sc1
    s_mov_b32 exec_hi, -1
    s_branch L_vend
L_nom3:""")
        a(f"""    s_cmp_eq_u32 s3, 7
    s_cbranch_scc0 L_vend
    s_cmp_ge_u32 s2, 112
    s_cbranch_scc1 L_vend
    s_mul_i32 s62, s2, 2341
    s_lshr_b32 s62, s62, 16           ; b_f
    s_mul_i32 s63, s62, 28
    s_sub_u32 s63, s2, s63            ; nbk
    s_mul_i32 s53, s62, 448
    s_lshl_b32 s54, s63, 4
    s_add_u32 s53, s53, s54           ; b_f*448 + 16nbk
    s_mov_b32 s40, s4
    s_mov_b32 s41, s5
    s_mov_b32 s42, 3584
    s_mov_b32 s43, 0x20000
    s_lshl_b32 s48, s53, 1
    v_and_b32 v3, 7, v1
    v_lshlrev_b32 v2, 2, v3
    buffer_load_dword v30, v2, s[40:43], s48 offen      ; x: 2 bf16
    v_lshrrev_b32 v5, 3, v1
    v_mul_u32_u24 v6, {4*3584}, v5
    v_lshl_add_u32 v6, v3, 4, v6
    v_mul_u32_u24 v7, 3584, v5
    v_lshl_add_u32 v7, v3, 4, v7      ; P4 voffset
    s_lshl_b32 s53, s53, 3
    s_add_u32 s53, s53, {W_P5}
    s_mul_i32 s52, s62, {64*3584}
    s_lshl_b32 s54, s63, 7
    s_add_u32 s52, s52, s54
    s_add_u32 s52, s52, {W_P4}
    s_mov_b32 s40, s22
    s_mov_b32 s41, s23""")
        l = a.poll_begin("pg")
        a(f"""    buffer_load_dwordx4 v[16:19], v6, s[36:39], s53 offen sc1
    s_waitcnt vmcnt(0)
    v_cmp_ne_u64 vcc, s[60:61], v[18:19]""")
        a.poll_end(l, 8, sleep=2)
        a.red8(16, 17, 18, 19)
        a(f"""    v_cvt_pk_bf16_f32 v20, v16, v17
    v_lshlrev_b32 v16, 16, v20
    v_and_b32 v17, 0xffff0000, v20
    v_mul_f32 v20, {fbits(-LOG2E)}, v16
    v_mul_f32 v21, {fbits(-LOG2E)}, v17
    v_exp_f32 v20, v20
    v_exp_f32 v21, v21
    s_nop 0
    v_add_f32 v20, 1.0, v20
    v_add_f32 v21, 1.0, v21
    v_rcp_f32 v20, v20
    v_rcp_f32 v21, v21
    s_nop 0
    v_mul_f32 v16, v16, v20
    v_mul_f32 v17, v17, v21
    v_cvt_pk_bf16_f32 v20, v16, v17
    v_lshlrev_b32 v32, 16, v20
    v_and_b32 v33, 0xffff0000, v20      ; g
    v_lshlrev_b32 v34, 16, v30
    v_and_b32 v35, 0xffff0000, v30      ; x""")
        a.stamp(8)
        a.wait_flag(F_OW, 4, 15, sleep=1)
        a(f"""    v_mul_u32_u24 v24, 3584, v1
    v_mov_b32 v98, s60
    v_mov_b32 v99, s61
    v_mov_b32 v102, s60
    v_mov_b32 v103, s61
    v_mov_b32 v106, s60
    v_mov_b32 v107, s61""")
        l = a.poll_begin("pz")
        a("    s_mov_b32 s53, s52")
        for k in range(8):
            a(f"    buffer_load_dwordx4 v[{64+4*k}:{67+4*k}], v7, s[36:39], s53 offen sc1")
            if k < 7: a(f"    s_add_u32 s53, s53, {8*3584}")
        a(f"""    s_cmp_eq_u32 s2, 111
    s_cbranch_scc0 L_noall
    s_mov_b32 s53, {W_P4}
    buffer_load_dwordx4 v[96:99], v24, s[36:39], s53 offen sc1
    s_mov_b32 s53, {W_P4 + 64*3584}
    buffer_load_dwordx4 v[100:103], v24, s[36:39], s53 offen sc1
    s_mov_b32 s53, {W_P4 + 128*3584}
    buffer_load_dwordx4 v[104:107], v24, s[36:39], s53 offen sc1
L_noall:""")
        a("    s_waitcnt vmcnt(0)")
        a.tagcheck([66 + 4*k for k in range(8)] + [98, 102, 106])
        a.poll_end(l, 13, sleep=1)
        a.stamp(9)
        for k in range(0, 8, 2):
            a(f"    v_add_f32 v{64+4*k}, v{64+4*k}, v{68+4*k}\n    v_add_f32 v{65+4*k}, v{65+4*k}, v{69+4*k}")
        a("""    v_add_f32 v64, v64, v72
    v_add_f32 v65, v65, v73
    v_add_f32 v80, v80, v88
    v_add_f32 v81, v81, v89
    v_add_f32 v16, v64, v80
    v_add_f32 v17, v65, v81""")
        a.red8(16, 17, 18, 19)
        a(f"""    v_cvt_pk_bf16_f32 v20, v16, v17
    v_lshlrev_b32 v16, 16, v20
    v_and_b32 v17, 0xffff0000, v20
    v_mul_f32 v16, v16, v32
    v_mul_f32 v17, v17, v33
    v_cvt_pk_bf16_f32 v20, v16, v17
    v_lshlrev_b32 v16, 16, v20
    v_and_b32 v17, 0xffff0000, v20
    v_add_f32 v16, v16, v34
    v_add_f32 v17, v17, v35
    v_cvt_pk_bf16_f32 v20, v16, v17
    v_lshlrev_b32 v2, 2, v1
    s_mov_b64 exec, 0xff
    buffer_store_dword v20, v2, s[40:43], s48 offen
    s_cmp_eq_u32 s2, 111
    s_cbranch_scc0 L_vend
    s_mov_b64 exec, 1
    v_mov_b32 v2, s60
    v_mov_b32 v3, s61
    v_mov_b32 v4, 0
    buffer_store_dwordx2 v[2:3], v4, s[36:39], 0 offen sc1""")
        a("L_vend:\n    s_mov_b64 exec, -1")
        a.stamp(10)
        a.stamp_dump()
        a("    s_endpgm")

    def compute(self):
        a = self
        a("; ---------------- compute waves\nL_cw:")
        a(f"""    v_lshlrev_b32 v3, 2, v1
    v_add_u32 v3, v12, v3
    v_mov_b32 v4, 0
    ds_write_b32 v3, v4
    v_lshlrev_b32 v4, 4, v1
    s_mul_i32 s52, s3, 896
    v_add_u32 v4, s52, v4
    v_mov_b32 v5, {OOB}
    v_cmp_le_u32 vcc, 56, v1
    s_getreg_b32 s99, hwreg(HW_REG_XCC_ID)
    s_waitcnt lgkmcnt(0)
    s_mov_b32 s40, s4
    s_mov_b32 s41, s5
    s_mov_b32 s42, 3584
    s_mov_b32 s43, 0x20000
    v_cndmask_b32 v4, v4, v5, vcc
    buffer_load_dwordx4 v[16:19], v4, s[40:43], 0 offen
    s_cmp_eq_u32 s3, 0
    s_cbranch_scc0 L_noep
    s_load_dwordx2 s[60:61], s[26:27], {W_EPOCH}
L_noep:""")
        self.ws_srd()
        a("    s_barrier                         ; B0")
        if "nocomp" in self.exp: a("    s_endpgm")
        self.stage1()
        self.w1()
        self.w2()
        self.scores()
        self.tail_compute()

    def verdict(self):
        a = self
        a(f"""    v_lshlrev_b32 v104, 4, v1
    s_lshl_b32 s52, s28, 9
    s_add_u32 s52, s52, {W_XT}
    s_mov_b32 exec_hi, 0""")
        l = a.poll_begin("px")
        a(f"""    buffer_load_dwordx4 v[108:111], v104, s[36:39], s52 offen sc1
    s_waitcnt vmcnt(0)
    v_cmp_ne_u64 vcc, s[60:61], v[110:111]""")
        a.poll_end(l, 24, sleep=4)
        a(f"""    v_cmp_ne_u32 vcc, s99, v108
    s_mov_b32 exec_hi, -1
    s_cmp_eq_u64 vcc, 0
    s_cselect_b32 s97, 1, 0""")
        if "forceslow" in self.exp: a("    s_mov_b32 s97, 0")
        a(f"""    v_mov_b32 v13, s97
    ds_write_b32 v12, v13 offset:{L_VERD}
    s_waitcnt lgkmcnt(0)""")
        a.signal(F_VRDY)

    def stage1(self):
        a = self
        a("; ---------------- stage 1")
        a.masks()
        a(f"""    s_mul_i32 s52, s3, 1792
    s_add_u32 s52, s52, {LB + L_XN}
    v_lshlrev_b32 v6, 3, v1
    v_add_u32 v6, s52, v6
    v_bfe_u32 v2, v1, 3, 1
    v_lshlrev_b32 v2, 2, v2
    v_lshrrev_b32 v3, 4, v1
    v_add_u32 v2, v2, v3
    v_mul_u32_u24 v2, 448, v2
    s_mul_i32 s52, s63, 112
    s_lshl_b32 s53, s3, 2
    s_add_u32 s52, s52, s53
    s_add_u32 s52, s52, {LB + L_XN}
    v_add_u32 v7, s52, v2
    s_cmp_eq_u32 s3, 0
    s_cbranch_scc0 L_noep2
    s_waitcnt lgkmcnt(0)
    s_add_u32 s60, s60, 1
    s_addc_u32 s61, s61, 0
    v_mov_b32 v2, s60
    v_mov_b32 v3, s61
    ds_write_b64 v12, v[2:3] offset:{L_E}
    v_mov_b32 v20, s99
    v_mov_b32 v21, 0
    v_mov_b32 v22, s60
    v_mov_b32 v23, s61
    s_lshl_b32 s52, s28, 9
    s_lshl_b32 s53, s29, 4
    s_add_u32 s52, s52, s53
    s_add_u32 s52, s52, {W_XT}
    v_mov_b32 v24, 0
    s_mov_b64 exec, 1
    buffer_store_dwordx4 v[20:23], v24, s[36:39], s52 offen sc1
    s_mov_b64 exec, -1
    s_waitcnt lgkmcnt(0)""")
        a.signal(F_ERDY)
        a("L_noep2:")
        a(f"""    s_lshl_b32 s52, s29, 12
    s_lshl_b32 s53, s3, 10
    s_add_u32 s52, s52, s53
    s_add_u32 s52, s52, {25*4096}
    v_lshlrev_b32 v2, 4, v1""")
        for i in range(7):
            a(f"    s_and_b32 s52, s52, 0x1ffff\n    v_add_u32 v{96+i}, s52, v2\n    s_add_u32 s52, s52, 4096")
        a(f"""    s_lshl_b32 s52, s3, 11
    s_add_u32 s52, s52, {LB + L_S1}
    v_add_u32 v103, s52, v2
    s_cmp_eq_u32 s3, 0
    s_cbranch_scc1 L_xw0
    s_waitcnt vmcnt(0)
    s_branch L_xw1
L_xw0:
    s_waitcnt vmcnt(1)
L_xw1:""")
        a.stamp(1)
        for d in range(4):
            a(f"    v_lshlrev_b32 v{20+2*d}, 16, v{16+d}\n    v_and_b32 v{21+2*d}, 0xffff0000, v{16+d}")
        a("""    v_add_f32 v2, v20, v21
    v_add_f32 v3, v22, v23
    v_add_f32 v4, v24, v25
    v_add_f32 v5, v26, v27
    v_add_f32 v2, v2, v3
    v_add_f32 v4, v4, v5
    v_add_f32 v2, v2, v4""")
        a.reduce64("add_f32", [2], [3])
        a(f"""    v_mul_f32 v2, {fbits(1.0/448)}, v2      ; mean (f32)
    v_mov_b32 v4, 0
    v_mov_b32 v5, 0
    s_mov_b32 exec_hi, 0x00ffffff""")
        for i in range(8):
            a(f"    v_sub_f32 v{28+i}, v{20+i}, v2")
        for i in range(0, 8, 2):
            a(f"    v_fmac_f32 v4, v{28+i}, v{28+i}\n    v_fmac_f32 v5, v{29+i}, v{29+i}")
        a("    s_mov_b32 exec_hi, -1\n    v_add_f32 v4, v4, v5")
        a.reduce64("add_f32", [4], [3])
        a(f"""    v_mul_f32 v4, {fbits(1.0/448)}, v4      ; var
    v_cvt_pk_bf16_f32 v3, v2, v4
    v_lshlrev_b32 v2, 16, v3          ; m_bf
    v_and_b32 v4, 0xffff0000, v3      ; v_bf
    v_add_f32 v4, {fbits(1e-5)}, v4
    v_cvt_pk_bf16_f32 v4, v4, v4
    v_and_b32 v4, 0xffff0000, v4
    v_sqrt_f32 v4, v4""")
        for i in range(8):
            a(f"    v_sub_f32 v{20+i}, v{20+i}, v2")
        a(f"""    v_cvt_pk_bf16_f32 v4, v4, v4
    v_and_b32 v4, 0xffff0000, v4      ; s
    v_rcp_f32 v5, v4""")
        for d in range(4):
            a(f"    v_cvt_pk_bf16_f32 v{16+d}, v{20+2*d}, v{21+2*d}")
        for d in range(4):
            a(f"    v_lshlrev_b32 v{20+2*d}, 16, v{16+d}\n    v_and_b32 v{21+2*d}, 0xffff0000, v{16+d}")
        for i in range(8): a(f"    v_mul_f32 v{28+i}, v{20+i}, v5")
        for i in range(8): a(f"    v_fma_f32 v{20+i}, -v{28+i}, v4, v{20+i}")
        for i in range(8): a(f"    v_fmac_f32 v{28+i}, v{20+i}, v5")
        for g in range(4):
            a(f"    v_cvt_pk_bf16_f32 v{40+2*g}, v{28+g}, v{28+g}\n    v_cvt_pk_bf16_f32 v{41+2*g}, v{32+g}, v{32+g}")
        a("    s_mov_b32 exec_hi, 0x00ffffff")
        for g in range(4):
            a(f"    ds_write_b64 v6, v[{40+2*g}:{41+2*g}] offset:{448*g}")
        a("    s_mov_b32 exec_hi, -1\n    s_waitcnt lgkmcnt(0)")
        a.signal(F_XN)
        a.stamp(2)
        a.wait_flag(F_XN, 4, 21, sleep=0)
        for pr in range(2):
            for i in range(7):
                a(f"    ds_read_b32 v{48+7*pr+i}, v7 offset:{pr*3584 + 16*i}")
        a.wait_flag(F_T1LAND, 4, 22, sleep=0)
        a.stamp(3)
        for i in range(7):
            a(f"    ds_read_b128 v[{64+4*i}:{67+4*i}], v{96+i}")
        a("    s_waitcnt lgkmcnt(0)")
        a.signal(F_T1DONE)
        a.selgemv(7, lambda pr, q: 48 + 7*pr + q, lambda q: 64 + 4*q, [40, 44])
        a(f"""    s_nop 7
    ds_write_b128 v103, v[40:43]
    ds_write_b128 v103, v[44:47] offset:1024
    s_waitcnt lgkmcnt(0)""")
        a.signal(F_S1)
        a.stamp(4)
        a(f"""    s_cmp_eq_u32 s3, 1
    s_cbranch_scc1 L_w1
    s_cmp_eq_u32 s3, 2
    s_cbranch_scc1 L_w2
    s_cmp_eq_u32 s3, 3
    s_cbranch_scc1 L_scores
    s_cmp_eq_u32 s98, 3
    s_cbranch_scc1 L_w0v
    v_lshlrev_b32 v2, 4, v1
    v_add_u32 v2, {LB + L_S1}, v2
    v_lshrrev_b32 v4, 5, v1
    v_lshlrev_b32 v4, 9, v4
    v_and_b32 v3, 15, v1
    v_lshl_add_u32 v4, v3, 5, v4
    v_bfe_u32 v3, v1, 4, 1
    v_lshl_add_u32 v4, v3, 4, v4
    s_lshl_b32 s54, s28, 5
    s_add_u32 s54, s54, s29           ; x*32 + r
    s_lshl_b32 s55, s54, 4
    s_add_u32 s55, s55, {W_F1}
    s_lshl_b32 s54, s54, 11
    s_add_u32 s54, s54, {W_P1}""")
        a.wait_flag(F_S1, 4, 23, sleep=0)
        for w in range(4):
            for pr in range(2):
                r = 64 + 8*w + 4*pr
                a(f"    ds_read_b128 v[{r}:{r+3}], v2 offset:{2048*w + 1024*pr}")
        a("    v_mov_b32 v2, s60\n    v_mov_b32 v3, s61\n    v_mov_b32 v5, 0")
        a("    s_waitcnt lgkmcnt(0)")
        for i in range(8):
            a(f"    v_add_f32 v{64+i}, v{64+i}, v{72+i}\n    v_add_f32 v{80+i}, v{80+i}, v{88+i}")
        for i in range(8):
            a(f"    v_add_f32 v{64+i}, v{64+i}, v{80+i}")
        a(f"""    buffer_store_dwordx4 v[64:67], v4, s[36:39], s54 offen
    buffer_store_dwordx4 v[68:71], v4, s[36:39], s54 offen offset:1024
    s_waitcnt vmcnt(0)
    s_mov_b64 exec, 1
    buffer_store_dwordx2 v[2:3], v5, s[36:39], s55 offen
    s_mov_b64 exec, -1
    s_mov_b32 s34, s54
    s_mov_b32 s35, s55""")
        a.stamp(5)
        self.verdict()
        a(f"""    s_cmp_eq_u32 s97, 1
    s_cbranch_scc1 L_scores
    s_add_u32 s35, s35, {W_F1G - W_F1}
    v_mov_b32 v2, s60
    v_mov_b32 v3, s61
    buffer_store_dwordx4 v[64:67], v4, s[36:39], s34 offen sc1
    buffer_store_dwordx4 v[68:71], v4, s[36:39], s34 offen offset:1024 sc1
    s_waitcnt vmcnt(0)
    s_mov_b64 exec, 1
    buffer_store_dwordx2 v[2:3], v5, s[36:39], s35 offen sc1
    s_mov_b64 exec, -1
    s_branch L_scores
L_w0v:""")
        self.verdict()
        a("    s_branch L_scores")

    def w1(self):
        a = self
        a("; ---------------- W1\nL_w1:")
        if "now1" in self.exp: a("    s_branch L_scores")
        a.get_epoch()
        a.get_verdict()
        a(f"""    v_lshlrev_b32 v4, 4, v1
    s_lshl_b32 s54, s28, 9
    s_add_u32 s54, s54, {W_F1}
    s_cmp_eq_u32 s97, 1
    s_cselect_b32 s53, 0, {W_F1G - W_F1}
    s_add_u32 s54, s54, s53
    v_lshrrev_b32 v5, 4, v1
    v_lshlrev_b32 v5, 13, v5
    v_and_b32 v3, 15, v1
    v_lshl_add_u32 v5, v3, 5, v5
    s_lshl_b32 s52, s28, 16
    s_lshl_b32 s53, s31, 9
    s_add_u32 s52, s52, s53
    s_add_u32 s52, s52, {W_P1}
    s_add_u32 s53, s52, 4096
    v_lshlrev_b32 v6, 4, v1
    v_add_u32 v6, {LB + L_Q}, v6""")
        a.wait_flag(F_KHALF, 4, 40, sleep=4)
        a("    s_mov_b64 exec, 0xffff")
        l = a.poll_begin("pq")
        a(f"""    buffer_load_dwordx2 v[2:3], v4, s[36:39], s54 offen sc1
    s_waitcnt vmcnt(0)
    v_cmp_ne_u64 vcc, s[60:61], v[2:3]""")
        a.poll_end(l, 2, sleep=4)
        a("    s_mov_b64 exec, -1")
        a.stamp(5)
        for rb in range(4):
            so = "s52" if rb < 2 else "s53"
            for hf in range(2):
                r = 16 + 8*rb + 4*hf
                a(f"    buffer_load_dwordx4 v[{r}:{r+3}], v5, s[36:39], {so} offen offset:{(rb&1)*2048 + hf*16} sc1")
        a("    s_waitcnt vmcnt(0)")
        for i in range(8): a(f"    v_add_f32 v{16+i}, v{16+i}, v{24+i}\n    v_add_f32 v{32+i}, v{32+i}, v{40+i}")
        for i in range(8): a(f"    v_add_f32 v{16+i}, v{16+i}, v{32+i}")
        for i in range(4): a(f"    v_cvt_pk_bf16_f32 v{24+i}, v{16+2*i}, v{17+2*i}")
        a(f"""    ds_write_b128 v6, v[24:27]
    s_waitcnt lgkmcnt(0)""")
        a.signal(F_QRDY)
        a("    s_branch L_scores")

    def w2(self):
        a = self
        a("; ---------------- W2\nL_w2:")
        if "now2" in self.exp: a("    s_branch L_scores")
        a(f"""    s_cmp_lt_u32 s28, 6
    s_cselect_b32 s58, 32, 16
    s_cmp_ge_u32 s29, s58
    s_cbranch_scc1 L_scores""")
        a.get_epoch()
        a.get_verdict()
        a(f"""    s_lshr_b32 s52, s29, 2
    s_and_b32 s53, s29, 3             ; nb
    s_lshr_b32 s54, s52, 2            ; fbk
    v_lshrrev_b32 v2, 2, v1
    v_lshlrev_b32 v2, 3, v2
    v_and_b32 v3, 3, v1
    v_add_u32 v2, v2, v3
    v_lshlrev_b32 v4, 4, v2
    s_lshl_b32 s55, s28, 5
    s_lshl_b32 s56, s54, 2
    s_add_u32 s55, s55, s56
    s_add_u32 s55, s55, 16            ; x*32 + 16 + 4fbk
    s_lshl_b32 s48, s55, 4
    s_add_u32 s48, s48, {W_F1}
    s_cmp_eq_u32 s97, 1
    s_cselect_b32 s56, 0, {W_F1G - W_F1}
    s_add_u32 s48, s48, s56
    v_lshrrev_b32 v5, 4, v1
    v_lshlrev_b32 v5, 9, v5
    v_and_b32 v3, 15, v1
    v_lshl_add_u32 v5, v3, 3, v5
    s_lshl_b32 s55, s55, 11
    s_and_b32 s56, s52, 3
    s_lshl_b32 s56, s56, 7
    s_add_u32 s55, s55, s56
    s_add_u32 s44, s55, {W_P1}
    s_add_u32 s45, s44, 4096
    s_add_u32 s46, s44, {8*2048}
    s_add_u32 s47, s46, 4096
    v_lshrrev_b32 v6, 4, v1
    v_lshlrev_b32 v6, 7, v6
    v_and_b32 v3, 1, v1
    v_lshl_add_u32 v6, v3, 6, v6
    v_bfe_u32 v3, v1, 1, 3
    v_lshl_add_u32 v6, v3, 2, v6
    v_add_u32 v6, {LB + L_H}, v6
    v_bfe_u32 v7, v1, 3, 1
    v_lshlrev_b32 v7, 7, v7
    v_lshrrev_b32 v3, 4, v1
    v_lshl_add_u32 v7, v3, 5, v7
    v_add_u32 v7, {LB + L_H}, v7
    v_lshlrev_b32 v15, 4, v1
    v_add_u32 v15, {LB + L_OW}, v15
    v_lshrrev_b32 v48, 5, v1
    v_mul_u32_u24 v48, 1792, v48
    v_and_b32 v3, 15, v1
    v_lshl_add_u32 v48, v3, 5, v48
    v_bfe_u32 v49, v1, 4, 1
    v_lshl_add_u32 v48, v49, 4, v48
    s_cmp_eq_u32 s53, 3
    s_cselect_b32 s54, 8, 16
    v_cmp_le_u32 vcc, s54, v3
    v_mov_b32 v49, {OOB}
    s_lshl_b32 s49, s28, 3
    s_add_u32 s49, s49, s52
    s_mul_i32 s49, s49, 7168
    s_lshl_b32 s55, s53, 9
    s_add_u32 s49, s49, s55
    s_add_u32 s49, s49, {W_P2}
    s_add_u32 s50, s49, 3584
    v_cndmask_b32 v48, v48, v49, vcc
    s_lshl_b32 s51, s28, 5
    s_add_u32 s51, s51, s29
    s_lshl_b32 s51, s51, 4
    s_add_u32 s51, s51, {W_F2}""")
        a.wait_flag(F_KHALF, 4, 41, sleep=4)
        for q in range(8):
            a(f"    ds_read_b128 v[{64+4*q}:{67+4*q}], v15 offset:{1024*q}")
        a("    s_mov_b64 exec, 0xff")
        l = a.poll_begin("pm")
        a(f"""    buffer_load_dwordx2 v[2:3], v4, s[36:39], s48 offen sc1
    s_waitcnt vmcnt(0)
    v_cmp_ne_u64 vcc, s[60:61], v[2:3]""")
        a.poll_end(l, 3, sleep=4)
        a("    s_mov_b64 exec, -1")
        a.stamp(5)
        for m in range(2):
            for rb in range(4):
                so = ["s44", "s45", "s46", "s47"][2*m + (rb >> 1)]
                r = 16 + 8*m + 2*rb
                a(f"    buffer_load_dwordx2 v[{r}:{r+1}], v5, s[36:39], {so} offen offset:{(rb&1)*2048} sc1")
        a("    s_waitcnt vmcnt(0)")
        for m in range(2):
            b0 = 16 + 8*m
            for e in range(2):
                a(f"    v_add_f32 v{b0+e}, v{b0+e}, v{b0+2+e}\n    v_add_f32 v{b0+4+e}, v{b0+4+e}, v{b0+6+e}")
            for e in range(2):
                a(f"    v_add_f32 v{b0+e}, v{b0+e}, v{b0+4+e}")
        a(f"""    v_cvt_pk_bf16_f32 v2, v16, v17
    v_cvt_pk_bf16_f32 v3, v24, v25
    v_lshlrev_b32 v16, 16, v2
    v_and_b32 v17, 0xffff0000, v2
    v_lshlrev_b32 v24, 16, v3
    v_and_b32 v25, 0xffff0000, v3
    v_cmp_lt_f32 vcc, 0, v16
    v_cmp_lt_f32 s[54:55], 0, v17
    s_nop 1
    v_cndmask_b32 v2, 0, 1.0, vcc
    v_cndmask_b32 v3, 0, 1.0, s[54:55]
    v_mul_f32 v16, v16, v2
    v_mul_f32 v17, v17, v3
    v_mul_f32 v16, v16, v24
    v_mul_f32 v17, v17, v25
    v_cvt_pk_bf16_f32 v16, v16, v16
    v_cvt_pk_bf16_f32 v17, v17, v17
    ds_write_b32 v6, v16
    ds_write_b32 v6, v17 offset:32
    s_waitcnt lgkmcnt(0)
    ds_read_b128 v[16:19], v7
    ds_read_b128 v[20:23], v7 offset:16
    ds_read_b128 v[24:27], v7 offset:256
    ds_read_b128 v[28:31], v7 offset:272
    v_mov_b32 v4, s60
    v_mov_b32 v5, s61
    v_mov_b32 v6, 0
    s_waitcnt lgkmcnt(0)""")
        a.selgemv(8, lambda pr, q: 16 + 8*pr + q, lambda q: 64 + 4*q, [40, 44])
        a("    s_nop 7")
        a.stores(["buffer_store_dwordx4 v[40:43], v48, s[36:39], s49 offen",
                  "buffer_store_dwordx4 v[44:47], v48, s[36:39], s50 offen",
                  "s_waitcnt vmcnt(0)", "s_mov_b64 exec, 1",
                  "buffer_store_dwordx2 v[4:5], v6, s[36:39], s51 offen",
                  "s_mov_b64 exec, -1"])
        a("    s_branch L_scores")

    def scores(self):
        a = self
        a("; ---------------- scores\nL_scores:")
        if "vonly" in self.exp:
            a.stamp_dump(); a("    s_endpgm")
        a(f"""    v_and_b32 v2, 1, v1
    v_lshlrev_b32 v2, 9, v2
    v_lshrrev_b32 v3, 4, v1
    v_lshl_add_u32 v2, v3, 4, v2
    v_add_u32 v24, {LB + L_Q}, v2
    v_bfe_u32 v2, v1, 2, 2            ; jh
    v_and_b32 v3, 3, v1
    v_lshl_add_u32 v4, v2, 4, v3
    s_lshl_b32 s52, s3, 2
    v_add_u32 v4, s52, v4
    v_lshlrev_b32 v4, 9, v4
    v_lshrrev_b32 v5, 4, v1
    v_xor_b32 v5, v5, v3
    v_lshl_add_u32 v4, v5, 4, v4""")
        for m in range(4):
            a(f"    v_xor_b32 v5, {m}, v2\n    v_lshl_add_u32 v{16+m}, v5, 6, v4\n    v_add_u32 v{20+m}, 0x10000, v{16+m}")
        a(f"""    v_lshrrev_b32 v6, 2, v1
    s_and_b32 s52, s29, 15
    v_subrev_u32 v6, s52, v6
    v_and_b32 v6, 15, v6
    v_lshlrev_b32 v6, 2, v6
    v_and_b32 v7, 3, v1
    v_lshl_add_u32 v6, v7, 6, v6
    s_lshl_b32 s52, s3, 9
    s_add_u32 s52, s52, {LB + L_P}
    v_add_u32 v25, s52, v6
    s_lshl_b32 s52, s3, 3
    v_add_u32 v26, s52, v12
    s_mov_b32 s48, 0xffff0000
    s_mov_b32 s49, 0
    s_mov_b32 s50, 0
    s_mov_b32 s51, 0xffff
    s_mov_b32 s54, 0
    s_mov_b32 s55, 0xffff0000""")
        a.wait_flag(F_QRDY, 1, 4)
        a.stamp(6)
        for ks in range(8):
            a(f"    ds_read_b128 v[{64+4*ks}:{67+4*ks}], v24 offset:{64*ks}")
        a.wait_flag(F_KLAND, 4, 5)
        a.stamp(7)
        def kread(t, buf):
            for ks in range(8):
                m = ks & 3; hi = ks >> 2
                base = (16 if t < 2 else 20) + m
                off = (t & 1)*32768 + hi*256
                a(f"    ds_read_b128 v[{buf+4*ks}:{buf+4*ks+3}], v{base} offset:{off}")
        bufs = [96, 128]
        kread(0, bufs[0])
        for t in range(4):
            if t < 3:
                kread(t+1, bufs[(t+1) & 1])
                a("    s_waitcnt lgkmcnt(8)")
            else:
                a("    s_waitcnt lgkmcnt(0)")
            for ks in range(8):
                a.mfma(40 + 4*t, 64 + 4*ks, bufs[t & 1] + 4*ks, "0" if ks == 0 else None)
        a(f"""    s_nop 7
    v_cndmask_b32 v2, v40, v44, s[48:49]
    v_cndmask_b32 v3, v41, v45, s[48:49]
    v_cndmask_b32 v2, v2, v48, s[50:51]
    v_cndmask_b32 v3, v3, v49, s[50:51]
    v_cndmask_b32 v2, v2, v52, s[54:55]
    v_cndmask_b32 v3, v3, v53, s[54:55]
    v_cvt_pk_bf16_f32 v4, v2, v3
    v_lshlrev_b32 v2, 16, v4
    v_and_b32 v3, 0xffff0000, v4""")
        if self.dump:
            a(f"""    v_lshrrev_b32 v4, 2, v1
    v_lshlrev_b32 v4, 4, v4
    v_and_b32 v5, 3, v1
    v_add_u32 v4, v4, v5
    s_lshl_b32 s52, s3, 2
    v_add_u32 v4, s52, v4
    v_lshlrev_b32 v4, 2, v4
    s_lshl_b32 s52, s2, 11
    s_add_u32 s52, s52, {W_DUMP}
    buffer_store_dword v2, v4, s[36:39], s52 offen
    buffer_store_dword v3, v4, s[36:39], s52 offen offset:1024""")
        a("    v_mov_b32 v4, v2\n    v_mov_b32 v5, v3")
        a.reduce64("max_f32", [4, 5], [6, 7])
        a(f"""    s_mov_b64 exec, 1
    ds_write_b64 v26, v[4:5] offset:{L_SMMAX}
    s_waitcnt lgkmcnt(0)
    ds_add_u32 v12, v14 offset:{F_MAX}
    s_mov_b64 exec, -1""")
        a.wait_flag(F_MAX, 4, 6, sleep=0)
        a(f"""    ds_read_b128 v[16:19], v12 offset:{L_SMMAX}
    ds_read_b128 v[20:23], v12 offset:{L_SMMAX+16}
    s_waitcnt lgkmcnt(0)
    v_max3_f32 v4, v16, v18, v20
    v_max3_f32 v5, v17, v19, v21
    v_max_f32 v4, v4, v22             ; M0
    v_max_f32 v5, v5, v23             ; M1
    v_sub_f32 v2, v2, v4
    v_sub_f32 v3, v3, v5
    v_mul_f32 v2, {fbits(CEXP)}, v2
    v_mul_f32 v3, {fbits(CEXP)}, v3
    v_exp_f32 v2, v2
    v_exp_f32 v3, v3
    s_nop 0
    v_cvt_pk_bf16_f32 v16, v2, v2
    v_cvt_pk_bf16_f32 v17, v3, v3
    ds_write_b32 v25, v16
    ds_write_b32 v25, v17 offset:256""")
        a.reduce64("add_f32", [2, 3], [6, 7])
        a(f"""    s_mov_b64 exec, 1
    ds_write_b64 v26, v[2:3] offset:{L_SMSUM}
    s_waitcnt lgkmcnt(0)
    ds_add_rtn_u32 v13, v12, v14 offset:{F_PSUM}
    s_waitcnt lgkmcnt(0)
    s_mov_b64 exec, -1
    v_readfirstlane_b32 s58, v13
    s_cmp_eq_u32 s58, 3
    s_cbranch_scc0 L_noml""")
        a.get_epoch()
        a.get_verdict()
        a(f"""    ds_read_b128 v[16:19], v12 offset:{L_SMSUM}
    ds_read_b128 v[20:23], v12 offset:{L_SMSUM+16}
    v_cmp_eq_u32 vcc, 1, v1
    v_lshlrev_b32 v6, 4, v1
    s_lshl_b32 s52, s32, 8
    s_lshl_b32 s53, s30, 5
    s_add_u32 s52, s52, s53
    s_add_u32 s52, s52, {W_ML}
    s_waitcnt lgkmcnt(0)
    v_add_f32 v16, v16, v18
    v_add_f32 v17, v17, v19
    v_add_f32 v20, v20, v22
    v_add_f32 v21, v21, v23
    v_add_f32 v16, v16, v20           ; l0
    v_add_f32 v17, v17, v21           ; l1
    v_mov_b32 v18, s60
    v_mov_b32 v19, s61
    v_cndmask_b32 v17, v16, v17, vcc
    v_cndmask_b32 v16, v4, v5, vcc
    s_mov_b64 exec, 3""")
        a.stores(["buffer_store_dwordx4 v[16:19], v6, s[36:39], s52 offen"])
        a("    s_mov_b64 exec, -1\nL_noml:")
        a.stamp(8)

    def tail_compute(self):
        a = self
        a.get_epoch()
        a(f"""    s_mov_b32 s44, s12
    s_mov_b32 s45, s13
    s_mov_b32 s46, 3670016
    s_mov_b32 s47, 0x20000
    v_lshrrev_b32 v2, 4, v1
    v_mul_u32_u24 v2, 896, v2
    v_and_b32 v3, 15, v1
    v_lshl_add_u32 v5, v3, 4, v2
    s_cmp_eq_u32 s3, 3
    s_cselect_b32 s54, 8, 16
    v_cmp_le_u32 vcc, s54, v3
    v_mov_b32 v6, {OOB}
    s_lshl_b32 s52, s28, 9
    s_lshl_b32 s53, s30, 5
    s_add_u32 s52, s52, s53
    s_mul_i32 s52, s52, 896
    s_lshl_b32 s53, s3, 8
    s_add_u32 s52, s52, s53
    v_cndmask_b32 v46, v5, v6, vcc
    v_add_u32 v47, 7168, v46""")
        for i in range(4):
            a(f"""    s_add_u32 s53, s31, {i}
    s_and_b32 s53, s53, 3
    s_mul_i32 s{40+i}, s53, 14336
    s_cmp_ge_u32 s53, 2
    s_cselect_b32 s53, 200704, 0
    s_add_u32 s{40+i}, s{40+i}, s53
    s_add_u32 s{40+i}, s{40+i}, s52""")
        a(f"""    v_lshrrev_b32 v2, 5, v1
    v_mul_u32_u24 v2, {4*REC}, v2
    v_and_b32 v3, 31, v1
    v_lshl_add_u32 v48, v3, 4, v2
    v_bfe_u32 v3, v1, 3, 1
    v_lshrrev_b32 v45, 5, v1
    v_lshlrev_b32 v45, 7, v45
    v_lshl_add_u32 v45, v3, 4, v45
    s_lshl_b32 s34, s32, 8
    s_add_u32 s34, s34, {W_ML}
    s_mul_i32 s48, s32, {64*REC}
    s_mul_i32 s53, s30, {8*REC}
    s_add_u32 s48, s48, s53
    s_add_u32 s48, s48, {W_P3}
    v_bfe_u32 v2, v1, 4, 1            ; s
    v_lshlrev_b32 v2, 7, v2
    v_and_b32 v3, 15, v1              ; q
    s_lshl_b32 s53, s31, 2
    v_subrev_u32 v3, s53, v3
    v_and_b32 v3, 15, v3
    v_lshl_add_u32 v2, v3, 2, v2
    s_lshl_b32 s53, s3, 8
    s_add_u32 s53, s53, {LB + L_OD}
    v_add_u32 v49, s53, v2
    v_lshrrev_b32 v3, 4, v1
    v_lshlrev_b32 v3, 6, v3
    v_add_u32 v50, s53, v3
    v_and_b32 v2, 15, v1
    v_lshlrev_b32 v2, 6, v2
    v_bfe_u32 v3, v1, 4, 1
    v_lshl_add_u32 v2, v3, 5, v2
    v_lshrrev_b32 v3, 5, v1
    v_lshl_add_u32 v51, v3, 4, v2
    v_and_b32 v3, 15, v1
    s_cmp_eq_u32 s3, 3
    s_cselect_b32 s54, 8, 16
    v_cmp_le_u32 vcc, s54, v3
    s_lshl_b32 s49, s31, 6
    s_lshl_b32 s53, s28, 3
    s_add_u32 s49, s49, s53
    s_add_u32 s49, s49, s30
    s_mul_i32 s49, s49, 3584
    s_lshl_b32 s53, s3, 10
    s_add_u32 s49, s49, s53
    s_add_u32 s49, s49, {W_P4}
    v_cndmask_b32 v51, v51, v6, vcc
    v_mov_b32 v54, s60
    v_mov_b32 v55, s61
    v_cmp_le_u32 s[50:51], 32, v1""")
        if "woearly" in self.exp:
            for n in range(4):
                vo = "v46" if (n & 3) < 2 else "v47"
                a(f"    buffer_load_dwordx4 v[{64+4*n}:{67+4*n}], {vo}, s[44:47], s{40 + (n >> 2)} offen offset:{3584*(n & 1)}{self.woflags}")
        a.stamp(9)
        a("    s_barrier                         ; B1")
        a.stamp(10)
        for k in range(4):
            a(f"    buffer_load_dwordx4 v[{128+4*k}:{131+4*k}], v45, s[36:39], s34 offen offset:{32*k} sc1")
        n_early = 4 if "woearly" in self.exp else 0
        for n in range(n_early, 16):
            vo = "v46" if (n & 3) < 2 else "v47"
            a(f"    buffer_load_dwordx4 v[{64+4*n}:{67+4*n}], {vo}, s[44:47], s{40 + (n >> 2)} offen offset:{3584*(n & 1)}{self.woflags}")
        a.stamp(11)
        a(f"    s_waitcnt vmcnt({16 - (4 if 'woearly' in self.exp else 0)})")
        a.tagcheck([130, 134, 138, 142])
        lok = a.L("mlok")
        a(f"    s_cbranch_vccz {lok}")
        l = a.poll_begin("pml")
        for k in range(4):
            a(f"    buffer_load_dwordx4 v[{128+4*k}:{131+4*k}], v45, s[36:39], s34 offen offset:{32*k} sc1")
        a("    s_waitcnt vmcnt(0)")
        a.tagcheck([130, 134, 138, 142])
        a.poll_end(l, 10, sleep=2)
        a(f"{lok}:")
        a("""    v_max_f32 v144, v128, v132
    v_max_f32 v145, v136, v140
    v_max_f32 v144, v144, v145""")
        a.xrows("max_f32", [144], [145], which=("32",))
        for k in range(4): a(f"    v_sub_f32 v{146+k}, v{128+4*k}, v144")
        for k in range(4): a(f"    v_mul_f32 v{146+k}, {fbits(CEXP)}, v{146+k}")
        for k in range(4): a(f"    v_exp_f32 v{146+k}, v{146+k}")
        a("""    s_nop 0
    v_mul_f32 v150, v146, v129
    v_fmac_f32 v150, v147, v133
    v_fmac_f32 v150, v148, v137
    v_fmac_f32 v150, v149, v141""")
        a.xrows("add_f32", [150], [151], which=("32",))
        a("""    v_rcp_f32 v151, v150
    s_nop 0
    v_fma_f32 v152, -v150, v151, 1.0
    v_fmac_f32 v151, v152, v151""")
        for k in range(4): a(f"    v_mul_f32 v{146+k}, v{146+k}, v151")
        a.wait_flag(F_PUB, 1, 11, sleep=0)
        l = a.poll_begin("po")
        for k in range(4):
            a(f"    buffer_load_dwordx4 v[{16+4*k}:{19+4*k}], v48, s[36:39], s48 offen offset:{REC*k} sc1")
        a("    s_waitcnt vmcnt(0)")
        a.tagcheck([18, 22, 26, 30])
        a.poll_end(l, 12, sleep=0)
        a.stamp(12)
        a(f"""    v_mul_f32 v16, v16, v146
    v_mul_f32 v17, v17, v146
    v_mul_f32 v24, v24, v148
    v_mul_f32 v25, v25, v148
    v_fmac_f32 v16, v20, v147
    v_fmac_f32 v17, v21, v147
    v_fmac_f32 v24, v28, v149
    v_fmac_f32 v25, v29, v149
    v_add_f32 v16, v16, v24
    v_add_f32 v17, v17, v25""")
        a.xrows("add_f32", [16, 17], [18, 19], which=("32",))
        a(f"""    v_cvt_pk_bf16_f32 v16, v16, v16
    v_cvt_pk_bf16_f32 v17, v17, v17
    s_mov_b32 exec_hi, 0
    ds_write_b32 v49, v16
    ds_write_b32 v49, v17 offset:64
    s_mov_b32 exec_hi, -1
    s_waitcnt lgkmcnt(0)
    ds_read_b128 v[16:19], v50
    ds_read_b128 v[20:23], v50 offset:16
    ds_read_b128 v[24:27], v50 offset:32
    ds_read_b128 v[28:31], v50 offset:48
    s_waitcnt lgkmcnt(0)""")
        a.selgemv(16, lambda pr, q: 16 + q, lambda q: 64 + 4*q, [40])
        a(f"""    s_nop 7
    v_cndmask_b32 v52, v40, v42, s[50:51]
    v_cndmask_b32 v53, v41, v43, s[50:51]
    buffer_store_dwordx4 v[52:55], v51, s[36:39], s49 offen sc1""")
        a.stamp(13)
        a.stamp_dump()
        a("    s_endpgm")

def generate(**kw):
    return Gen(**kw).build()

if __name__ == "__main__":
    import argparse
    ap = argparse.ArgumentParser()
    ap.add_argument("-o", default="recurrent_scan__sliding_block_cached__glu_gated_reglu__decode.s")
    ap.add_argument("--stamps", action="store_true")
    ap.add_argument("--dump", action="store_true")
    ap.add_argument("--thr", type=int, default=5)
    ap.add_argument("--khalf", type=int, default=20)
    ap.add_argument("--burst", type=int, default=3)
    ap.add_argument("--burst2", type=int, default=4)
    ap.add_argument("--thrv", type=int, default=None)
    ap.add_argument("--thrv_from", type=int, default=8)
    ap.add_argument("--noprefetch", action="store_true")
    ap.add_argument("--exp", default="")
    ap.add_argument("--woflags", default=" nt")
    args = ap.parse_args()
    txt = generate(thr=args.thr, stamps=args.stamps, dump=args.dump, prefetch=not args.noprefetch,
                   exp=[e for e in args.exp.split(',') if e], woflags=args.woflags, khalf=args.khalf, burst=args.burst, thrv=args.thrv, thrv_from=args.thrv_from, burst2=args.burst2)
    open(args.o, "w").write(txt)
    print("wrote", args.o, len(txt))
```
